```python
import torch

def _softmax(x, axis=-1):
    return torch.softmax(x, dim=axis)
def _gelu(x):
    return torch.nn.functional.gelu(x, approximate="tanh")
def _silu(x):
    return torch.nn.functional.silu(x)
def _sigmoid(x):
    return torch.sigmoid(x)
def _layernorm(x, axis=-1, eps=1e-5):
    m = x.mean(dim=axis, keepdim=True)
    v = x.var(dim=axis, keepdim=True, unbiased=False)
    return (x - m) / torch.sqrt(v + eps)
def _scatter_add(tgt, idx, src, axis=0):
    return tgt.clone().index_add_(axis, idx, src)
def _segment_sum(src, seg, n):
    out = torch.zeros((n,) + src.shape[1:], dtype=src.dtype)
    return out.index_add_(0, seg, src)
def _pad(x, pw):
    flat = tuple(v for pair in reversed(pw) for v in pair)
    return torch.nn.functional.pad(x, flat)

kernel_name = 'standalone__seq2seq_rnn_t_joint__speech'

def setup_inputs():

    _w = (lambda a: (lambda t: t.to(torch.bfloat16) if t.is_floating_point() else t)(torch.as_tensor(a)))
    B, T, D, K = 2, 16000, 256, 31
    U = 8
    sc = (1.0 / (K * D)) ** 0.5
    sd = (1.0 / D) ** 0.5
    return {
        "x": _w((lambda *s: torch.randn(*s, dtype=torch.bfloat16) * 0.2)(B, T, D) * 0.5),
        "w1": _w((lambda *s: torch.randn(*s, dtype=torch.bfloat16) * 3.2)(K, D, D) * sc),
        "w2": _w((lambda *s: torch.randn(*s, dtype=torch.bfloat16) * 3.2)(K, D, D) * sc),
        "g": _w((lambda *s: torch.randn(*s, dtype=torch.bfloat16) * 3.2)(B, U, D) * 0.5),
        "w_f": _w((lambda *s: torch.randn(*s, dtype=torch.bfloat16) * 3.2)(D, D) * sd),
        "w_g": _w((lambda *s: torch.randn(*s, dtype=torch.bfloat16) * 3.2)(D, D) * sd),
        "w_o": _w((lambda *s: torch.randn(*s, dtype=torch.bfloat16) * 3.2)(D, D) * sd),
    }

def reference(x, w1, w2, g, w_f, w_g, w_o):
    B, T, D = x.shape
    K = w1.shape[0]
    pad = K // 2
    xp = _pad(x, ((0,0),(pad,pad),(0,0)))
    h = torch.zeros_like(x)
    for i in range(K):
        h = h + torch.einsum("btc,cd->btd", xp[:, i:i+T, :], w1[i])
    h = _gelu(h)[:, ::2, :]
    T1 = h.shape[1]
    hp = _pad(h, ((0,0),(pad,pad),(0,0)))
    f = torch.zeros_like(h)
    for i in range(K):
        f = f + torch.einsum("btc,cd->btd", hp[:, i:i+T1, :], w2[i])
    f = _gelu(f)[:, ::2, :]
    fe = torch.einsum("btd,de->bte", f, w_f)
    ge = torch.einsum("bud,de->bue", g, w_g)
    j = torch.tanh(fe[:, :, None, :] + ge[:, None, :, :])
    return torch.einsum("btud,dv->btuv", j, w_o)
```

```python
import struct


def f2u(f):
    return struct.unpack('<I', struct.pack('<f', f))[0]


class Asm:
    def __init__(self):
        self.L = []
        self.vm = []
        self.lg = []

    def e(self, s):
        self.L.append("    " + s)

    def label(self, s):
        self.L.append(s + ":")

    def c(self, s):
        self.L.append("    ; " + s)

    def vm_issue(self, tag):
        self.vm.append(tag)
        assert len(self.vm) <= 63, "vmcnt overflow"

    def lg_issue(self, tag):
        self.lg.append(tag)
        assert len(self.lg) <= 15, ("lgkmcnt overflow", self.lg)

    def _need(self, q, tags):
        idx = -1
        for i, t in enumerate(q):
            if t in tags:
                idx = i
        return idx

    def wait(self, vm_tags=(), lg_tags=(), force=False):
        parts = []
        if vm_tags:
            idx = self._need(self.vm, vm_tags)
            if idx >= 0:
                parts.append(f"vmcnt({len(self.vm) - idx - 1})")
                self.vm = self.vm[idx + 1:]
        if lg_tags:
            idx = self._need(self.lg, lg_tags)
            if idx >= 0:
                parts.append(f"lgkmcnt({len(self.lg) - idx - 1})")
                self.lg = self.lg[idx + 1:]
        if parts:
            self.e("s_waitcnt " + " ".join(parts))

    def wait_all(self, vm=True, lg=True):
        parts = []
        if vm:
            parts.append("vmcnt(0)")
            self.vm = []
        if lg:
            parts.append("lgkmcnt(0)")
            self.lg = []
        self.e("s_waitcnt " + " ".join(parts))

    def text(self):
        return "\n".join(self.L) + "\n"

    def srd(self, s, base_lo, base_hi, nbytes):
        self.e(f"s_mov_b32 s{s}, {base_lo}")
        self.e(f"s_mov_b32 s{s+1}, {base_hi}")
        self.e(f"s_mov_b32 s{s+2}, {nbytes}")
        self.e(f"s_mov_b32 s{s+3}, 0x00020000")

    def add64(self, d, a, off):
        self.e(f"s_add_u32 s{d}, s{a}, {off}")
        self.e(f"s_addc_u32 s{d+1}, s{a+1}, 0")


class Stamps:
    def __init__(self, a, on, s0=60):
        self.a, self.on, self.s0, self.n = a, on, s0, 0

    def begin(self):
        if not self.on: return
        a = self.a
        a.e(f"s_load_dwordx2 s[{self.s0}:{self.s0+1}], s[0:1], 64")
        a.e(f"s_memrealtime s[{self.s0+2}:{self.s0+3}]")
        self.stamp()

    def stamp(self):
        if not self.on: return
        r = self.s0 + 6 + 2 * self.n
        self.a.e(f"s_memtime s[{r}:{r+1}]")
        self.n += 1

    def dump(self, wg, wave_sgpr, wave, label):
        if not self.on: return
        a, s0 = self.a, self.s0
        a.e(f"s_memrealtime s[{s0+4}:{s0+5}]")
        a.e("s_waitcnt lgkmcnt(0)")
        a.e(f"s_cmp_lg_u32 s2, {wg}")
        a.e(f"s_cbranch_scc1 {label}")
        a.e(f"s_cmp_lg_u32 s{wave_sgpr}, {wave}")
        a.e(f"s_cbranch_scc1 {label}")
        a.e(f"s_mov_b32 s56, s{s0}")
        a.e(f"s_mov_b32 s57, s{s0+1}")
        a.e("s_mov_b32 s58, 256")
        a.e("s_mov_b32 s59, 0x00020000")
        a.e("v_mov_b32 v2, 0")
        a.e(f"s_sub_u32 s{s0+4}, s{s0+4}, s{s0+2}")
        a.e(f"v_mov_b32 v0, s{s0+4}")
        a.e("buffer_store_dword v0, v2, s[56:59], 0 offen")
        for i in range(1, self.n):
            r = s0 + 6 + 2 * i
            a.e(f"s_sub_u32 s{s0+5}, s{r}, s{s0+6}")
            a.e(f"v_mov_b32 v0, s{s0+5}")
            a.e(f"buffer_store_dword v0, v2, s[56:59], 0 offen offset:{4*i}")
        a.label(label)


def kd(name, vgpr=256, sgpr=102, accum=None):
    accum = accum or ((vgpr + 3) // 4 * 4)
    return f""".amdhsa_kernel {name}
  .amdhsa_next_free_vgpr {vgpr}
  .amdhsa_next_free_sgpr {sgpr}
  .amdhsa_accum_offset {accum}
  .amdhsa_group_segment_fixed_size 0
  .amdhsa_kernarg_size 80
  .amdhsa_user_sgpr_count 2
  .amdhsa_user_sgpr_kernarg_segment_ptr 1
  .amdhsa_system_sgpr_workgroup_id_x 1
.end_amdhsa_kernel
"""
```

```python
from asmlib import Asm, Stamps
from layout import *


def gemm_kernel(name, conv, exp=""):
    a = Asm()
    if conv == 1:
        NT, S, M, XBIN, WS_X, WS_G, WS_Y = 4, 5, M1, XBIN1, WS_XH1, WS_GH1, WS_YH1
    else:
        NT, S, M, XBIN, WS_X, WS_G, WS_Y = 2, 7, M2, XBIN2, WS_XH2, WS_GH2, WS_YH2
    NSTEP = 16
    ROWS = 84
    ABYTES = 12288
    BP = 2 * NT * 2
    SLOT = ABYTES + BP * 1024
    SPW = 65536 // SLOT
    NWIN = (S + SPW - 1) // SPW
    LDS = S * SLOT
    BPW = BP // 4
    NLD = 3 + BPW
    NWG = 256

    ACCR, ACCI = 0, NT * 12
    FR0 = 2 * NT * 12
    FSZ = NT * 8 + 24
    vAre = FR0 + 2 * FSZ
    vAim = vAre + NWIN
    vB = vAim + NWIN
    vT = vB + NWIN
    NV = vT + 12
    assert NV <= 256

    def G(st, t, ri):
        return FR0 + st * FSZ + (t * 2 + ri) * 4

    def U(st, r, ri):
        return FR0 + st * FSZ + NT * 8 + (r * 2 + ri) * 4

    def accr(t, r):
        return ACCR + (t * 3 + r) * 4

    def acci(t, r):
        return ACCI + (t * 3 + r) * 4

    sA, sB, sY = 8, 12, 16
    sW = 20
    sBin = 21
    sM0 = 22
    sT = 24
    a.label(name)
    a.e(f"s_cmp_ge_u32 s2, {NWG}")
    a.e(f"s_cbranch_scc1 L_{name}_done")
    st_ = Stamps(a, "stamp" in exp)
    st_.begin()
    a.e("s_load_dwordx2 s[4:5], s[0:1], 72")
    a.e(f"v_readfirstlane_b32 s{sW}, v0")
    a.e(f"s_lshr_b32 s{sW}, s{sW}, 6")
    a.e("s_and_b32 s24, s2, 7")
    a.e("s_lshr_b32 s25, s2, 3")
    a.e("s_lshr_b32 s26, s25, 3")
    a.e("s_lshl_b32 s24, s24, 2")
    a.e(f"s_add_u32 s{sBin}, s24, s26")
    a.e("s_and_b32 s25, s25, 7")
    if conv == 1:
        a.e("s_lshr_b32 s26, s25, 1")
        a.e("s_and_b32 s27, s25, 1")
    else:
        a.e("s_lshr_b32 s26, s25, 2")
        a.e("s_and_b32 s27, s25, 3")
    a.e(f"s_mul_i32 s{sM0}, s26, {ROWS}")
    a.e(f"s_sub_u32 s28, {M}, s{sM0}")
    a.e(f"s_min_u32 s28, s28, {ROWS}")
    a.e("s_waitcnt lgkmcnt(0)")
    a.e(f"s_mul_i32 s29, s{sBin}, {XBIN}")
    a.e(f"s_lshl_b32 s30, s{sM0}, 11")
    a.e("s_add_u32 s29, s29, s30")
    a.e(f"s_add_u32 s29, s29, {WS_X}")
    a.e(f"s_add_u32 s{sA}, s4, s29")
    a.e(f"s_addc_u32 s{sA+1}, s5, 0")
    a.e(f"s_lshl_b32 s{sA+2}, s28, 11")
    a.e(f"s_mov_b32 s{sA+3}, 0x00020000")
    a.e(f"s_mul_i32 s29, s{sBin}, {GBIN}")
    a.e(f"s_mul_i32 s30, s27, {2*NT*2048}")
    a.e("s_add_u32 s29, s29, s30")
    a.e(f"s_add_u32 s29, s29, {WS_G}")
    a.e(f"s_add_u32 s{sB}, s4, s29")
    a.e(f"s_addc_u32 s{sB+1}, s5, 0")
    a.e(f"s_mov_b32 s{sB+2}, {15*32768 + BP*1024}")
    a.e(f"s_mov_b32 s{sB+3}, 0x00020000")
    a.e(f"s_cmp_ge_u32 s{sW}, 4")
    a.e(f"s_cbranch_scc1 L_{name}_loader")

    a.e(f"s_lshl_b32 s29, s{sM0}, 15")
    a.e(f"s_add_u32 s29, s29, {WS_Y}")
    a.e(f"s_add_u32 s{sY}, s4, s29")
    a.e(f"s_addc_u32 s{sY+1}, s5, 0")
    a.e(f"s_lshl_b32 s{sY+2}, s28, 15")
    a.e(f"s_mov_b32 s{sY+3}, 0x00020000")
    a.e(f"s_lshr_b32 s29, s{sW}, 1")
    a.e(f"s_and_b32 s30, s{sW}, 1")
    a.e(f"v_and_b32 v{vT}, 15, v0")
    a.e(f"v_bfe_u32 v{vT+1}, v0, 4, 2")
    a.e(f"v_and_b32 v{vT+2}, 63, v0")
    a.e(f"s_mul_i32 s31, s29, {48*128}")
    a.e(f"v_and_b32 v{vT+3}, 7, v{vT}")
    a.e(f"v_xor_b32 v{vT+3}, v{vT+1}, v{vT+3}")
    a.e(f"v_lshlrev_b32 v{vT+3}, 4, v{vT+3}")
    a.e(f"v_lshl_add_u32 v{vT+3}, v{vT}, 7, v{vT+3}")
    a.e(f"v_add_u32 v{vT+3}, s31, v{vT+3}")
    for w in range(NWIN):
        a.e(f"v_add_u32 v{vAre+w}, {w*SPW*SLOT}, v{vT+3}")
        a.e(f"v_xor_b32 v{vAim+w}, 64, v{vAre+w}")
    a.e(f"s_mul_i32 s31, s30, {NT*2048}")
    a.e(f"s_add_u32 s31, s31, {ABYTES}")
    a.e(f"v_lshlrev_b32 v{vT+3}, 4, v{vT+2}")
    a.e(f"v_add_u32 v{vT+3}, s31, v{vT+3}")
    for w in range(NWIN):
        a.e(f"v_add_u32 v{vB+w}, {w*SPW*SLOT}, v{vT+3}")
    vY = vT + 4
    a.e(f"s_mul_i32 s31, s29, {48*32768}")
    a.e(f"v_lshlrev_b32 v{vY}, 15, v{vT}")
    a.e(f"v_lshl_add_u32 v{vY}, v{vT+1}, 4, v{vY}")
    a.e(f"v_add_u32 v{vY}, s31, v{vY}")
    a.e(f"s_mul_i32 s31, s27, {NT}")
    a.e(f"s_mul_i32 s29, s30, {NT//2}")
    a.e("s_add_u32 s31, s31, s29")
    a.e("s_lshl_b32 s31, s31, 12")
    a.e(f"s_lshl_b32 s29, s{sBin}, 7")
    a.e("s_add_u32 s33, s31, s29")
    a.e("s_mov_b32 s34, 0x80008000")

    def reads(step):
        st = step & 1
        sl = step % S
        w, siw = sl // SPW, sl % SPW
        ops = []
        seq = []
        seq.append(("G", 0, 0))
        seq += [("U", r, 0) for r in range(3)]
        seq += [("G", t, 0) for t in range(1, NT)]
        seq += [("U", r, 1) for r in range(3)]
        seq += [("G", t, 1) for t in range(NT)]
        for kind, x, ri in seq:
            if kind == "G":
                r_ = G(st, x, ri)
                ops.append(f"ds_read_b128 v[{r_}:{r_+3}], v{vB+w} offset:{siw*SLOT + (x*2+ri)*1024}")
            else:
                r_ = U(st, x, ri)
                va = (vAim if ri else vAre) + w
                ops.append(f"ds_read_b128 v[{r_}:{r_+3}], v{va} offset:{siw*SLOT + x*2048}")
        return ops

    def mfma(d, ga, ub, c):
        cs = "0" if c is None else f"v[{c}:{c+3}]"
        return f"v_mfma_f32_16x16x32_bf16 v[{d}:{d+3}], v[{ga}:{ga+3}], v[{ub}:{ub+3}], {cs}"

    st_.stamp()
    a.e("s_barrier")
    st_.stamp()
    for op in reads(0):
        a.e(op)
    a.e("s_waitcnt lgkmcnt(0)")
    a.e("s_barrier")
    NM = NT * 12
    st_.stamp()
    for s in range(NSTEP):
        if s in (1, 4, 8, 12): st_.stamp()
        st = s & 1
        first = s == 0
        mf = []
        for t in range(NT):
            for r in range(3):
                mf.append(mfma(accr(t, r), G(st, t, 0), U(st, r, 0), None if first else accr(t, r)))
        for t in range(NT):
            for r in range(3):
                mf.append(mfma(acci(t, r), G(st, t, 0), U(st, r, 1), None if first else acci(t, r)))
        for t in range(NT):
            for r in range(3):
                mf.append(mfma(acci(t, r), G(st, t, 1), U(st, r, 0), acci(t, r)))
        for t in range(NT):
            for r in range(3):
                mf.append(mfma(accr(t, r), G(st, t, 1), U(st, r, 1), accr(t, r)))
        fill = [[] for _ in range(NM)]
        rd = reads(s + 1) if s + 1 < NSTEP else []
        rstep = 2 if NT == 4 else 1
        for i, op in enumerate(rd):
            fill[i * rstep].append(op)
        xs = [f"v_xor_b32 v{U(st, r, 1)+k}, s34, v{U(st, r, 1)+k}" for r in range(3) for k in range(4)]
        g3 = 2 * NT * 3
        per = 2
        for i, op in enumerate(xs):
            fill[g3 + i // per].append(op)
        assert g3 + (len(xs) - 1) // per <= 3 * NT * 3 - 1
        barpos = NM - (8 if NT == 4 else 4)
        for i in range(NM):
            if "nomfma" not in exp:
                a.e(mf[i])
            for op in fill[i]:
                a.e(op)
            if i == barpos and s + 1 < NSTEP:
                a.e("s_waitcnt lgkmcnt(0)")
                if s + 1 <= NSTEP - 2:
                    a.e("s_barrier")
    st_.stamp()
    a.e("s_nop 7")
    a.e("s_nop 7")
    tmp = FR0
    k = 0
    for ri in (1, 0):
        acc = acci if ri else accr
        for P in range(NT // 2):
            for r in range(3):
                d = tmp + (k % 8) * 4
                k += 1
                a0, a1 = acc(2 * P, r), acc(2 * P + 1, r)
                a.e(f"v_cvt_pk_bf16_f32 v{d}, v{a0}, v{a0+1}")
                a.e(f"v_cvt_pk_bf16_f32 v{d+1}, v{a0+2}, v{a0+3}")
                a.e(f"v_cvt_pk_bf16_f32 v{d+2}, v{a1}, v{a1+1}")
                a.e(f"v_cvt_pk_bf16_f32 v{d+3}, v{a1+2}, v{a1+3}")
                a.e(f"s_add_u32 s35, s33, {r*16*32768 + P*4096}")
                a.e(f"buffer_store_dwordx4 v[{d}:{d+3}], v{vY}, s[{sY}:{sY+3}], s35 offen offset:{ri*64}")
    if st_.on:
        st_.stamp()
        a.e("s_waitcnt vmcnt(0)")
        st_.stamp()
        st_.dump(int(exp.split("wg=")[1].split(",")[0]) if "wg=" in exp else 0, sW, 0, f"L_{name}_nodump", region=conv*2-1)
    a.e("s_endpgm")

    a.label(f"L_{name}_loader")
    a.e(f"s_sub_u32 s{sW}, s{sW}, 4")
    vA_, vB_ = 1, 2
    a.e("v_and_b32 v3, 63, v0")
    a.e("v_lshrrev_b32 v4, 3, v3")
    a.e("v_and_b32 v5, 7, v3")
    a.e("v_xor_b32 v5, v5, v4")
    a.e("v_lshlrev_b32 v5, 4, v5")
    a.e(f"v_lshl_add_u32 v{vA_}, v4, 11, v5")
    a.e(f"v_lshlrev_b32 v{vB_}, 4, v3")
    for qi in range(3):
        a.e(f"s_add_u32 s24, s{sW}, {4*qi}")
        a.e(f"s_lshl_b32 s{40+qi}, s24, 10")
        a.e(f"s_lshl_b32 s{43+qi}, s24, 14")
    a.e(f"s_mul_i32 s46, s{sW}, {BPW*1024}")
    a.e(f"s_add_u32 s47, s46, {ABYTES}")

    def issue(step):
        sl = step % S
        for qi in range(3):
            a.e(f"s_add_u32 m0, s{40+qi}, {sl*SLOT}")
            a.e(f"s_add_u32 s24, s{43+qi}, {step*128}")
            a.e(f"buffer_load_dwordx4 v{vA_}, s[{sA}:{sA+3}], s24 offen lds")
            a.vm_issue(step)
        a.e(f"s_add_u32 m0, s47, {sl*SLOT}")
        a.e(f"s_add_u32 s24, s46, {step*32768}")
        for x in range(BPW):
            a.e(f"buffer_load_dwordx4 v{vB_}, s[{sB}:{sB+3}], s24 offen offset:{x*1024} lds")
            a.vm_issue(step)

    a.vm = []
    for s in range(S):
        issue(s)
    a.wait(vm_tags=(0,))
    a.e("s_barrier")
    for s in range(NSTEP - 1):
        a.wait(vm_tags=(s + 1,))
        a.e("s_barrier")
        if s + S < NSTEP:
            issue(s + S)
    a.label(f"L_{name}_done")
    a.e("s_endpgm")
    return a.text(), LDS, NV
```

```python
from asmlib import Asm, Stamps, f2u
from layout import *
from mid import gelu_group2, GK0, GK1

LOG2E2 = 2.8853900817779268
ATHR = 40.0
BTHR = 84.0


def joint_kernel(name, exp=""):
    a = Asm()
    NWG = 250
    sW = 20
    STG = 0
    JB = [0, 16384]
    FB = 65536
    EB = FB + 16384
    BPT = EB + 8192
    RED = BPT + 8192
    LDS = RED + 64
    sY, sT, sO = 8, 12, 16
    a.label(name)
    a.e(f"s_cmp_ge_u32 s2, {NWG}")
    a.e(f"s_cbranch_scc1 L_{name}_done")
    st_ = Stamps(a, "stamp" in exp)
    st_.begin()
    a.e("s_load_dwordx2 s[6:7], s[0:1], 72")
    a.e("s_load_dwordx2 s[4:5], s[0:1], 56")
    a.e(f"v_readfirstlane_b32 s{sW}, v0")
    a.e(f"s_lshr_b32 s{sW}, s{sW}, 6")
    a.e("s_cmp_ge_u32 s2, 125")
    a.e("s_cselect_b32 s24, 1, 0")
    a.e("s_mul_i32 s25, s24, 125")
    a.e("s_sub_u32 s25, s2, s25")
    for jt in range(2):
        a.e(f"s_lshl_b32 s26, s25, 1")
        a.e(f"s_add_u32 s26, s26, {jt}")
        a.e(f"s_mul_i32 s27, s26, 171")
        a.e(f"s_lshr_b32 s{28+jt}, s27, 9")
        a.e(f"s_mul_i32 s27, s{28+jt}, 3")
        a.e(f"s_sub_u32 s{30+jt}, s26, s27")
    lane = 1
    a.e(f"v_and_b32 v{lane}, 63, v0")
    a.e(f"v_lshrrev_b32 v2, 2, v{lane}")
    a.e("v_lshlrev_b32 v2, 6, v2")
    a.e(f"v_lshrrev_b32 v3, 5, v{lane}")
    a.e("v_lshlrev_b32 v3, 1, v3")
    a.e(f"v_and_b32 v4, 3, v{lane}")
    a.e("v_xor_b32 v3, v3, v4")
    a.e("v_lshl_add_u32 v2, v3, 4, v2")
    a.e(f"v_lshlrev_b32 v5, 4, v{lane}")
    a.e("s_waitcnt lgkmcnt(0)")
    a.e(f"s_mul_i32 s33, s24, {NB2*YROW}")
    a.e(f"s_add_u32 s33, s33, {WS_YH2}")
    a.e(f"s_add_u32 s{sY}, s6, s33")
    a.e(f"s_addc_u32 s{sY+1}, s7, 0")
    a.e(f"s_mov_b32 s{sY+2}, {NB2*YROW}")
    a.e(f"s_mov_b32 s{sY+3}, 0x00020000")
    a.add64(sT, 6, WS_TAB)
    a.e(f"s_mov_b32 s{sT+2}, {TAB_WO + 131072}")
    a.e(f"s_mov_b32 s{sT+3}, 0x00020000")
    FI = 8
    for jt in range(2):
        a.e(f"s_lshl_b32 s36, s{30+jt}, 11")
        a.e(f"s_add_u32 s36, s36, {TAB_FI}")
        for kk in range(2):
            r_ = FI + (jt * 2 + kk) * 4
            a.e(f"buffer_load_dwordx4 v[{r_}:{r_+3}], v5, s[{sT}:{sT+3}], s36 offen offset:{kk*1024}")
            a.vm_issue("FI")
    BPV = 24
    a.e("v_lshlrev_b32 v6, 5, v0")
    a.e("s_lshl_b32 s36, s24, 13")
    a.e(f"s_add_u32 s36, s36, {TAB_BP}")
    for h in range(2):
        a.e(f"buffer_load_dwordx4 v[{BPV+4*h}:{BPV+4*h+3}], v6, s[{sT}:{sT+3}], s36 offen offset:{16*h}")
        a.vm_issue("BP")
    a.e(f"s_lshl_b32 s34, s{sW}, 14")
    a.e(f"s_lshl_b32 s35, s{sW}, 13")
    for jt in range(2):
        a.e(f"s_lshl_b32 s36, s{28+jt}, 15")
        a.e("s_add_u32 s36, s36, s35")
        for ci in range(2):
            a.e(f"s_add_u32 m0, s34, {STG + (jt*2+ci)*4096}")
            a.e(f"s_add_u32 s37, s36, {ci*4096}")
            for q in range(4):
                a.e(f"buffer_load_dwordx4 v2, s[{sY}:{sY+3}], s37 offen offset:{q*1024} lds")
                a.vm_issue(("Y", jt, ci))
    WF = 128
    a.e(f"s_lshl_b32 s38, s{sW}, 15")
    for it in range(2):
        for kp in range(16):
            r_ = WF + (it * 16 + kp) * 4
            if kp % 4 == 0:
                a.e(f"s_add_u32 s36, s38, {TAB_WF + (it*16+kp)*1024}")
            a.e(f"buffer_load_dwordx4 v[{r_}:{r_+3}], v5, s[{sT}:{sT+3}], s36 offen offset:{(kp%4)*1024}")
            a.vm_issue(("WF", it, kp))

    def wo_loads(lo, hi):
        for i in range(lo, hi):
            if i % 4 == 0 or i == lo:
                a.e(f"s_add_u32 s36, s38, {TAB_WO + (i - i % 4)*1024}")
            a.e(f"buffer_load_dwordx4 a[{4*i}:{4*i+3}], v5, s[{sT}:{sT+3}], s36 offen offset:{(i%4)*1024}")
            a.vm_issue(("WO", i))

    rr, gg, cc = 32, 33, 34
    a.e(f"v_bfe_u32 v{rr}, v{lane}, 2, 2")
    a.e(f"v_lshrrev_b32 v{gg}, 4, v{lane}")
    a.e(f"v_and_b32 v{cc}, 3, v{lane}")
    vI = [36, 37]
    a.e(f"v_lshl_add_u32 v35, v{gg}, 3, v{rr}")
    a.e("v_lshlrev_b32 v38, 6, v35")
    a.e(f"v_and_b32 v39, 1, v{gg}")
    a.e("v_lshlrev_b32 v39, 1, v39")
    a.e(f"v_lshrrev_b32 v40, 1, v{cc}")
    a.e("v_xor_b32 v39, v39, v40")
    a.e("v_lshl_add_u32 v38, v39, 4, v38")
    a.e(f"v_and_b32 v40, 1, v{cc}")
    a.e("v_lshl_add_u32 v38, v40, 3, v38")
    a.e(f"v_add_u32 v{vI[0]}, s34, v38")
    a.e(f"v_xor_b32 v{vI[1]}, 32, v{vI[0]}")
    vFW = 41
    a.e(f"v_lshrrev_b32 v39, 1, v{gg}")
    a.e("v_lshlrev_b32 v39, 10, v39")
    a.e(f"v_and_b32 v40, 1, v{gg}")
    a.e("v_lshl_add_u32 v39, v40, 9, v39")
    a.e(f"v_and_b32 v40, 15, v{lane}")
    a.e("v_lshl_add_u32 v39, v40, 4, v39")
    a.e(f"s_lshl_b32 s36, s{sW}, 12")
    a.e(f"s_add_u32 s36, s36, {FB}")
    a.e(f"v_add_u32 v{vFW}, s36, v39")
    vK0 = 42
    a.e(f"s_mov_b32 s40, 0x{f2u(GK1):08x}")
    a.e(f"v_mov_b32 v{vK0}, 0x{f2u(GK0):08x}")
    a.e("s_mul_i32 s36, s24, 4000")
    a.e("s_lshl_b32 s37, s25, 5")
    a.e("s_add_u32 s36, s36, s37")
    a.e("s_lshl_b32 s36, s36, 12")
    a.e(f"s_add_u32 s{sO}, s4, s36")
    a.e(f"s_addc_u32 s{sO+1}, s5, 0")
    a.e(f"s_mov_b32 s{sO+2}, 131072")
    a.e(f"s_mov_b32 s{sO+3}, 0x00020000")

    st_.stamp()
    a.wait(vm_tags=("BP",))
    st_.stamp()
    a.e(f"s_mov_b32 s41, 0x{f2u(BTHR):08x}")
    a.e("s_mov_b64 s[42:43], 0")
    a.e(f"v_max3_f32 v44, |v{BPV}|, |v{BPV+1}|, |v{BPV+2}|")
    a.e(f"v_max3_f32 v44, v44, |v{BPV+3}|, |v{BPV+4}|")
    a.e(f"v_max3_f32 v44, v44, |v{BPV+5}|, |v{BPV+6}|")
    a.e(f"v_max_f32 v44, v44, |v{BPV+7}|")
    a.e(f"v_add_f32 v45, v{BPV}, v{BPV+1}")
    for i in range(2, 8):
        a.e(f"v_add_f32 v45, v45, v{BPV+i}")
    a.e("v_cmp_nge_f32 s[42:43], s41, v44")
    a.e("v_cmp_u_f32 vcc, v45, v45")
    a.e("s_nop 1")
    a.e("s_or_b64 s[42:43], s[42:43], vcc")
    a.e("s_cmp_lg_u64 s[42:43], 0")
    a.e("s_cselect_b32 s44, 1, 0")
    a.e("v_mov_b32 v44, s44")
    a.e(f"s_lshl_b32 s45, s{sW}, 2")
    a.e(f"s_add_u32 s45, s45, {RED}")
    a.e("v_mov_b32 v45, s45")
    a.e("ds_write_b32 v45, v44")
    a.e(f"v_add_u32 v46, {BPT}, v6")
    a.e(f"ds_write_b128 v46, v[{BPV}:{BPV+3}]")
    a.e(f"ds_write_b128 v46, v[{BPV+4}:{BPV+7}] offset:16")
    for i in range(8):
        a.e(f"v_exp_f32 v{BPV+i}, v{BPV+i}")
    a.e("s_nop 0")
    a.e(f"v_add_u32 v46, {EB}, v6")
    a.e(f"ds_write_b128 v46, v[{BPV}:{BPV+3}]")
    a.e(f"ds_write_b128 v46, v[{BPV+4}:{BPV+7}] offset:16")

    AA, DD, TT, PK = 48, 64, 72, 80
    first = True
    for jt in range(2):
        for ci in range(2):
            a.wait(vm_tags=(("Y", jt, ci), "FI") if first else (("Y", jt, ci),))
            if first:
                st_.stamp()
                wo_loads(0, 8)
            first = False
            for t in range(2):
                for kk in range(2):
                    r_ = AA + (t * 2 + kk) * 4
                    for xx in range(2):
                        a.e(f"ds_read_b64_tr_b16 v[{r_+2*xx}:{r_+2*xx+1}], v{vI[t]} offset:{(jt*2+ci)*4096 + kk*2048 + xx*256}")
            a.e("s_waitcnt lgkmcnt(0)")
            for kk in range(2):
                for t in range(2):
                    d = DD + t * 4
                    r_ = AA + (t * 2 + kk) * 4
                    f = FI + (jt * 2 + kk) * 4
                    c = "0" if kk == 0 else f"v[{d}:{d+3}]"
                    a.e(f"v_mfma_f32_16x16x32_bf16 v[{d}:{d+3}], v[{r_}:{r_+3}], v[{f}:{f+3}], {c}")
            a.e("s_nop 7")
            xs = [DD + i for i in range(8)]
            gelu_group2(a, xs, TT, vK0, 40)
            for i in range(4):
                a.e(f"v_cvt_pk_bf16_f32 v{PK+i}, v{xs[2*i]}, v{xs[2*i+1]}")
            a.e(f"ds_write_b128 v{vFW}, v[{PK}:{PK+3}] offset:{ci*2048 + jt*256}")
    a.e("s_waitcnt lgkmcnt(0)")
    a.e("s_barrier")
    st_.stamp()
    ACF = 32
    BFR = 64
    a.e(f"v_mov_b32 v96, {RED}")
    a.e("ds_read_b128 v[100:103], v96")
    a.e(f"v_add_u32 v97, {FB}, v5")
    for half in range(2):
        for k8 in range(8):
            kp = half * 8 + k8
            a.e(f"ds_read_b128 v[{BFR+4*k8}:{BFR+4*k8+3}], v97 offset:{kp*1024}")
        a.wait(vm_tags=[("WF", 1, half * 8 + 7)])
        a.e("s_waitcnt lgkmcnt(0)")
        for k8 in range(8):
            kp = half * 8 + k8
            for it in range(2):
                d = ACF + it * 16
                w_ = WF + (it * 16 + kp) * 4
                c = "0" if kp == 0 else f"v[{d}:{d+15}]"
                a.e(f"v_mfma_f32_32x32x16_bf16 v[{d}:{d+15}], v[{w_}:{w_+3}], v[{BFR+4*k8}:{BFR+4*k8+3}], {c}")
        if half == 0:
            wo_loads(8, 20)
    wo_loads(20, 32)
    st_.stamp()
    a.e("v_or_b32 v100, v100, v101")
    a.e("v_or_b32 v102, v102, v103")
    a.e("v_or_b32 v100, v100, v102")
    a.e("s_nop 0")
    a.e("v_readfirstlane_b32 s44, v100")
    a.e("s_nop 7")
    EA = 96
    a.e(f"s_mov_b32 s41, 0x{f2u(LOG2E2):08x}")
    for i in range(16):
        a.e(f"v_cvt_pk_bf16_f32 v{64+i}, v{ACF+2*i}, v{ACF+2*i+1}")
    for i in range(16):
        a.e(f"v_lshlrev_b32 v{EA+2*i}, 16, v{64+i}")
        a.e(f"v_and_b32 v{EA+2*i+1}, 0xffff0000, v{64+i}")
    for i in range(32):
        a.e(f"v_mul_f32 v{EA+i}, s41, v{EA+i}")
    a.e(f"v_max3_f32 v64, |v{EA}|, |v{EA+1}|, |v{EA+2}|")
    for i in range(3, 31, 2):
        a.e(f"v_max3_f32 v64, v64, |v{EA+i}|, |v{EA+i+1}|")
    a.e(f"v_max_f32 v64, v64, |v{EA+31}|")
    a.e(f"v_add_f32 v65, v{EA}, v{EA+1}")
    for i in range(2, 32):
        a.e(f"v_add_f32 v65, v65, v{EA+i}")
    a.e(f"s_mov_b32 s41, 0x{f2u(ATHR):08x}")
    a.e("v_cmp_nge_f32 s[42:43], s41, v64")
    a.e("v_cmp_u_f32 vcc, v65, v65")
    a.e("s_nop 1")
    a.e("s_or_b64 s[42:43], s[42:43], vcc")
    a.e("s_cmp_lg_u64 s[42:43], 0")
    a.e("s_cselect_b32 s45, 1, 0")
    a.e("s_or_b32 s44, s44, s45")
    if "forceslow" in exp:
        a.e("s_mov_b32 s44, 1")
    vJW, vJR, vEB, vOX, vOY = 2, 3, 4, 6, 7
    a.e(f"s_lshl_b32 s36, s{sW}, 12")
    a.e(f"v_add_u32 v{vJW}, s36, v5")
    a.e(f"v_mov_b32 v{vJR}, v5")
    a.e(f"v_lshrrev_b32 v8, 5, v{lane}")
    a.e(f"v_lshlrev_b32 v8, 4, v8")
    a.e(f"s_lshl_b32 s36, s{sW}, 8")
    a.e(f"v_add_u32 v{vEB}, s36, v8")
    a.e(f"v_and_b32 v8, 15, v{lane}")
    a.e(f"v_lshlrev_b32 v{vOX}, 12, v8")
    a.e(f"v_bfe_u32 v8, v{lane}, 4, 1")
    a.e(f"v_lshl_add_u32 v{vOX}, v8, 5, v{vOX}")
    a.e(f"v_lshrrev_b32 v8, 5, v{lane}")
    a.e(f"v_lshl_add_u32 v{vOX}, v8, 4, v{vOX}")
    a.e(f"s_lshl_b32 s36, s{sW}, 7")
    a.e(f"v_add_u32 v{vOX}, s36, v{vOX}")
    a.e(f"v_add_u32 v{vOY}, 65536, v{vOX}")
    a.e("s_cmp_lg_u32 s44, 0")
    a.e(f"s_cbranch_scc1 L_{name}_slow")

    vm_state = list(a.vm)

    def main(slow):
        a.vm = list(vm_state)
        a.lg = []
        ACC = [8, 40]
        JR = 72
        NJR = 6
        EBV = 128
        TT = 160
        JP = 192
        OP = 208
        TB = BPT if slow else EB
        a.e(f"v_add_u32 v{vEB}, {TB}, v{vEB}")
        if not slow:
            for i in range(32):
                a.e(f"v_exp_f32 v{EA+i}, v{EA+i}")

        def eb_reads(u):
            ops = []
            for it in range(2):
                for q in range(4):
                    r_ = EBV + (it * 4 + q) * 4
                    ops.append((f"ds_read_b128 v[{r_}:{r_+3}], v{vEB} offset:{u*1024 + (32*it + 8*q)*4}", ("lg", ("EB", u))))
            return ops

        def tanh_ops(u):
            ops = []
            for grp in range(4):
                idx = [grp * 8 + i for i in range(8)]
                if slow:
                    for i in idx: ops.append((f"v_add_f32 v{TT+i}, v{EA+i}, v{EBV+i}", None))
                    for i in idx: ops.append((f"v_exp_f32 v{TT+i}, v{TT+i}", None))
                    for i in idx: ops.append((f"v_add_f32 v{TT+i}, 1.0, v{TT+i}", None))
                else:
                    for i in idx: ops.append((f"v_fma_f32 v{TT+i}, v{EA+i}, v{EBV+i}, 1.0", None))
                for i in idx: ops.append((f"v_rcp_f32 v{TT+i}, v{TT+i}", None))
                for i in idx: ops.append((f"v_fma_f32 v{TT+i}, v{TT+i}, -2.0, 1.0", None))
                for k in range(4):
                    ops.append((f"v_cvt_pk_bf16_f32 v{JP+grp*4+k}, v{TT+grp*8+2*k}, v{TT+grp*8+2*k+1}", None))
                ops.append((f"ds_write_b128 v{vJW}, v[{JP+grp*4}:{JP+grp*4+3}] offset:{JB[u & 1] + grp*1024}", ("lg", ("JW", u))))
            return ops

        def out_ops(u):
            ops = []
            acc = ACC[u & 1]
            for it in range(2):
                qa, qb = OP + it * 8, OP + it * 8 + 4
                for k in range(8):
                    ops.append((f"v_cvt_pk_bf16_f32 v{qa+k}, v{acc+it*16+2*k}, v{acc+it*16+2*k+1}", None))
                ops.append(("s_nop 1", None))
                for k in range(4):
                    ops.append((f"v_permlane16_swap_b32 v{qa+k}, v{qb+k}", None))
                ops.append((f"buffer_store_dwordx4 v[{qa}:{qa+3}], v{vOX}, s[{sO}:{sO+3}], 0 offen offset:{u*512 + it*64}", ("vm", ("O", u))))
                ops.append((f"buffer_store_dwordx4 v[{qb}:{qb+3}], v{vOY}, s[{sO}:{sO+3}], 0 offen offset:{u*512 + it*64}", ("vm", ("O", u))))
            return ops

        def emit(op):
            s, tag = op
            if tag and tag[0] == "wait_lg":
                a.wait(lg_tags=tag[1])
                return
            a.e(s)
            if tag:
                if tag[0] == "lg": a.lg_issue(tag[1])
                else: a.vm_issue(tag[1])

        for op in eb_reads(0): emit(op)
        a.wait(lg_tags=(("EB", 0),))
        for op in tanh_ops(0): emit(op)
        a.wait(vm_tags=[("WO", i) for i in range(32)])
        st_.stamp() if not slow else None
        for u in range(8):
            acc = ACC[u & 1]
            a.wait(lg_tags=(("JW", u),))
            a.e("s_barrier")
            jb = JB[u & 1]

            def jread(k):
                r_ = JR + (k % NJR) * 4
                a.e(f"ds_read_b128 v[{r_}:{r_+3}], v{vJR} offset:{jb + k*1024}")
                a.lg_issue(("JR", u, k))
            PRE = 4
            for k in range(PRE): jread(k)
            fill = []
            if u < 7:
                fill += eb_reads(u + 1)
            nrd = len(fill)
            if u > 0:
                fill += out_ops(u - 1)
            if u < 7:
                fill.append((None, ("wait_lg", (("EB", u + 1),))))
                fill += tanh_ops(u + 1)
            nslots = 32
            rest = fill[nrd:]
            per = [[] for _ in range(nslots)]
            for i, op in enumerate(fill[:nrd]):
                per[i // 4].append(op)
            start = 2
            n = len(rest)
            for i, op in enumerate(rest):
                per[start + (i * (nslots - start)) // max(n, 1)].append(op)
            for k in range(16):
                a.wait(lg_tags=(("JR", u, k),))
                r_ = JR + (k % NJR) * 4
                for it in range(2):
                    d = acc + it * 16
                    w_ = (it * 16 + k) * 4
                    c = "0" if k == 0 else f"v[{d}:{d+15}]"
                    a.e(f"v_mfma_f32_32x32x16_bf16 v[{d}:{d+15}], a[{w_}:{w_+3}], v[{r_}:{r_+3}], {c}")
                    if it == 0 and k + PRE < 16:
                        jread(k + PRE)
                    for op in per[2 * k + it]: emit(op)
            if u == 0 and not slow: st_.stamp()
        a.e("s_nop 7")
        a.e("s_nop 7")
        if not slow: st_.stamp()
        for op in out_ops(7): emit(op)
        if st_.on and not slow:
            st_.stamp()
            a.e("s_waitcnt vmcnt(0)")
            st_.stamp()
            st_.dump(int(exp.split("wg=")[1].split(",")[0]) if "wg=" in exp else 0, sW, 0, f"L_{name}_nodump")
        a.e("s_endpgm")

    main(False)
    a.label(f"L_{name}_slow")
    main(True)
    a.label(f"L_{name}_done")
    a.e("s_endpgm")
    return a.text(), LDS, 384, NWG
```

```python
NFFT = 64
V = 48
NBINS = 32
NB1 = 167
NB2 = 84
M1 = 2 * NB1
M2 = 2 * NB2
XROW = 2048
XBIN1 = M1 * XROW
XBIN2 = M2 * XROW
GBIN = 524288 + 4352
YROW = 32768


def al(x, a=4096):
    return (x + a - 1) // a * a


WS_XH1 = 0
WS_GH1 = al(WS_XH1 + NBINS * XBIN1 + 65536)
WS_YH1 = al(WS_GH1 + NBINS * GBIN)
WS_XH2 = al(WS_YH1 + M1 * YROW)
WS_GH2 = al(WS_XH2 + NBINS * XBIN2 + 65536)
WS_YH2 = al(WS_GH2 + NBINS * GBIN)
WS_TAB = al(WS_YH2 + M2 * YROW)
TAB_F = 0
TAB_FI = 8192
TAB_BP = 16384
TAB_CS = 14336
TAB_WF = 32768
TAB_WO = TAB_WF + 131072
WS_END = al(WS_TAB + TAB_WO + 131072)


def pi(q):
    g, t, e = q >> 3, (q >> 2) & 1, q & 3
    return 16 * t + 4 * g + e


if __name__ == "__main__":
    for k in ("WS_XH1", "WS_GH1", "WS_YH1", "WS_XH2", "WS_GH2", "WS_YH2", "WS_TAB", "WS_END"):
        print(k, hex(globals()[k]), globals()[k] / 1e6)
```

```python
from asmlib import Asm, Stamps, f2u
from layout import *
from prep import ghat_part

GK0 = -2.302208198144325
GK1 = GK0 * 0.044715


def gelu_group(a, xs, tmp, s0):
    n = len(xs)
    for i, x in enumerate(xs):
        a.e(f"v_mul_f32 v{tmp+i}, v{x}, v{x}")
    for i, x in enumerate(xs):
        a.e(f"v_fma_f32 v{tmp+i}, v{tmp+i}, s{s0}, v{x}") if False else None
    for i, x in enumerate(xs):
        a.e(f"v_mul_f32 v{tmp+i}, s{s0}, v{tmp+i}")
    for i, x in enumerate(xs):
        a.e(f"v_add_f32 v{tmp+i}, s{s0+1}, v{tmp+i}")
    for i, x in enumerate(xs):
        a.e(f"v_mul_f32 v{tmp+i}, v{tmp+i}, v{x}")
    for i, x in enumerate(xs):
        a.e(f"v_exp_f32 v{tmp+i}, v{tmp+i}")
    for i, x in enumerate(xs):
        a.e(f"v_add_f32 v{tmp+i}, 1.0, v{tmp+i}")
    for i, x in enumerate(xs):
        a.e(f"v_rcp_f32 v{tmp+i}, v{tmp+i}")
    for i, x in enumerate(xs):
        a.e(f"v_mul_f32 v{x}, v{x}, v{tmp+i}")


def gelu_group2(a, xs, tmp, vk1, s0):
    for i, x in enumerate(xs):
        a.e(f"v_mul_f32 v{tmp+i}, v{x}, v{x}")
    for i, x in enumerate(xs):
        a.e(f"v_fma_f32 v{tmp+i}, v{tmp+i}, s{s0}, v{vk1}")
    for i, x in enumerate(xs):
        a.e(f"v_mul_f32 v{tmp+i}, v{tmp+i}, v{x}")
    for i, x in enumerate(xs):
        a.e(f"v_exp_f32 v{tmp+i}, v{tmp+i}")
    for i, x in enumerate(xs):
        a.e(f"v_add_f32 v{tmp+i}, 1.0, v{tmp+i}")
    for i, x in enumerate(xs):
        a.e(f"v_rcp_f32 v{tmp+i}, v{tmp+i}")
    for i, x in enumerate(xs):
        a.e(f"v_mul_f32 v{x}, v{x}, v{tmp+i}")


def mid_kernel(name, exp=""):
    a = Asm()
    NMAIN = 2 * 28 * 8
    G2 = "g2inprep" not in exp
    NWG = NMAIN + (256 if G2 else 0)
    sW = 20
    STG = 0
    HT = 32768
    PL = 192 * 64
    LDS = HT + 2 * PL
    sY, sT, sO = 8, 12, 16
    a.label(name)
    a.e(f"s_cmp_ge_u32 s2, {NWG}")
    a.e(f"s_cbranch_scc1 L_{name}_done")
    st_ = Stamps(a, "stamp" in exp)
    st_.begin()
    a.e(f"v_readfirstlane_b32 s{sW}, v0")
    a.e(f"s_lshr_b32 s{sW}, s{sW}, 6")
    if G2:
        a.e(f"s_cmp_ge_u32 s2, {NMAIN}")
        a.e(f"s_cbranch_scc1 L_{name}_g")
    a.e("s_load_dwordx2 s[6:7], s[0:1], 72")
    a.e("s_cmp_ge_u32 s2, 224")
    a.e("s_cselect_b32 s24, 1, 0")
    a.e("s_mul_i32 s25, s24, 224")
    a.e("s_sub_u32 s25, s2, s25")
    a.e("s_lshr_b32 s26, s25, 3")
    a.e("s_and_b32 s27, s25, 7")
    lane = 1
    a.e(f"v_and_b32 v{lane}, 63, v0")
    a.e(f"v_lshrrev_b32 v2, 2, v{lane}")
    a.e("v_lshlrev_b32 v2, 6, v2")
    a.e(f"v_lshrrev_b32 v3, 5, v{lane}")
    a.e("v_lshlrev_b32 v3, 1, v3")
    a.e(f"v_and_b32 v4, 3, v{lane}")
    a.e("v_xor_b32 v3, v3, v4")
    a.e("v_lshl_add_u32 v2, v3, 4, v2")
    a.e("s_mul_i32 s28, s26, 6")
    a.e(f"s_lshl_b32 s29, s{sW}, 1")
    a.e("s_add_u32 s28, s28, s29")
    a.e("s_sub_u32 s28, s28, 1")
    a.e("s_lshl_b32 s30, s27, 12")
    for bb in range(2):
        a.e(f"s_add_u32 s31, s28, {bb}")
        a.e("s_lshl_b32 s32, s31, 15")
        a.e("s_add_u32 s32, s32, s30")
        a.e("s_cmp_lt_i32 s31, 0")
        a.e("s_cselect_b32 s32, 0x7f000000, s32")
        a.e(f"v_add_u32 v{3+bb}, s32, v2")
    a.e("s_waitcnt lgkmcnt(0)")
    a.e(f"s_mul_i32 s33, s24, {NB1*YROW}")
    a.e(f"s_add_u32 s33, s33, {WS_YH1}")
    a.e(f"s_add_u32 s{sY}, s6, s33")
    a.e(f"s_addc_u32 s{sY+1}, s7, 0")
    a.e(f"s_mov_b32 s{sY+2}, {NB1*YROW}")
    a.e(f"s_mov_b32 s{sY+3}, 0x00020000")
    a.add64(sT, 6, WS_TAB)
    a.e(f"s_mov_b32 s{sT+2}, 16384")
    a.e(f"s_mov_b32 s{sT+3}, 0x00020000")
    a.e(f"s_lshl_b32 s34, s{sW}, 13")
    for bb in range(2):
        a.e(f"s_add_u32 m0, s34, {STG + bb*4096}")
        a.e("s_nop 0")
        for q in range(4):
            a.e(f"buffer_load_dwordx4 v{3+bb}, s[{sY}:{sY+3}], 0 offen offset:{q*1024} lds")
            a.vm_issue(("Y", bb))
    FI, FF = 8, 32
    a.e(f"v_lshlrev_b32 v5, 4, v{lane}")
    for jt in range(3):
        for kk in range(2):
            r_ = FI + (jt * 2 + kk) * 4
            a.e(f"s_mov_b32 s35, {TAB_FI + (jt*2+kk)*1024}")
            a.e(f"buffer_load_dwordx4 v[{r_}:{r_+3}], v5, s[{sT}:{sT+3}], s35 offen")
            a.vm_issue("FI")
    a.e(f"s_lshl_b32 s35, s{sW}, 11")
    for kk in range(2):
        a.e(f"buffer_load_dwordx4 v[{FF+4*kk}:{FF+4*kk+3}], v5, s[{sT}:{sT+3}], s35 offen offset:{TAB_F + kk*1024}")
        a.vm_issue("F")
    rr, gg, cc = 40, 41, 42
    a.e(f"v_bfe_u32 v{rr}, v{lane}, 2, 2")
    a.e(f"v_lshrrev_b32 v{gg}, 4, v{lane}")
    a.e(f"v_and_b32 v{cc}, 3, v{lane}")
    vI = [44, 45]
    a.e(f"v_lshl_add_u32 v43, v{gg}, 3, v{rr}")
    a.e(f"v_lshlrev_b32 v46, 6, v43")
    a.e(f"v_and_b32 v47, 1, v{gg}")
    a.e("v_lshlrev_b32 v47, 1, v47")
    a.e(f"v_lshrrev_b32 v48, 1, v{cc}")
    a.e("v_xor_b32 v47, v47, v48")
    a.e("v_lshl_add_u32 v46, v47, 4, v46")
    a.e(f"v_and_b32 v48, 1, v{cc}")
    a.e("v_lshl_add_u32 v46, v48, 3, v46")
    a.e(f"v_add_u32 v{vI[0]}, s34, v46")
    a.e(f"v_xor_b32 v{vI[1]}, 32, v{vI[0]}")
    vF0 = [49, 50]
    a.e(f"v_add_u32 v{vF0[0]}, {HT + PL + 16*64}, v46")
    a.e(f"v_xor_b32 v{vF0[1]}, 32, v{vF0[0]}")
    vF1 = [[51, 52], [53, 54]]
    for xx in range(2):
        a.e(f"v_add_u32 v47, {1 + 4*xx}, v43")
        a.e("v_bfe_u32 v48, v47, 3, 1")
        a.e("v_lshlrev_b32 v48, 1, v48")
        a.e(f"v_lshrrev_b32 v55, 1, v{cc}")
        a.e("v_xor_b32 v48, v48, v55")
        a.e(f"v_lshlrev_b32 v47, 6, v47")
        a.e("v_lshl_add_u32 v47, v48, 4, v47")
        a.e(f"v_and_b32 v48, 1, v{cc}")
        a.e("v_lshl_add_u32 v47, v48, 3, v47")
        a.e(f"v_add_u32 v{vF1[xx][0]}, {HT + 16*64}, v47")
        a.e(f"v_xor_b32 v{vF1[xx][1]}, 32, v{vF1[xx][0]}")
    vH = [56, 57]
    a.e(f"v_and_b32 v47, 1, v{lane}")
    a.e(f"v_mul_u32_u24 v47, {PL}, v47")
    a.e(f"v_bfe_u32 v48, v{lane}, 1, 3")
    a.e("v_lshl_add_u32 v47, v48, 6, v47")
    a.e(f"v_lshl_add_u32 v47, v{gg}, 4, v47")
    a.e(f"s_mul_i32 s35, s{sW}, {48*64}")
    a.e(f"s_add_u32 s35, s35, {HT}")
    a.e(f"v_add_u32 v{vH[0]}, s35, v47")
    a.e(f"v_xor_b32 v{vH[1]}, 32, v{vH[0]}")
    vS = 58
    a.e(f"s_mov_b32 s35, {XBIN2}")
    a.e(f"v_mul_lo_u32 v{vS}, v48, s35")
    a.e(f"v_and_b32 v47, 1, v{lane}")
    a.e(f"v_lshl_add_u32 v{vS}, v47, 6, v{vS}")
    a.e(f"v_lshl_add_u32 v{vS}, v{gg}, 4, v{vS}")
    vK0 = 59
    a.e(f"s_mov_b32 s36, 0x{f2u(GK1):08x}")
    a.e(f"v_mov_b32 v{vK0}, 0x{f2u(GK0):08x}")
    a.add64(sO, 6, WS_XH2)
    a.e(f"s_mov_b32 s{sO+2}, {32*XBIN2}")
    a.e(f"s_mov_b32 s{sO+3}, 0x00020000")
    a.e(f"s_mul_i32 s37, s{sW}, {8*XBIN2}")
    a.e(f"s_mul_i32 s38, s24, {NB2}")
    a.e("s_mul_i32 s39, s26, 3")
    a.e("s_add_u32 s38, s38, s39")
    a.e("s_lshl_b32 s38, s38, 11")
    a.e("s_add_u32 s37, s37, s38")
    a.e("s_lshl_b32 s38, s27, 7")
    a.e("s_add_u32 s37, s37, s38")
    AA, DD, TT, PK = 60, 76, 100, 108
    st_.stamp()
    for bb in range(2):
        a.wait(vm_tags=(("Y", bb),) if bb == 1 else (("Y", 0), "FI"))
        if bb == 0:
            st_.stamp()
        for t in range(2):
            for kk in range(2):
                r_ = AA + (t * 2 + kk) * 4
                for xx in range(2):
                    a.e(f"ds_read_b64_tr_b16 v[{r_+2*xx}:{r_+2*xx+1}], v{vI[t]} offset:{bb*4096 + kk*2048 + xx*256}")
        a.e("s_waitcnt lgkmcnt(0)")
        for kk in range(2):
            for jt in range(3):
                for t in range(2):
                    d = DD + (jt * 2 + t) * 4
                    r_ = AA + (t * 2 + kk) * 4
                    f = FI + (jt * 2 + kk) * 4
                    c = "0" if kk == 0 else f"v[{d}:{d+3}]"
                    a.e(f"v_mfma_f32_16x16x32_bf16 v[{d}:{d+3}], v[{r_}:{r_+3}], v[{f}:{f+3}], {c}")
        a.e(f"s_add_u32 s31, s28, {bb}")
        a.e(f"s_cmp_eq_u32 s31, {NB1-1}")
        a.e("s_cselect_b32 s39, 0, -1")
        a.e("s_nop 4")
        for jt in range(3):
            xs = [DD + jt * 8 + i for i in range(8)]
            gelu_group2(a, xs, TT, vK0, 36)
            pk = PK + jt * 4
            for i in range(4):
                a.e(f"v_cvt_pk_bf16_f32 v{pk+i}, v{xs[2*i]}, v{xs[2*i+1]}")
            if jt == 2:
                for i in range(4):
                    a.e(f"v_and_b32 v{pk+i}, s39, v{pk+i}")
            a.e(f"ds_write_b128 v{vH[(bb + jt) & 1]}, v[{pk}:{pk+3}] offset:{(24*bb + 8*jt)*64}")
    st_.stamp()
    a.wait(vm_tags=("F",))
    a.e("s_waitcnt lgkmcnt(0)")
    a.e("s_barrier")
    st_.stamp()
    units = [(aa, p) for aa in range(3) for p in range(2)]
    A2 = [60, 76]
    D2 = [92, 100]
    PK2 = [108, 112]

    def fwd_reads(u):
        aa, p = units[u]
        base = A2[u & 1]
        for t in range(2):
            for kk in range(2):
                r_ = base + (t * 2 + kk) * 4
                for xx in range(2):
                    if p == 0:
                        va, off = vF0[t], (48 * aa + 32 * kk + 4 * xx) * 64
                    else:
                        va, off = vF1[xx][t], (48 * aa + 32 * kk) * 64
                    a.e(f"ds_read_b64_tr_b16 v[{r_+2*xx}:{r_+2*xx+1}], v{va} offset:{off}")
                    a.lg_issue(("A2", u))

    a.lg = []
    fwd_reads(0)
    for u, (aa, p) in enumerate(units):
        a.wait(lg_tags=(("A2", u),))
        if u + 1 < len(units):
            pass
        base = A2[u & 1]
        dd = D2[u & 1]
        for kk in range(2):
            for t in range(2):
                d = dd + t * 4
                r_ = base + (t * 2 + kk) * 4
                c = "0" if kk == 0 else f"v[{d}:{d+3}]"
                a.e(f"v_mfma_f32_16x16x32_bf16 v[{d}:{d+3}], v[{r_}:{r_+3}], v[{FF+4*kk}:{FF+4*kk+3}], {c}")
        if u + 1 < len(units):
            fwd_reads(u + 1)
        else:
            a.e("s_nop 7")
        pk = PK2[u & 1]
        a.e(f"v_cvt_pk_bf16_f32 v{pk}, v{dd}, v{dd+1}")
        a.e(f"v_cvt_pk_bf16_f32 v{pk+1}, v{dd+2}, v{dd+3}")
        a.e(f"v_cvt_pk_bf16_f32 v{pk+2}, v{dd+4}, v{dd+5}")
        a.e(f"v_cvt_pk_bf16_f32 v{pk+3}, v{dd+6}, v{dd+7}")
        a.e(f"s_add_u32 s38, s37, {aa*2048 + p*8*128}")
        a.e(f"buffer_store_dwordx4 v[{pk}:{pk+3}], v{vS}, s[{sO}:{sO+3}], s38 offen")
    if st_.on:
        st_.stamp()
        a.e("s_waitcnt vmcnt(0)")
        st_.stamp()
        st_.dump(int(exp.split("wg=")[1].split(",")[0]) if "wg=" in exp else 0, sW, 0, f"L_{name}_nodump", region=2)
    a.e("s_endpgm")
    if G2:
        a.label(f"L_{name}_g")
        a.e(f"s_sub_u32 s3, s2, {NMAIN}")
        ghat_part(a, name, 2, sW, "s3")
    a.label(f"L_{name}_done")
    a.e("s_endpgm")
    return a.text(), LDS, 128, NWG
```

```python
from asmlib import Asm, Stamps, f2u
from layout import *

LOG2E2 = 2.8853900817779268


def cos_vals(a, dst, rev0, step, n, tmp):
    for x in range(n):
        if x == 0:
            a.e(f"v_fract_f32 v{dst}, v{rev0}")
        else:
            a.e(f"v_add_f32 v{rev0}, v{rev0}, v{step}")
            a.e(f"v_fract_f32 v{dst+x}, v{rev0}")
    for x in range(n):
        a.e(f"v_cos_f32 v{dst+x}, v{dst+x}")
    a.e("s_nop 0")


def fwd_table_frag(a, jt_sgpr_or_int, kk, out, t):
    j, g, fo, rev = t + 1, t + 2, t + 3, t + 4
    vals = t + 5
    a.e(f"v_and_b32 v{j}, 15, v{t}")
    a.e(f"v_lshrrev_b32 v{g}, 4, v{t}")
    a.e(f"v_or_b32 v{fo}, 1, v{j}")
    if isinstance(jt_sgpr_or_int, int):
        a.e(f"v_add_u32 v{fo}, {16*jt_sgpr_or_int}, v{fo}")
    else:
        a.e(f"v_add_u32 v{fo}, {jt_sgpr_or_int}, v{fo}")
    a.e(f"v_cvt_f32_u32 v{fo}, v{fo}")
    a.e(f"v_mul_f32 v{fo}, 0x3c000000, v{fo}")
    a.e(f"v_lshlrev_b32 v{g}, 3, v{g}")
    a.e(f"v_add_u32 v{g}, {32*kk}, v{g}")
    a.e(f"v_cvt_f32_u32 v{g}, v{g}")
    a.e(f"v_and_b32 v{j}, 1, v{j}")
    a.e(f"v_cvt_f32_u32 v{j}, v{j}")
    a.e(f"v_mul_f32 v{j}, 0x3e800000, v{j}")
    a.e(f"v_fma_f32 v{rev}, v{fo}, v{g}, v{j}")
    cos_vals(a, vals, rev, fo, 8, None)
    for x in range(4):
        a.e(f"v_cvt_pk_bf16_f32 v{out+x}, v{vals+2*x}, v{vals+2*x+1}")


def ghat_part(a, name, conv, sW, wg_sgpr, lds_base=0):
    WS_G = WS_GH1 if conv == 1 else WS_GH2
    sWt, sG = 8, 12
    a.e(f"s_load_dwordx2 s[4:5], s[0:1], {8 if conv == 1 else 16}")
    a.e("s_load_dwordx2 s[6:7], s[0:1], 72")
    a.e(f"s_lshr_b32 s24, {wg_sgpr}, 4")
    a.e(f"s_bfe_u32 s25, {wg_sgpr}, 0x20002")
    a.e(f"s_and_b32 s26, {wg_sgpr}, 3")
    a.e("s_lshr_b32 s27, s24, 3")
    a.e("s_and_b32 s28, s24, 7")
    lane = 1
    a.e(f"v_and_b32 v{lane}, 63, v0")
    a.e(f"v_lshrrev_b32 v2, 3, v{lane}")
    if conv == 1:
        a.e("v_lshrrev_b32 v3, 2, v2")
        a.e("v_lshlrev_b32 v3, 4, v3")
        a.e("v_and_b32 v4, 3, v2")
        a.e("v_add_u32 v3, v3, v4")
        a.e("s_lshl_b32 s29, s25, 2")
    else:
        a.e("v_mov_b32 v3, v2")
        a.e("s_lshl_b32 s29, s25, 3")
    a.e("s_lshl_b32 s30, s28, 5")
    a.e("s_add_u32 s29, s29, s30")
    a.e("v_add_u32 v3, s29, v3")
    a.e("v_lshlrev_b32 v3, 9, v3")
    a.e(f"v_and_b32 v4, 7, v{lane}")
    a.e(f"s_lshr_b32 s30, s{sW}, 1")
    a.e("s_lshl_b32 s30, s30, 2")
    a.e("v_xor_b32 v4, s30, v4")
    a.e("v_lshl_add_u32 v3, v4, 4, v3")
    a.e("s_lshl_b32 s30, s26, 7")
    a.e("v_add_u32 v3, s30, v3")
    a.e("v_xor_b32 v4, 32, v3")
    a.e("s_waitcnt lgkmcnt(0)")
    a.srd(sWt, "s4", "s5", 31 * 131072)
    a.add64(sG, 6, WS_G)
    a.e(f"s_mov_b32 s{sG+2}, {32*GBIN}")
    a.e(f"s_mov_b32 s{sG+3}, 0x00020000")
    a.e(f"s_lshl_b32 s30, s{sW}, 3")
    a.e("s_add_u32 s30, s30, s27")
    a.e("s_lshl_b32 s30, s30, 17")
    a.e(f"s_mul_i32 s31, s{sW}, {4*1152}")
    for jj in range(4):
        a.e(f"s_add_u32 m0, s31, {lds_base + jj*1152}")
        a.e(f"s_add_u32 s32, s30, {jj*2*131072}")
        a.e(f"buffer_load_dwordx4 v{3 if jj < 2 else 4}, s[{sWt}:{sWt+3}], s32 offen lds")
    t = 8
    a.e(f"v_and_b32 v{t}, 15, v{lane}")
    a.e(f"v_or_b32 v{t+1}, 1, v{t}")
    a.e(f"s_lshl_b32 s33, s{sW}, 4")
    a.e(f"v_add_u32 v{t+1}, s33, v{t+1}")
    a.e(f"v_cvt_f32_u32 v{t+1}, v{t+1}")
    a.e(f"v_mul_f32 v{t+1}, 0x3c000000, v{t+1}")
    a.e(f"v_bfe_u32 v{t+2}, v{lane}, 4, 1")
    a.e(f"v_lshlrev_b32 v{t+2}, 3, v{t+2}")
    a.e(f"v_cvt_f32_u32 v{t+2}, v{t+2}")
    a.e(f"v_and_b32 v{t}, 1, v{t}")
    a.e(f"v_cvt_f32_u32 v{t}, v{t}")
    a.e(f"v_mul_f32 v{t}, 0x3f400000, v{t}")
    a.e(f"v_fma_f32 v{t+3}, v{t+1}, v{t+2}, v{t}")
    vals = t + 4
    cos_vals(a, vals, t + 3, t + 1, 8, None)
    for x in range(8):
        a.e(f"v_mul_f32 v{vals+x}, 0x3d000000, v{vals+x}")
    hi, lo = 20, 24
    for x in range(4):
        a.e(f"v_cvt_pk_bf16_f32 v{hi+x}, v{vals+2*x}, v{vals+2*x+1}")
    for x in range(4):
        a.e(f"v_lshlrev_b32 v28, 16, v{hi+x}")
        a.e(f"v_and_b32 v29, 0xffff0000, v{hi+x}")
        a.e(f"v_sub_f32 v28, v{vals+2*x}, v28")
        a.e(f"v_sub_f32 v29, v{vals+2*x+1}, v29")
        a.e(f"v_cvt_pk_bf16_f32 v{lo+x}, v28, v29")
    a.e(f"v_cmp_gt_u32 vcc, 32, v{lane}")
    a.e("s_nop 1")
    for x in range(4):
        a.e(f"v_cndmask_b32 v{hi+x}, v{lo+x}, v{hi+x}, vcc")
    TB = lds_base + 16 * 1152
    a.e(f"v_lshlrev_b32 v28, 4, v{lane}")
    a.e(f"s_lshl_b32 s33, s{sW}, 10")
    a.e(f"v_add_u32 v29, s33, v28")
    a.e(f"ds_write_b128 v29, v[{hi}:{hi+3}] offset:{TB}")
    a.e(f"v_bfe_u32 v30, v{lane}, 2, 2")
    a.e(f"v_bfe_u32 v31, v{lane}, 4, 1")
    a.e("v_lshl_add_u32 v32, v31, 3, v30")
    a.e("v_mul_u32_u24 v32, 1152, v32")
    a.e("v_lshrrev_b32 v30, 1, v30")
    a.e("v_lshl_add_u32 v30, v31, 1, v30")
    a.e("v_lshlrev_b32 v30, 1, v30")
    a.e(f"v_bfe_u32 v31, v{lane}, 1, 1")
    a.e(f"s_lshl_b32 s33, s{sW}, 1")
    a.e("v_add_u32 v31, s33, v31")
    a.e("v_xor_b32 v30, v30, v31")
    a.e("v_lshl_add_u32 v32, v30, 4, v32")
    a.e(f"v_and_b32 v30, 1, v{lane}")
    a.e("v_lshl_add_u32 v32, v30, 3, v32")
    a.e(f"v_lshrrev_b32 v30, 4, v{lane}")
    a.e(f"s_mov_b32 s33, {2*GBIN}")
    a.e("v_mul_lo_u32 v30, v30, s33")
    a.e(f"v_and_b32 v31, 15, v{lane}")
    a.e("v_lshl_add_u32 v33, v31, 4, v30")
    a.e("s_lshl_b32 s34, s24, 15")
    a.e("s_lshl_b32 s35, s26, 2")
    a.e(f"s_add_u32 s35, s35, s{sW}")
    a.e("s_lshl_b32 s35, s35, 11")
    a.e("s_add_u32 s34, s34, s35")
    a.e("s_lshl_b32 s35, s25, 8")
    a.e("s_add_u32 s34, s34, s35")
    a.e("s_waitcnt vmcnt(0) lgkmcnt(0)")
    a.e("s_barrier")
    AF, BF, DD, PK = 36, 52, 84, 116
    for it in range(4):
        a.e(f"ds_read_b128 v[{AF+4*it}:{AF+4*it+3}], v28 offset:{TB + it*1024}")
    for c in range(8):
        for xx in range(2):
            a.e(f"ds_read_b64_tr_b16 v[{BF+4*c+2*xx}:{BF+4*c+2*xx+1}], v32 offset:{lds_base + c*128 + xx*4*1152}")
        if c == 4:
            a.e("s_waitcnt lgkmcnt(8)")
    a.e("s_waitcnt lgkmcnt(0)")
    for it in range(4):
        for c in range(8):
            d = DD + 4 * c
            a.e(f"v_mfma_f32_16x16x32_bf16 v[{d}:{d+3}], v[{AF+4*it}:{AF+4*it+3}], v[{BF+4*c}:{BF+4*c+3}], 0")
        a.e("s_nop 7")
        for e in range(4):
            pk = PK + 4 * (e & 1)
            for x in range(4):
                a.e(f"v_cvt_pk_bf16_f32 v{pk+x}, v{DD+8*x+e}, v{DD+8*x+4+e}")
            a.e(f"s_add_u32 s35, s34, {(8*it + (e >> 1))*GBIN + (e & 1)*1024}")
            a.e(f"buffer_store_dwordx4 v[{pk}:{pk+3}], v33, s[{sG}:{sG+3}], s35 offen")
            a.e("s_nop 1")
    a.e("s_endpgm")
    return lds_base + 16 * 1152 + 4096


def prep_kernel(name, exp=""):
    a = Asm()
    NX = 2 * M1
    NG = 256
    G2 = "g2inprep" in exp
    NG2 = 256 if G2 else 0
    NS = 13
    O_S, O_X = 0, NS
    O_G = O_X + NX
    O_G2 = O_G + NG
    NWG = O_G2 + NG2
    sW = 20
    a.label(name)
    a.e(f"s_cmp_ge_u32 s2, {NWG}")
    a.e(f"s_cbranch_scc1 L_{name}_done")
    a.e(f"v_readfirstlane_b32 s{sW}, v0")
    a.e(f"s_lshr_b32 s{sW}, s{sW}, 6")
    a.e(f"s_cmp_lt_u32 s2, {O_X}")
    a.e(f"s_cbranch_scc1 L_{name}_slab")
    a.e(f"s_cmp_ge_u32 s2, {O_G}")
    a.e(f"s_cbranch_scc1 L_{name}_g")

    sX, sO = 8, 12
    a.e("s_load_dwordx2 s[4:5], s[0:1], 0")
    a.e("s_load_dwordx2 s[6:7], s[0:1], 72")
    a.e(f"s_sub_u32 s24, s2, {O_X}")
    a.e(f"s_cmp_ge_u32 s24, {M1}")
    a.e("s_cselect_b32 s25, 1, 0")
    a.e(f"s_mul_i32 s26, s25, {M1}")
    a.e("s_sub_u32 s24, s24, s26")
    a.e("s_lshr_b32 s26, s24, 1")
    a.e("s_and_b32 s27, s24, 1")
    lane = 1
    a.e(f"v_and_b32 v{lane}, 63, v0")
    a.e(f"v_lshrrev_b32 v2, 3, v{lane}")
    a.e("s_mul_i32 s28, s26, 96")
    a.e("s_add_u32 s28, s28, s27")
    a.e("s_sub_u32 s28, s28, 15")
    a.e("v_lshlrev_b32 v3, 1, v2")
    a.e("v_add_u32 v3, s28, v3")
    a.e("v_lshlrev_b32 v3, 9, v3")
    a.e(f"s_lshl_b32 s29, s{sW}, 7")
    a.e("v_add_u32 v3, s29, v3")
    a.e("v_bfe_u32 v4, v2, 1, 1")
    a.e("v_lshlrev_b32 v4, 1, v4")
    a.e(f"v_and_b32 v5, 7, v{lane}")
    a.e("v_xor_b32 v4, v4, v5")
    a.e("v_lshl_add_u32 v3, v4, 4, v3")
    a.e("v_xor_b32 v4, 64, v3")
    a.e("s_waitcnt lgkmcnt(0)")
    a.e(f"s_mul_i32 s30, s25, {16000*512}")
    a.e(f"s_add_u32 s{sX}, s4, s30")
    a.e(f"s_addc_u32 s{sX+1}, s5, 0")
    a.e(f"s_mov_b32 s{sX+2}, {16000*512}")
    a.e(f"s_mov_b32 s{sX+3}, 0x00020000")
    a.e(f"s_lshl_b32 s31, s{sW}, 13")
    for q in range(8):
        a.e(f"s_add_u32 m0, s31, {q*1024}")
        a.e(f"v_add_u32 v5, {q*8192}, v{4 if q & 1 else 3}")
        a.e(f"buffer_load_dwordx4 v5, s[{sX}:{sX+3}], 0 offen lds")
    a.add64(sO, 6, WS_XH1)
    a.e(f"s_mov_b32 s{sO+2}, {32*XBIN1}")
    a.e(f"s_mov_b32 s{sO+3}, 0x00020000")
    TB = 32768
    a.e(f"v_mov_b32 v8, v{lane}")
    a.e(f"s_lshl_b32 s32, s{sW}, 4")
    a.e(f"v_lshlrev_b32 v6, 4, v{lane}")
    a.e(f"s_lshl_b32 s33, s{sW}, 11")
    a.e("v_add_u32 v7, s33, v6")
    for kk in range(2):
        fwd_table_frag(a, "s32", kk, 24 + 4 * kk, 8)
        a.e(f"ds_write_b128 v7, v[{24+4*kk}:{24+4*kk+3}] offset:{TB + kk*1024}")
    a.e(f"v_bfe_u32 v8, v{lane}, 2, 2")
    a.e(f"v_lshrrev_b32 v9, 4, v{lane}")
    a.e("v_lshl_add_u32 v10, v9, 3, v8")
    a.e("v_lshlrev_b32 v10, 7, v10")
    a.e("v_lshrrev_b32 v8, 1, v8")
    a.e("v_and_b32 v11, 1, v9")
    a.e("v_lshl_add_u32 v8, v11, 1, v8")
    a.e("v_lshlrev_b32 v8, 1, v8")
    a.e(f"v_bfe_u32 v11, v{lane}, 1, 1")
    a.e("v_xor_b32 v8, v8, v11")
    a.e("v_lshl_add_u32 v10, v8, 4, v10")
    a.e(f"v_and_b32 v11, 1, v{lane}")
    a.e("v_lshl_add_u32 v10, v11, 3, v10")
    a.e("v_add_u32 v10, s31, v10")
    vTR = [12, 13, 14, 15]
    for h in range(2):
        for t in range(2):
            a.e(f"v_xor_b32 v{vTR[h*2+t]}, {h*64 + t*32}, v10")
    a.e(f"v_bfe_u32 v8, v{lane}, 1, 3")
    a.e(f"s_mov_b32 s33, {XBIN1}")
    a.e("v_mul_lo_u32 v8, v8, s33")
    a.e(f"v_and_b32 v11, 1, v{lane}")
    a.e("v_lshl_add_u32 v8, v11, 6, v8")
    a.e("v_lshl_add_u32 v16, v9, 4, v8")
    a.e(f"s_mul_i32 s34, s25, {NB1}")
    a.e("s_add_u32 s34, s34, s26")
    a.e("s_lshl_b32 s34, s34, 11")
    a.e("s_lshl_b32 s35, s27, 3")
    a.e(f"s_lshl_b32 s36, s{sW}, 1")
    a.e("s_add_u32 s35, s35, s36")
    a.e("s_lshl_b32 s35, s35, 7")
    a.e("s_add_u32 s34, s34, s35")
    a.e("s_waitcnt lgkmcnt(0)")
    a.e("s_barrier")
    FF, AA, DD, PK = 24, 56, 72, 104
    for jt in range(4):
        for kk in range(2):
            f = FF + (jt * 2 + kk) * 4
            a.e(f"ds_read_b128 v[{f}:{f+3}], v6 offset:{TB + (jt*2+kk)*1024}")
    a.e("s_waitcnt vmcnt(0)")
    for h in range(2):
        for t in range(2):
            for kk in range(2):
                r_ = AA + (t * 2 + kk) * 4
                for xx in range(2):
                    a.e(f"ds_read_b64_tr_b16 v[{r_+2*xx}:{r_+2*xx+1}], v{vTR[h*2+t]} offset:{kk*4096 + xx*512}")
        a.e("s_waitcnt lgkmcnt(0)")
        for kk in range(2):
            for t in range(2):
                for jt in range(4):
                    d = DD + (t * 4 + jt) * 4
                    r_ = AA + (t * 2 + kk) * 4
                    f = FF + (jt * 2 + kk) * 4
                    c = "0" if kk == 0 else f"v[{d}:{d+3}]"
                    a.e(f"v_mfma_f32_16x16x32_bf16 v[{d}:{d+3}], v[{r_}:{r_+3}], v[{f}:{f+3}], {c}")
        a.e("s_nop 7")
        for jt in range(4):
            pk = PK + 4 * (jt & 1)
            d0, d1 = DD + jt * 4, DD + (4 + jt) * 4
            a.e(f"v_cvt_pk_bf16_f32 v{pk}, v{d0}, v{d0+1}")
            a.e(f"v_cvt_pk_bf16_f32 v{pk+1}, v{d0+2}, v{d0+3}")
            a.e(f"v_cvt_pk_bf16_f32 v{pk+2}, v{d1}, v{d1+1}")
            a.e(f"v_cvt_pk_bf16_f32 v{pk+3}, v{d1+2}, v{d1+3}")
            a.e(f"s_add_u32 s35, s34, {jt*8*XBIN1 + h*128}")
            a.e(f"buffer_store_dwordx4 v[{pk}:{pk+3}], v16, s[{sO}:{sO+3}], s35 offen")
            a.e("s_nop 1")
    a.e("s_endpgm")

    a.label(f"L_{name}_g")
    if G2:
        a.e(f"s_cmp_ge_u32 s2, {O_G2}")
        a.e(f"s_cbranch_scc1 L_{name}_g2")
    a.e(f"s_sub_u32 s3, s2, {O_G}")
    ghat_part(a, name, 1, sW, "s3")
    if G2:
        a.label(f"L_{name}_g2")
        a.e(f"s_sub_u32 s3, s2, {O_G2}")
        ghat_part(a, name, 2, sW, "s3")

    a.label(f"L_{name}_slab")
    sM, sT = 8, 12
    a.e("s_load_dwordx2 s[6:7], s[0:1], 72")
    a.e("s_cmp_eq_u32 s2, 12")
    a.e(f"s_cbranch_scc1 L_{name}_tab")
    a.e("s_lshr_b32 s24, s2, 2")
    a.e("s_and_b32 s26, s2, 3")
    a.e("s_mov_b32 s25, 40")
    a.e("s_cmp_eq_u32 s24, 1")
    a.e("s_cselect_b32 s25, 32, s25")
    a.e("s_cmp_eq_u32 s24, 2")
    a.e("s_cselect_b32 s25, 48, s25")
    a.e("s_load_dwordx2 s[4:5], s[0:1], s25")
    a.e("s_load_dwordx2 s[28:29], s[0:1], 24")
    lane = 1
    a.e(f"v_and_b32 v{lane}, 63, v0")
    a.e(f"v_lshrrev_b32 v2, 3, v{lane}")
    a.e(f"s_lshl_b32 s27, s{sW}, 6")
    a.e("v_add_u32 v2, s27, v2")
    a.e("v_lshlrev_b32 v2, 9, v2")
    a.e(f"v_and_b32 v3, 7, v{lane}")
    a.e("v_lshl_add_u32 v2, v3, 4, v2")
    a.e("s_lshl_b32 s27, s26, 7")
    a.e("v_add_u32 v2, s27, v2")
    a.e("s_waitcnt lgkmcnt(0)")
    a.srd(sM, "s4", "s5", 131072)
    a.add64(sT, 6, WS_TAB)
    a.e(f"s_mov_b32 s{sT+2}, {TAB_WO + 131072}")
    a.e(f"s_mov_b32 s{sT+3}, 0x00020000")
    a.e(f"s_lshl_b32 s31, s{sW}, 13")
    for q in range(8):
        a.e(f"s_add_u32 m0, s31, {q*1024}")
        a.e(f"s_mov_b32 s32, {q*4096}")
        a.e(f"buffer_load_dwordx4 v2, s[{sM}:{sM+3}], s32 offen lds")
    a.e("s_cmp_eq_u32 s24, 0")
    a.e(f"s_cbranch_scc1 L_{name}_ge")
    a.e(f"v_bfe_u32 v4, v{lane}, 2, 2")
    a.e(f"v_lshrrev_b32 v5, 5, v{lane}")
    a.e(f"v_bfe_u32 v6, v{lane}, 4, 1")
    a.e(f"v_and_b32 v7, 3, v{lane}")
    a.e("s_cmp_eq_u32 s24, 1")
    a.e(f"s_cbranch_scc0 L_{name}_wo")
    a.e("v_lshl_add_u32 v8, v5, 4, v4")
    a.e("v_lshlrev_b32 v8, 7, v8")
    a.e("v_lshl_add_u32 v8, v6, 5, v8")
    a.e("v_lshl_add_u32 v8, v7, 3, v8")
    a.e(f"s_lshl_b32 s33, s{sW}, 13")
    a.e("v_add_u32 v8, s33, v8")
    a.e(f"s_mov_b32 s34, {TAB_WF}")
    offs = lambda kq, xx, it: (32 * (kq >> 1) + 8 * xx + 4 * (kq & 1)) * 128 + it * 64

    def emit_frags(offs_fn):
        a.e("s_lshl_b32 s35, s26, 15")
        a.e("s_add_u32 s34, s34, s35")
        a.e(f"s_lshl_b32 s35, s{sW}, 12")
        a.e("s_add_u32 s34, s34, s35")
        a.e(f"v_lshlrev_b32 v9, 4, v{lane}")
        a.e("s_waitcnt vmcnt(0)")
        a.e("s_barrier")
        for it in range(2):
            for kq in range(4):
                r_ = 16 + (it * 4 + kq) * 4
                for xx in range(2):
                    a.e(f"ds_read_b64_tr_b16 v[{r_+2*xx}:{r_+2*xx+1}], v8 offset:{offs_fn(kq, xx, it)}")
            a.e("s_waitcnt lgkmcnt(0)")
            for kq in range(4):
                r_ = 16 + (it * 4 + kq) * 4
                a.e(f"s_add_u32 s35, s34, {it*16384 + kq*1024}")
                a.e(f"buffer_store_dwordx4 v[{r_}:{r_+3}], v9, s[{sT}:{sT+3}], s35 offen")
        a.e("s_endpgm")

    emit_frags(offs)
    a.label(f"L_{name}_wo")
    a.e("v_lshl_add_u32 v8, v5, 2, v4")
    a.e("v_lshlrev_b32 v8, 7, v8")
    a.e("v_lshl_add_u32 v8, v6, 5, v8")
    a.e("v_and_b32 v10, 1, v7")
    a.e("v_lshl_add_u32 v8, v10, 4, v8")
    a.e("v_lshrrev_b32 v10, 1, v7")
    a.e("v_lshl_add_u32 v8, v10, 3, v8")
    a.e(f"s_lshl_b32 s33, s{sW}, 13")
    a.e("v_add_u32 v8, s33, v8")
    a.e(f"s_mov_b32 s34, {TAB_WO}")
    emit_frags(lambda kq, xx, it: (16 * kq + 8 * xx) * 128 + it * 64)

    a.label(f"L_{name}_ge")
    sGg = 36
    a.srd(sGg, "s28", "s29", 8192)
    a.e(f"v_and_b32 v4, 15, v{lane}")
    a.e(f"v_lshrrev_b32 v5, 4, v{lane}")
    a.e("v_lshlrev_b32 v6, 9, v4")
    a.e("v_lshl_add_u32 v6, v5, 4, v6")
    BB = 16
    for ks in range(8):
        a.e(f"buffer_load_dwordx4 v[{BB+4*ks}:{BB+4*ks+3}], v6, s[{sGg}:{sGg+3}], 0 offen offset:{ks*64}")
    a.e(f"v_bfe_u32 v7, v{lane}, 2, 2")
    a.e("v_lshl_add_u32 v7, v5, 3, v7")
    a.e("v_lshlrev_b32 v7, 7, v7")
    a.e(f"v_and_b32 v8, 3, v{lane}")
    a.e("v_lshl_add_u32 v7, v8, 3, v7")
    a.e(f"s_lshl_b32 s33, s{sW}, 5")
    a.e("v_add_u32 v7, s33, v7")
    a.e("s_waitcnt vmcnt(0)")
    a.e("s_barrier")
    AA = 48
    for ks in range(8):
        for xx in range(2):
            a.e(f"ds_read_b64_tr_b16 v[{AA+4*ks+2*xx}:{AA+4*ks+2*xx+1}], v7 offset:{(32*ks + 4*xx)*128}")
        if ks == 3:
            a.e("s_waitcnt lgkmcnt(0)")
    a.e("s_waitcnt lgkmcnt(0)")
    for ks in range(8):
        c = "0" if ks == 0 else "v[80:83]"
        a.e(f"v_mfma_f32_16x16x32_bf16 v[80:83], v[{AA+4*ks}:{AA+4*ks+3}], v[{BB+4*ks}:{BB+4*ks+3}], {c}")
    a.e("s_nop 7")
    a.e("v_cvt_pk_bf16_f32 v84, v80, v81")
    a.e("v_cvt_pk_bf16_f32 v85, v82, v83")
    a.e(f"s_mov_b32 s33, 0x{f2u(LOG2E2):08x}")
    a.e("v_lshlrev_b32 v80, 16, v84")
    a.e("v_and_b32 v81, 0xffff0000, v84")
    a.e("v_lshlrev_b32 v82, 16, v85")
    a.e("v_and_b32 v83, 0xffff0000, v85")
    for x in range(4):
        a.e(f"v_mul_f32 v{80+x}, s33, v{80+x}")
    a.e("v_lshlrev_b32 v6, 10, v4")
    a.e("v_lshl_add_u32 v6, v5, 4, v6")
    a.e("s_lshl_b32 s33, s26, 8")
    a.e(f"s_lshl_b32 s34, s{sW}, 6")
    a.e("s_add_u32 s33, s33, s34")
    a.e(f"s_add_u32 s33, s33, {TAB_BP}")
    a.e(f"buffer_store_dwordx4 v[80:83], v6, s[{sT}:{sT+3}], s33 offen")
    a.e("s_endpgm")

    a.label(f"L_{name}_tab")
    a.e(f"v_and_b32 v8, 63, v0")
    a.e("v_lshlrev_b32 v6, 4, v8")
    a.e("s_waitcnt lgkmcnt(0)")
    a.add64(sT, 6, WS_TAB)
    a.e(f"s_mov_b32 s{sT+2}, {TAB_WO + 131072}")
    a.e(f"s_mov_b32 s{sT+3}, 0x00020000")
    a.e(f"s_lshl_b32 s32, s{sW}, 4")
    a.e(f"s_lshl_b32 s33, s{sW}, 11")
    for kk in range(2):
        fwd_table_frag(a, "s32", kk, 24 + 4 * kk, 8)
        a.e(f"s_add_u32 s34, s33, {TAB_F + kk*1024}")
        a.e(f"buffer_store_dwordx4 v[{24+4*kk}:{24+4*kk+3}], v6, s[{sT}:{sT+3}], s34 offen")
    a.e(f"s_cmp_ge_u32 s{sW}, 3")
    a.e(f"s_cbranch_scc1 L_{name}_done")
    a.e("v_and_b32 v9, 15, v8")
    a.e("v_add_u32 v9, s32, v9")
    a.e("v_cvt_f32_u32 v9, v9")
    a.e("v_mul_f32 v9, 0x3c000000, v9")
    a.e("v_lshrrev_b32 v10, 4, v8")
    a.e("v_lshlrev_b32 v10, 3, v10")
    for kk in range(2):
        for x in range(8):
            a.e(f"v_add_u32 v11, {32*kk + 2*(x >> 1) + 1}, v10")
            a.e("v_cvt_f32_u32 v11, v11")
            if x & 1:
                a.e("v_fma_f32 v11, v11, v9, 0.25") if False else None
                a.e("v_mul_f32 v11, v11, v9")
                a.e("v_add_f32 v11, 0x3e800000, v11")
            else:
                a.e("v_mul_f32 v11, v11, v9")
            a.e(f"v_fract_f32 v{12+x}, v11")
        for x in range(8):
            a.e(f"v_cos_f32 v{12+x}, v{12+x}")
        a.e("s_nop 0")
        for x in range(4):
            a.e(f"v_cvt_pk_bf16_f32 v{24+x}, v{12+2*x}, v{12+2*x+1}")
        a.e(f"s_add_u32 s34, s33, {TAB_FI + kk*1024}")
        a.e(f"buffer_store_dwordx4 v[24:27], v6, s[{sT}:{sT+3}], s34 offen")
        a.e("s_nop 1")
    a.label(f"L_{name}_done")
    a.e("s_endpgm")
    return a.text(), 40960, 128, NWG
```

```python
import os
import sys
sys.path.insert(0, os.path.dirname(os.path.abspath(__file__)))
from asmlib import kd
from gemm import gemm_kernel

HEADER = """; Kernarg layout for this problem (80 bytes, ptrs only, base s[0:1]):
"""


def build(which, exp=""):
    ks = []
    for nm in which:
        if nm == "gemm1":
            code, lds, nv = gemm_kernel("gemm1_kernel", 1, exp)
            ks.append(("gemm1_kernel", 256, 512, code, lds, nv))
        elif nm == "gemm2":
            code, lds, nv = gemm_kernel("gemm2_kernel", 2, exp)
            ks.append(("gemm2_kernel", 256, 512, code, lds, nv))
        elif nm == "prep":
            from prep import prep_kernel
            code, lds, nv, grid = prep_kernel("prep_kernel", exp)
            ks.append(("prep_kernel", grid, 256, code, lds, nv))
        elif nm == "mid":
            from mid import mid_kernel
            code, lds, nv, grid = mid_kernel("mid_kernel", exp)
            ks.append(("mid_kernel", grid, 256, code, lds, nv))
        elif nm == "joint":
            from joint import joint_kernel
            code, lds, nv, grid = joint_kernel("joint_kernel", exp)
            ks.append(("joint_kernel", grid, 256, code, lds, nv))
        else:
            raise ValueError(nm)
    out = HEADER
    for nm, grid, block, code, lds, nv in ks:
        out += f"; @launch kernel={nm} grid=({grid},1,1) block=({block},1,1) lds={lds}\n"
    out += '.amdgcn_target "amdgcn-amd-amdhsa--gfx950"\n.text\n'
    for nm, grid, block, code, lds, nv in ks:
        out += f".globl {nm}\n.p2align 8\n.type {nm},@function\n" + code
    out += '.section .rodata,"a"\n'
    for nm, grid, block, code, lds, nv in ks:
        out += ".p2align 6\n" + kd(nm, vgpr=(nv + 7) // 8 * 8, accum=min(256, (nv + 7) // 8 * 8))
    return out


if __name__ == "__main__":
    path = sys.argv[1]
    which = sys.argv[2].split(",") if len(sys.argv) > 2 else ["prep", "gemm1", "mid", "gemm2", "joint"]
    open(path, "w").write(build(which, os.environ.get("EXP", "")))
```

```python
import struct


def f2u(f):
    return struct.unpack('<I', struct.pack('<f', f))[0]


class Asm:
    def __init__(self):
        self.L = []
        self.vm = []
        self.lg = []

    def e(self, s):
        self.L.append("    " + s)

    def label(self, s):
        self.L.append(s + ":")

    def c(self, s):
        self.L.append("    ; " + s)

    def vm_issue(self, tag):
        self.vm.append(tag)
        assert len(self.vm) <= 63, "vmcnt overflow"

    def lg_issue(self, tag):
        self.lg.append(tag)
        assert len(self.lg) <= 15, ("lgkmcnt overflow", self.lg)

    def _need(self, q, tags):
        idx = -1
        for i, t in enumerate(q):
            if t in tags:
                idx = i
        return idx

    def wait(self, vm_tags=(), lg_tags=(), force=False):
        parts = []
        if vm_tags:
            idx = self._need(self.vm, vm_tags)
            if idx >= 0:
                parts.append(f"vmcnt({len(self.vm) - idx - 1})")
                self.vm = self.vm[idx + 1:]
        if lg_tags:
            idx = self._need(self.lg, lg_tags)
            if idx >= 0:
                parts.append(f"lgkmcnt({len(self.lg) - idx - 1})")
                self.lg = self.lg[idx + 1:]
        if parts:
            self.e("s_waitcnt " + " ".join(parts))

    def wait_all(self, vm=True, lg=True):
        parts = []
        if vm:
            parts.append("vmcnt(0)")
            self.vm = []
        if lg:
            parts.append("lgkmcnt(0)")
            self.lg = []
        self.e("s_waitcnt " + " ".join(parts))

    def text(self):
        return "\n".join(self.L) + "\n"

    def srd(self, s, base_lo, base_hi, nbytes):
        self.e(f"s_mov_b32 s{s}, {base_lo}")
        self.e(f"s_mov_b32 s{s+1}, {base_hi}")
        self.e(f"s_mov_b32 s{s+2}, {nbytes}")
        self.e(f"s_mov_b32 s{s+3}, 0x00020000")

    def add64(self, d, a, off):
        self.e(f"s_add_u32 s{d}, s{a}, {off}")
        self.e(f"s_addc_u32 s{d+1}, s{a+1}, 0")


class Stamps:
    def __init__(self, a, on, s0=60):
        self.a, self.on, self.s0, self.n = a, on, s0, 0

    def begin(self):
        if not self.on: return
        a = self.a
        a.e(f"s_load_dwordx2 s[{self.s0}:{self.s0+1}], s[0:1], 64")
        a.e(f"s_memrealtime s[{self.s0+2}:{self.s0+3}]")
        self.stamp()

    def stamp(self):
        if not self.on: return
        r = self.s0 + 6 + 2 * self.n
        self.a.e(f"s_memtime s[{r}:{r+1}]")
        self.n += 1

    def trace(self, wave_sgpr, wave, label, region):
        a, s0 = self.a, self.s0
        a.e(f"s_cmp_lg_u32 s{wave_sgpr}, {wave}")
        a.e(f"s_cbranch_scc1 {label}")
        a.e("s_load_dwordx2 s[56:57], s[0:1], 72")
        a.e("s_waitcnt lgkmcnt(0)")
        a.e(f"s_add_u32 s56, s56, {0x8000000 + region*65536}")
        a.e("s_addc_u32 s57, s57, 0")
        a.e("s_mov_b32 s58, 65536")
        a.e("s_mov_b32 s59, 0x00020000")
        a.e("s_lshl_b32 s55, s2, 4")
        a.e("v_mov_b32 v2, s55")
        a.e(f"v_mov_b32 v0, s{s0+2}")
        a.e(f"v_mov_b32 v1, s{s0+4}")
        a.e("buffer_store_dwordx2 v[0:1], v2, s[56:59], 0 offen")
        a.label(label)

    def dump(self, wg, wave_sgpr, wave, label, region=None):
        if not self.on: return
        a, s0 = self.a, self.s0
        a.e(f"s_memrealtime s[{s0+4}:{s0+5}]")
        a.e("s_waitcnt lgkmcnt(0)")
        if region is not None:
            self.trace(wave_sgpr, wave, label + "_tr", region)
        a.e(f"s_cmp_lg_u32 s2, {wg}")
        a.e(f"s_cbranch_scc1 {label}")
        a.e(f"s_cmp_lg_u32 s{wave_sgpr}, {wave}")
        a.e(f"s_cbranch_scc1 {label}")
        a.e(f"s_mov_b32 s56, s{s0}")
        a.e(f"s_mov_b32 s57, s{s0+1}")
        a.e("s_mov_b32 s58, 256")
        a.e("s_mov_b32 s59, 0x00020000")
        a.e("v_mov_b32 v2, 0")
        a.e(f"s_sub_u32 s{s0+4}, s{s0+4}, s{s0+2}")
        a.e(f"v_mov_b32 v0, s{s0+4}")
        a.e("buffer_store_dword v0, v2, s[56:59], 0 offen")
        for i in range(1, self.n):
            r = s0 + 6 + 2 * i
            a.e(f"s_sub_u32 s{s0+5}, s{r}, s{s0+6}")
            a.e(f"v_mov_b32 v0, s{s0+5}")
            a.e(f"buffer_store_dword v0, v2, s[56:59], 0 offen offset:{4*i}")
        a.label(label)


def kd(name, vgpr=256, sgpr=102, accum=None):
    accum = accum or ((vgpr + 3) // 4 * 4)
    return f""".amdhsa_kernel {name}
  .amdhsa_next_free_vgpr {vgpr}
  .amdhsa_next_free_sgpr {sgpr}
  .amdhsa_accum_offset {accum}
  .amdhsa_group_segment_fixed_size 0
  .amdhsa_kernarg_size 80
  .amdhsa_user_sgpr_count 2
  .amdhsa_user_sgpr_kernarg_segment_ptr 1
  .amdhsa_system_sgpr_workgroup_id_x 1
.end_amdhsa_kernel
"""
```

```python
from asmlib import Asm, Stamps, f2u
from layout import *
from mid import gelu_group2, GK0, GK1

LOG2E2 = 2.8853900817779268
ATHR = 40.0
BTHR = 84.0


def joint_kernel(name, exp=""):
    a = Asm()
    NWG = 250
    sW = 20
    STG = 0
    JB = [0, 16384, 32768]
    FB = 65536
    EB = FB + 16384
    BPT = EB + 8192
    RED = BPT + 8192
    LDS = RED + 64
    sY, sT, sO = 8, 12, 16
    a.label(name)
    a.e(f"s_cmp_ge_u32 s2, {NWG}")
    a.e(f"s_cbranch_scc1 L_{name}_done")
    st_ = Stamps(a, "stamp" in exp)
    st_.begin()
    a.e("s_load_dwordx2 s[6:7], s[0:1], 72")
    a.e("s_load_dwordx2 s[4:5], s[0:1], 56")
    a.e(f"v_readfirstlane_b32 s{sW}, v0")
    a.e(f"s_lshr_b32 s{sW}, s{sW}, 6")
    a.e("s_cmp_ge_u32 s2, 125")
    a.e("s_cselect_b32 s24, 1, 0")
    a.e("s_mul_i32 s25, s24, 125")
    a.e("s_sub_u32 s25, s2, s25")
    for jt in range(2):
        a.e(f"s_lshl_b32 s26, s25, 1")
        a.e(f"s_add_u32 s26, s26, {jt}")
        a.e(f"s_mul_i32 s27, s26, 171")
        a.e(f"s_lshr_b32 s{28+jt}, s27, 9")
        a.e(f"s_mul_i32 s27, s{28+jt}, 3")
        a.e(f"s_sub_u32 s{30+jt}, s26, s27")
    lane = 1
    a.e(f"v_and_b32 v{lane}, 63, v0")
    a.e(f"v_lshrrev_b32 v2, 2, v{lane}")
    a.e("v_lshlrev_b32 v2, 6, v2")
    a.e(f"v_lshrrev_b32 v3, 5, v{lane}")
    a.e("v_lshlrev_b32 v3, 1, v3")
    a.e(f"v_and_b32 v4, 3, v{lane}")
    a.e("v_xor_b32 v3, v3, v4")
    a.e("v_lshl_add_u32 v2, v3, 4, v2")
    a.e(f"v_lshlrev_b32 v5, 4, v{lane}")
    a.e(f"s_lshl_b32 s34, s{sW}, 14")
    a.e(f"s_lshl_b32 s35, s{sW}, 13")
    a.e("s_waitcnt lgkmcnt(0)")
    a.e(f"s_mul_i32 s33, s24, {NB2*YROW}")
    a.e(f"s_add_u32 s33, s33, {WS_YH2}")
    a.e(f"s_add_u32 s{sY}, s6, s33")
    a.e(f"s_addc_u32 s{sY+1}, s7, 0")
    a.e(f"s_mov_b32 s{sY+2}, {NB2*YROW}")
    a.e(f"s_mov_b32 s{sY+3}, 0x00020000")

    def ydma(jt):
        a.e(f"s_lshl_b32 s36, s{28+jt}, 15")
        a.e("s_add_u32 s36, s36, s35")
        for ci in range(2):
            a.e(f"s_add_u32 m0, s34, {STG + (jt*2+ci)*4096}")
            a.e(f"s_add_u32 s37, s36, {ci*4096}")
            for q in range(4):
                a.e(f"buffer_load_dwordx4 v2, s[{sY}:{sY+3}], s37 offen offset:{q*1024} lds")
                if jt == 0:
                    a.vm_issue(("Y", ci))
    a.e("s_mov_b32 s46, 0")
    a.e("s_cmp_eq_u32 s28, s29")
    a.e(f"s_cbranch_scc1 L_{name}_same")
    ydma(1)
    a.e("s_mov_b32 s46, 8192")
    a.label(f"L_{name}_same")
    ydma(0)
    a.add64(sT, 6, WS_TAB)
    a.e(f"s_mov_b32 s{sT+2}, {TAB_WO + 131072}")
    a.e(f"s_mov_b32 s{sT+3}, 0x00020000")
    FI = 8
    for jt in range(2):
        a.e(f"s_lshl_b32 s36, s{30+jt}, 11")
        a.e(f"s_add_u32 s36, s36, {TAB_FI}")
        for kk in range(2):
            r_ = FI + (jt * 2 + kk) * 4
            a.e(f"buffer_load_dwordx4 v[{r_}:{r_+3}], v5, s[{sT}:{sT+3}], s36 offen offset:{kk*1024}")
            a.vm_issue("FI")
    BPV = 24
    a.e("v_lshlrev_b32 v6, 5, v0")
    a.e("s_lshl_b32 s36, s24, 13")
    a.e(f"s_add_u32 s36, s36, {TAB_BP}")
    for h in range(2):
        a.e(f"buffer_load_dwordx4 v[{BPV+4*h}:{BPV+4*h+3}], v6, s[{sT}:{sT+3}], s36 offen offset:{16*h}")
        a.vm_issue("BP")
    WF = 128
    a.e(f"s_lshl_b32 s38, s{sW}, 15")

    def wf_load(i):
        kp, it = i >> 1, i & 1
        r_ = WF + (it * 16 + kp) * 4
        return [f"s_add_u32 s36, s38, {TAB_WF + (it*16+kp)*1024}",
                (f"buffer_load_dwordx4 v[{r_}:{r_+3}], v5, s[{sT}:{sT+3}], s36 offen", ("WF", i))]

    def wo_load(i):
        kp, it = i >> 1, i & 1
        r_ = (it * 16 + kp) * 4
        return [f"s_add_u32 s36, s38, {TAB_WO + (it*16+kp)*1024}",
                (f"buffer_load_dwordx4 a[{r_}:{r_+3}], v5, s[{sT}:{sT+3}], s36 offen", ("WO", i))]

    def emit_vm(ops):
        for op in ops:
            if isinstance(op, tuple):
                a.e(op[0]); a.vm_issue(op[1])
            else:
                a.e(op)

    for i in range(8):
        emit_vm(wf_load(i))

    rr, gg, cc = 32, 33, 34
    a.e(f"v_bfe_u32 v{rr}, v{lane}, 2, 2")
    a.e(f"v_lshrrev_b32 v{gg}, 4, v{lane}")
    a.e(f"v_and_b32 v{cc}, 3, v{lane}")
    vI = [[36, 37], [38, 39]]
    a.e(f"v_lshl_add_u32 v35, v{gg}, 3, v{rr}")
    a.e("v_lshlrev_b32 v40, 6, v35")
    a.e(f"v_and_b32 v41, 1, v{gg}")
    a.e("v_lshlrev_b32 v41, 1, v41")
    a.e(f"v_lshrrev_b32 v42, 1, v{cc}")
    a.e("v_xor_b32 v41, v41, v42")
    a.e("v_lshl_add_u32 v40, v41, 4, v40")
    a.e(f"v_and_b32 v42, 1, v{cc}")
    a.e("v_lshl_add_u32 v40, v42, 3, v40")
    a.e(f"v_add_u32 v{vI[0][0]}, s34, v40")
    a.e(f"v_xor_b32 v{vI[0][1]}, 32, v{vI[0][0]}")
    a.e(f"v_add_u32 v{vI[1][0]}, s46, v{vI[0][0]}")
    a.e(f"v_add_u32 v{vI[1][1]}, s46, v{vI[0][1]}")
    vFW = 43
    a.e(f"v_lshrrev_b32 v41, 1, v{gg}")
    a.e("v_lshlrev_b32 v41, 10, v41")
    a.e(f"v_and_b32 v42, 1, v{gg}")
    a.e("v_lshl_add_u32 v41, v42, 9, v41")
    a.e(f"v_and_b32 v42, 15, v{lane}")
    a.e("v_lshl_add_u32 v41, v42, 4, v41")
    a.e(f"s_lshl_b32 s36, s{sW}, 12")
    a.e(f"s_add_u32 s36, s36, {FB}")
    a.e(f"v_add_u32 v{vFW}, s36, v41")
    vK0 = 44
    a.e(f"s_mov_b32 s40, 0x{f2u(GK1):08x}")
    a.e(f"v_mov_b32 v{vK0}, 0x{f2u(GK0):08x}")
    a.e("s_mul_i32 s36, s24, 4000")
    a.e("s_lshl_b32 s37, s25, 5")
    a.e("s_add_u32 s36, s36, s37")
    a.e("s_lshl_b32 s36, s36, 12")
    a.e(f"s_add_u32 s{sO}, s4, s36")
    a.e(f"s_addc_u32 s{sO+1}, s5, 0")
    a.e(f"s_mov_b32 s{sO+2}, 131072")
    a.e(f"s_mov_b32 s{sO+3}, 0x00020000")
    ROT = "norot" not in exp
    a.e("s_and_b32 s47, s2, 7" if ROT else "s_mov_b32 s47, 0")
    for i in range(8):
        a.e(f"s_add_u32 s{48+i}, s47, {i}")
        a.e(f"s_and_b32 s{48+i}, s{48+i}, 7")
        a.e(f"s_lshl_b32 s{48+i}, s{48+i}, 9")

    st_.stamp()
    AA, DD, TT, PK = 48, 64, 72, 80
    nwf = 8
    units = [(jt, ci) for ci in range(2) for jt in range(2)]
    for ui, (jt, ci) in enumerate(units):
        if ui == 0:
            a.wait(vm_tags=(("Y", 0),))
            st_.stamp()
        elif ui == 2:
            a.wait(vm_tags=(("Y", 1),))
        for t in range(2):
            for kk in range(2):
                r_ = AA + (t * 2 + kk) * 4
                for xx in range(2):
                    a.e(f"ds_read_b64_tr_b16 v[{r_+2*xx}:{r_+2*xx+1}], v{vI[jt][t]} offset:{ci*4096 + kk*2048 + xx*256}")
        if ui == 0:
            a.wait(vm_tags=("FI",))
        a.e("s_waitcnt lgkmcnt(0)")
        for kk in range(2):
            for t in range(2):
                d = DD + t * 4
                r_ = AA + (t * 2 + kk) * 4
                f = FI + (jt * 2 + kk) * 4
                c = "0" if kk == 0 else f"v[{d}:{d+3}]"
                a.e(f"v_mfma_f32_16x16x32_bf16 v[{d}:{d+3}], v[{r_}:{r_+3}], v[{f}:{f+3}], {c}")
        for i in range(nwf, nwf + 3):
            emit_vm(wf_load(i))
        nwf += 3
        a.e("s_nop 1")
        xs = [DD + i for i in range(8)]
        gelu_group2(a, xs, TT, vK0, 40)
        for i in range(nwf, nwf + 3):
            emit_vm(wf_load(i))
        nwf += 3
        for i in range(4):
            a.e(f"v_cvt_pk_bf16_f32 v{PK+i}, v{xs[2*i]}, v{xs[2*i+1]}")
        a.e(f"ds_write_b128 v{vFW}, v[{PK}:{PK+3}] offset:{ci*2048 + jt*256}")
    assert nwf == 32
    a.wait(vm_tags=("BP",))
    a.e(f"s_mov_b32 s41, 0x{f2u(BTHR):08x}")
    a.e(f"v_max3_f32 v45, |v{BPV}|, |v{BPV+1}|, |v{BPV+2}|")
    a.e(f"v_max3_f32 v45, v45, |v{BPV+3}|, |v{BPV+4}|")
    a.e(f"v_max3_f32 v45, v45, |v{BPV+5}|, |v{BPV+6}|")
    a.e(f"v_max_f32 v45, v45, |v{BPV+7}|")
    a.e(f"v_add_u32 v46, {BPT}, v6")
    a.e(f"ds_write_b128 v46, v[{BPV}:{BPV+3}]")
    a.e(f"ds_write_b128 v46, v[{BPV+4}:{BPV+7}] offset:16")
    a.e("v_cmp_lt_f32 vcc, s41, v45")
    for i in range(8):
        a.e(f"v_exp_f32 v{BPV+i}, v{BPV+i}")
    a.e("s_cmp_lg_u64 vcc, 0")
    a.e("s_cselect_b32 s44, 1, 0")
    a.e("v_mov_b32 v44, s44")
    a.e(f"s_lshl_b32 s45, s{sW}, 2")
    a.e(f"s_add_u32 s45, s45, {RED}")
    a.e("v_mov_b32 v45, s45")
    a.e("ds_write_b32 v45, v44")
    a.e(f"v_add_u32 v46, {EB}, v6")
    a.e(f"ds_write_b128 v46, v[{BPV}:{BPV+3}]")
    a.e(f"ds_write_b128 v46, v[{BPV+4}:{BPV+7}] offset:16")
    nwo = 0
    for i in range(4):
        emit_vm(wo_load(nwo)); nwo += 1
    a.e("s_waitcnt lgkmcnt(0)")
    a.e("s_barrier")
    st_.stamp()
    ACF = 32
    BFR = 64
    a.e(f"v_mov_b32 v96, {RED}")
    a.e("ds_read_b128 v[100:103], v96")
    a.e(f"v_add_u32 v97, {FB}, v5")
    for half in range(2):
        for k8 in range(8):
            kp = half * 8 + k8
            a.e(f"ds_read_b128 v[{BFR+4*k8}:{BFR+4*k8+3}], v97 offset:{kp*1024}")
        a.e("s_waitcnt lgkmcnt(0)")
        for k8 in range(8):
            kp = half * 8 + k8
            a.wait(vm_tags=[("WF", 2 * kp + 1)])
            for it in range(2):
                d = ACF + it * 16
                w_ = WF + (it * 16 + kp) * 4
                c = "0" if kp == 0 else f"v[{d}:{d+15}]"
                a.e(f"v_mfma_f32_32x32x16_bf16 v[{d}:{d+15}], v[{w_}:{w_+3}], v[{BFR+4*k8}:{BFR+4*k8+3}], {c}")
            if k8 % 2 == 1:
                emit_vm(wo_load(nwo)); nwo += 1
    st_.stamp()
    CS = 224
    a.e(f"v_lshrrev_b32 v8, 5, v{lane}")
    a.e("v_lshlrev_b32 v8, 6, v8")
    a.e(f"s_lshl_b32 s36, s{sW}, 8")
    a.e(f"s_add_u32 s36, s36, {TAB_CS}")
    for it in range(2):
        for x in range(4):
            a.e(f"buffer_load_dwordx4 v[{CS+16*it+4*x}:{CS+16*it+4*x+3}], v8, s[{sT}:{sT+3}], s36 offen offset:{it*128 + x*16}")
            a.vm_issue("CS")
    for i in range(4):
        emit_vm(wo_load(nwo)); nwo += 1
    a.e("v_or_b32 v100, v100, v101")
    a.e("v_or_b32 v102, v102, v103")
    a.e("v_or_b32 v100, v100, v102")
    a.e("s_nop 0")
    a.e("v_readfirstlane_b32 s44, v100")
    EA = 96
    a.e(f"s_mov_b32 s41, 0x{f2u(LOG2E2):08x}")
    a.e("s_nop 3")
    for i in range(32):
        a.e(f"v_mul_f32 v{EA+i}, s41, v{ACF+i}")
    a.e(f"v_max3_f32 v64, |v{EA}|, |v{EA+1}|, |v{EA+2}|")
    for i in range(3, 31, 2):
        a.e(f"v_max3_f32 v64, v64, |v{EA+i}|, |v{EA+i+1}|")
    a.e(f"v_max_f32 v64, v64, |v{EA+31}|")
    a.e(f"s_mov_b32 s41, 0x{f2u(ATHR):08x}")
    a.e("v_cmp_lt_f32 vcc, s41, v64")
    for i in range(4):
        emit_vm(wo_load(nwo)); nwo += 1
    a.e("s_cmp_lg_u64 vcc, 0")
    a.e("s_cselect_b32 s45, 1, 0")
    a.e("s_or_b32 s44, s44, s45")
    if "forceslow" in exp:
        a.e("s_mov_b32 s44, 1")
    vJW, vJR, vEB, vOX, vOY, vEC = 2, 3, 4, 6, 7, 8
    a.e(f"s_lshl_b32 s36, s{sW}, 12")
    a.e(f"v_add_u32 v{vJW}, s36, v5")
    a.e(f"v_mov_b32 v{vJR}, v5")
    a.e(f"v_lshrrev_b32 v9, 5, v{lane}")
    a.e(f"v_lshlrev_b32 v9, 4, v9")
    a.e(f"s_lshl_b32 s36, s{sW}, 8")
    a.e(f"v_add_u32 v{vEB}, s36, v9")
    a.e(f"v_and_b32 v9, 15, v{lane}")
    a.e(f"v_lshlrev_b32 v{vOX}, 12, v9")
    a.e(f"v_bfe_u32 v9, v{lane}, 4, 1")
    a.e(f"v_lshl_add_u32 v{vOX}, v9, 5, v{vOX}")
    a.e(f"v_lshrrev_b32 v9, 5, v{lane}")
    a.e(f"v_lshl_add_u32 v{vOX}, v9, 4, v{vOX}")
    a.e(f"s_lshl_b32 s36, s{sW}, 7")
    a.e(f"v_add_u32 v{vOX}, s36, v{vOX}")
    a.e(f"v_add_u32 v{vOY}, 65536, v{vOX}")
    a.e("s_cmp_lg_u32 s44, 0")
    a.e(f"s_cbranch_scc1 L_{name}_slow")

    vm_state = list(a.vm)
    nwo_state = nwo

    def main(slow):
        a.vm = list(vm_state)
        a.lg = []
        nwo = nwo_state
        ACC = [10, 42]
        JR = 74
        NJR = 5
        PRE = 4
        EBV = 128
        TT = 160
        JP = 192
        OP = 208
        TB = BPT if slow else EB
        a.e(f"v_add_u32 v{vEB}, {TB}, v{vEB}")
        if not slow:
            for i in range(32):
                a.e(f"v_exp_f32 v{EA+i}, v{EA+i}")
                if i % 8 == 7 and nwo < 32:
                    emit_vm(wo_load(nwo)); nwo += 1

        def eb_reads(u, grps):
            ops = []
            if 0 in grps:
                ops.append((f"v_lshl_add_u32 v{vEC}, s{48+u}, 1, v{vEB}", None))
            for grp in grps:
                it, qp = grp >> 1, grp & 1
                for s_ in range(2):
                    q = 2 * qp + s_
                    r_ = EBV + (it * 4 + q) * 4
                    ops.append((f"ds_read_b128 v[{r_}:{r_+3}], v{vEC} offset:{(32*it + 8*q)*4}", ("lg", ("EB", u, grp))))
            return ops

        def tanh_ops(u, grps):
            ops = []
            for grp in grps:
                idx = [grp * 8 + i for i in range(8)]
                ops.append((None, ("wait_lg", (("EB", u, grp),))))
                if slow:
                    for i in idx: ops.append((f"v_add_f32 v{TT+i}, v{EA+i}, v{EBV+i}", None))
                    for i in idx: ops.append((f"v_exp_f32 v{TT+i}, v{TT+i}", None))
                    for i in idx: ops.append((f"v_add_f32 v{TT+i}, 1.0, v{TT+i}", None))
                else:
                    for i in idx: ops.append((f"v_fma_f32 v{TT+i}, v{EA+i}, v{EBV+i}, 1.0", None))
                for i in idx: ops.append((f"v_rcp_f32 v{TT+i}, v{TT+i}", None))
                for k in range(4):
                    ops.append((f"v_cvt_pk_bf16_f32 v{JP+grp*4+k}, v{TT+grp*8+2*k}, v{TT+grp*8+2*k+1}", None))
                ops.append((f"ds_write_b128 v{vJW}, v[{JP+grp*4}:{JP+grp*4+3}] offset:{JB[u % 3] + grp*1024}", ("lg", ("JW", u))))
            return ops

        def out_ops(u, its=(0, 1)):
            ops = []
            acc = ACC[u & 1]
            for it in its:
                qa, qb = OP + it * 8, OP + it * 8 + 4
                for k in range(8):
                    ops.append((f"v_cvt_pk_bf16_f32 v{qa+k}, v{acc+it*16+2*k}, v{acc+it*16+2*k+1}", None))
                ops.append(("s_nop 1", None))
                for k in range(4):
                    ops.append((f"v_permlane16_swap_b32 v{qa+k}, v{qb+k}", None))
                ops.append((f"buffer_store_dwordx4 v[{qa}:{qa+3}], v{vOX}, s[{sO}:{sO+3}], s{48+u} offen offset:{it*64}", ("vm", ("O", u))))
                ops.append((f"buffer_store_dwordx4 v[{qb}:{qb+3}], v{vOY}, s[{sO}:{sO+3}], s{48+u} offen offset:{it*64}", ("vm", ("O", u))))
            return ops

        def emit(op):
            s, tag = op
            if s is not None:
                if "j_nostore" in exp and s.startswith("buffer_store"): return
                if "j_notrans" in exp and (s.startswith("v_rcp") or s.startswith("v_exp")): return
                if "j_novalu" in exp and s.startswith("v_") : return
            if tag and tag[0] == "wait_lg":
                a.wait(lg_tags=tag[1])
                return
            if tag and tag[0] == "wait_vm":
                a.wait(vm_tags=tag[1])
                return
            a.e(s)
            if tag:
                if tag[0] == "lg": a.lg_issue(tag[1])
                else: a.vm_issue(tag[1])

        def jread(u, k):
            r_ = JR + ((16 * u + k) % NJR) * 4
            a.e(f"ds_read_b128 v[{r_}:{r_+3}], v{vJR} offset:{JB[u % 3] + k*1024}")
            a.lg_issue(("JR", u, k))

        for op in eb_reads(0, (0, 1, 2, 3)): emit(op)
        for op in tanh_ops(0, (0, 1, 2, 3)): emit(op)
        while nwo < 24:
            emit_vm(wo_load(nwo)); nwo += 1
        for op in eb_reads(1, (0, 1)): emit(op)
        a.wait(lg_tags=(("JW", 0),))
        a.e("s_barrier")
        for k in range(PRE): jread(0, k)
        for op in tanh_ops(1, (0, 1)): emit(op)
        for op in eb_reads(1, (2, 3)): emit(op)
        a.wait(vm_tags=("CS",))
        if not slow: st_.stamp()
        for u in range(8):
            acc = ACC[u & 1]
            A_, B_ = [], []
            if u == 0:
                for i in range(nwo, 32):
                    for op in wo_load(i):
                        A_.append((op[0], ("vm", op[1])) if isinstance(op, tuple) else (op, None))
            if u + 1 < 8: A_ += tanh_ops(u + 1, (2, 3))
            if u > 0: A_ += out_ops(u - 1, (0,))
            tailA = eb_reads(u + 2, (0, 1)) if u + 2 < 8 else []
            if u + 2 < 8:
                B_ += eb_reads(u + 2, (2, 3))
            if u > 0: B_ += out_ops(u - 1, (1,))
            if u + 2 < 8: B_ += tanh_ops(u + 2, (0, 1))
            per = [[] for _ in range(32)]
            nA = 13
            for i, op in enumerate(A_):
                per[1 + (i * nA) // max(len(A_), 1)].append(op)
            for i, op in enumerate(tailA):
                per[14 + (i * 2) // len(tailA)].append(op)
            for i, op in enumerate(B_):
                per[16 + (i * 16) // max(len(B_), 1)].append(op)
            for k in range(16):
                if k == 8 and u + 1 < 8:
                    a.wait(lg_tags=(("JW", u + 1),))
                    a.e("s_barrier")
                a.wait(lg_tags=(("JR", u, k),))
                if u == 0:
                    a.wait(vm_tags=(("WO", 2 * k + 1),))
                r_ = JR + ((16 * u + k) % NJR) * 4
                for it in range(2):
                    d = acc + it * 16
                    w_ = (it * 16 + k) * 4
                    c = f"v[{CS+16*it}:{CS+16*it+15}]" if k == 0 else f"v[{d}:{d+15}]"
                    a.e(f"v_mfma_f32_32x32x16_bf16 v[{d}:{d+15}], a[{w_}:{w_+3}], v[{r_}:{r_+3}], {c}")
                    if it == 0:
                        if k + PRE < 16:
                            jread(u, k + PRE)
                        elif u + 1 < 8:
                            jread(u + 1, k + PRE - 16)
                    for op in per[2 * k + it]: emit(op)
            if u == 0 and not slow: st_.stamp()
        a.e("s_nop 7")
        a.e("s_nop 7")
        if not slow: st_.stamp()
        for op in out_ops(7): emit(op)
        if st_.on and not slow:
            st_.stamp()
            a.e("s_waitcnt vmcnt(0)")
            st_.stamp()
            st_.dump(int(exp.split("wg=")[1].split(",")[0]) if "wg=" in exp else 0, sW, 0, f"L_{name}_nodump", region=4)
        a.e("s_endpgm")

    main(False)
    a.label(f"L_{name}_slow")
    main(True)
    a.label(f"L_{name}_done")
    a.e("s_endpgm")
    return a.text(), LDS, 384, NWG
```

```python
from asmlib import Asm, Stamps, f2u
from layout import *

LOG2E2 = 2.8853900817779268


def cos_vals(a, dst, rev0, step, n, tmp):
    for x in range(n):
        if x == 0:
            a.e(f"v_fract_f32 v{dst}, v{rev0}")
        else:
            a.e(f"v_add_f32 v{rev0}, v{rev0}, v{step}")
            a.e(f"v_fract_f32 v{dst+x}, v{rev0}")
    for x in range(n):
        a.e(f"v_cos_f32 v{dst+x}, v{dst+x}")
    a.e("s_nop 0")


def fwd_table_frag(a, jt_sgpr_or_int, kk, out, t):
    j, g, fo, rev = t + 1, t + 2, t + 3, t + 4
    vals = t + 5
    a.e(f"v_and_b32 v{j}, 15, v{t}")
    a.e(f"v_lshrrev_b32 v{g}, 4, v{t}")
    a.e(f"v_or_b32 v{fo}, 1, v{j}")
    if isinstance(jt_sgpr_or_int, int):
        a.e(f"v_add_u32 v{fo}, {16*jt_sgpr_or_int}, v{fo}")
    else:
        a.e(f"v_add_u32 v{fo}, {jt_sgpr_or_int}, v{fo}")
    a.e(f"v_cvt_f32_u32 v{fo}, v{fo}")
    a.e(f"v_mul_f32 v{fo}, 0x3c000000, v{fo}")
    a.e(f"v_lshlrev_b32 v{g}, 3, v{g}")
    a.e(f"v_add_u32 v{g}, {32*kk}, v{g}")
    a.e(f"v_cvt_f32_u32 v{g}, v{g}")
    a.e(f"v_and_b32 v{j}, 1, v{j}")
    a.e(f"v_cvt_f32_u32 v{j}, v{j}")
    a.e(f"v_mul_f32 v{j}, 0x3e800000, v{j}")
    a.e(f"v_fma_f32 v{rev}, v{fo}, v{g}, v{j}")
    cos_vals(a, vals, rev, fo, 8, None)
    for x in range(4):
        a.e(f"v_cvt_pk_bf16_f32 v{out+x}, v{vals+2*x}, v{vals+2*x+1}")


def ghat_part(a, name, conv, sW, wg_sgpr, lds_base=0):
    WS_G = WS_GH1 if conv == 1 else WS_GH2
    sWt, sG = 8, 12
    a.e(f"s_load_dwordx2 s[4:5], s[0:1], {8 if conv == 1 else 16}")
    a.e("s_load_dwordx2 s[6:7], s[0:1], 72")
    a.e(f"s_lshr_b32 s24, {wg_sgpr}, 4")
    a.e(f"s_bfe_u32 s25, {wg_sgpr}, 0x20002")
    a.e(f"s_and_b32 s26, {wg_sgpr}, 3")
    a.e("s_lshr_b32 s27, s24, 3")
    a.e("s_and_b32 s28, s24, 7")
    lane = 1
    a.e(f"v_and_b32 v{lane}, 63, v0")
    a.e(f"v_lshrrev_b32 v2, 3, v{lane}")
    if conv == 1:
        a.e("v_lshrrev_b32 v3, 2, v2")
        a.e("v_lshlrev_b32 v3, 4, v3")
        a.e("v_and_b32 v4, 3, v2")
        a.e("v_add_u32 v3, v3, v4")
        a.e("s_lshl_b32 s29, s25, 2")
    else:
        a.e("v_mov_b32 v3, v2")
        a.e("s_lshl_b32 s29, s25, 3")
    a.e("s_lshl_b32 s30, s28, 5")
    a.e("s_add_u32 s29, s29, s30")
    a.e("v_add_u32 v3, s29, v3")
    a.e("v_lshlrev_b32 v3, 9, v3")
    a.e(f"v_and_b32 v4, 7, v{lane}")
    a.e(f"s_lshr_b32 s30, s{sW}, 1")
    a.e("s_lshl_b32 s30, s30, 2")
    a.e("v_xor_b32 v4, s30, v4")
    a.e("v_lshl_add_u32 v3, v4, 4, v3")
    a.e("s_lshl_b32 s30, s26, 7")
    a.e("v_add_u32 v3, s30, v3")
    a.e("v_xor_b32 v4, 32, v3")
    a.e("s_waitcnt lgkmcnt(0)")
    a.srd(sWt, "s4", "s5", 31 * 131072)
    a.add64(sG, 6, WS_G)
    a.e(f"s_mov_b32 s{sG+2}, {32*GBIN}")
    a.e(f"s_mov_b32 s{sG+3}, 0x00020000")
    a.e(f"s_lshl_b32 s30, s{sW}, 3")
    a.e("s_add_u32 s30, s30, s27")
    a.e("s_lshl_b32 s30, s30, 17")
    a.e(f"s_mul_i32 s31, s{sW}, {4*1152}")
    for jj in range(4):
        a.e(f"s_add_u32 m0, s31, {lds_base + jj*1152}")
        a.e(f"s_add_u32 s32, s30, {jj*2*131072}")
        a.e(f"buffer_load_dwordx4 v{3 if jj < 2 else 4}, s[{sWt}:{sWt+3}], s32 offen lds")
    t = 8
    a.e(f"v_and_b32 v{t}, 15, v{lane}")
    a.e(f"v_or_b32 v{t+1}, 1, v{t}")
    a.e(f"s_lshl_b32 s33, s{sW}, 4")
    a.e(f"v_add_u32 v{t+1}, s33, v{t+1}")
    a.e(f"v_cvt_f32_u32 v{t+1}, v{t+1}")
    a.e(f"v_mul_f32 v{t+1}, 0x3c000000, v{t+1}")
    a.e(f"v_bfe_u32 v{t+2}, v{lane}, 4, 1")
    a.e(f"v_lshlrev_b32 v{t+2}, 3, v{t+2}")
    a.e(f"v_cvt_f32_u32 v{t+2}, v{t+2}")
    a.e(f"v_and_b32 v{t}, 1, v{t}")
    a.e(f"v_cvt_f32_u32 v{t}, v{t}")
    a.e(f"v_mul_f32 v{t}, 0x3f400000, v{t}")
    a.e(f"v_fma_f32 v{t+3}, v{t+1}, v{t+2}, v{t}")
    vals = t + 4
    cos_vals(a, vals, t + 3, t + 1, 8, None)
    for x in range(8):
        a.e(f"v_mul_f32 v{vals+x}, 0x3d000000, v{vals+x}")
    hi, lo = 20, 24
    for x in range(4):
        a.e(f"v_cvt_pk_bf16_f32 v{hi+x}, v{vals+2*x}, v{vals+2*x+1}")
    for x in range(4):
        a.e(f"v_lshlrev_b32 v28, 16, v{hi+x}")
        a.e(f"v_and_b32 v29, 0xffff0000, v{hi+x}")
        a.e(f"v_sub_f32 v28, v{vals+2*x}, v28")
        a.e(f"v_sub_f32 v29, v{vals+2*x+1}, v29")
        a.e(f"v_cvt_pk_bf16_f32 v{lo+x}, v28, v29")
    a.e(f"v_cmp_gt_u32 vcc, 32, v{lane}")
    a.e("s_nop 1")
    for x in range(4):
        a.e(f"v_cndmask_b32 v{hi+x}, v{lo+x}, v{hi+x}, vcc")
    TB = lds_base + 16 * 1152
    a.e(f"v_lshlrev_b32 v28, 4, v{lane}")
    a.e(f"s_lshl_b32 s33, s{sW}, 10")
    a.e(f"v_add_u32 v29, s33, v28")
    a.e(f"ds_write_b128 v29, v[{hi}:{hi+3}] offset:{TB}")
    a.e(f"v_bfe_u32 v30, v{lane}, 2, 2")
    a.e(f"v_bfe_u32 v31, v{lane}, 4, 1")
    a.e("v_lshl_add_u32 v32, v31, 3, v30")
    a.e("v_mul_u32_u24 v32, 1152, v32")
    a.e("v_lshrrev_b32 v30, 1, v30")
    a.e("v_lshl_add_u32 v30, v31, 1, v30")
    a.e("v_lshlrev_b32 v30, 1, v30")
    a.e(f"v_bfe_u32 v31, v{lane}, 1, 1")
    a.e(f"s_lshl_b32 s33, s{sW}, 1")
    a.e("v_add_u32 v31, s33, v31")
    a.e("v_xor_b32 v30, v30, v31")
    a.e("v_lshl_add_u32 v32, v30, 4, v32")
    a.e(f"v_and_b32 v30, 1, v{lane}")
    a.e("v_lshl_add_u32 v32, v30, 3, v32")
    a.e(f"v_lshrrev_b32 v30, 4, v{lane}")
    a.e(f"s_mov_b32 s33, {2*GBIN}")
    a.e("v_mul_lo_u32 v30, v30, s33")
    a.e(f"v_and_b32 v31, 15, v{lane}")
    a.e("v_lshl_add_u32 v33, v31, 4, v30")
    a.e("s_lshl_b32 s34, s24, 15")
    a.e("s_lshl_b32 s35, s26, 2")
    a.e(f"s_add_u32 s35, s35, s{sW}")
    a.e("s_lshl_b32 s35, s35, 11")
    a.e("s_add_u32 s34, s34, s35")
    a.e("s_lshl_b32 s35, s25, 8")
    a.e("s_add_u32 s34, s34, s35")
    a.e("s_waitcnt vmcnt(0) lgkmcnt(0)")
    a.e("s_barrier")
    AF, BF, DD, PK = 36, 52, 84, 116
    for it in range(4):
        a.e(f"ds_read_b128 v[{AF+4*it}:{AF+4*it+3}], v28 offset:{TB + it*1024}")
    for c in range(8):
        for xx in range(2):
            a.e(f"ds_read_b64_tr_b16 v[{BF+4*c+2*xx}:{BF+4*c+2*xx+1}], v32 offset:{lds_base + c*128 + xx*4*1152}")
        if c == 4:
            a.e("s_waitcnt lgkmcnt(8)")
    a.e("s_waitcnt lgkmcnt(0)")
    for it in range(4):
        for c in range(8):
            d = DD + 4 * c
            a.e(f"v_mfma_f32_16x16x32_bf16 v[{d}:{d+3}], v[{AF+4*it}:{AF+4*it+3}], v[{BF+4*c}:{BF+4*c+3}], 0")
        a.e("s_nop 7")
        for e in range(4):
            pk = PK + 4 * (e & 1)
            for x in range(4):
                a.e(f"v_cvt_pk_bf16_f32 v{pk+x}, v{DD+8*x+e}, v{DD+8*x+4+e}")
            a.e(f"s_add_u32 s35, s34, {(8*it + (e >> 1))*GBIN + (e & 1)*1024}")
            a.e(f"buffer_store_dwordx4 v[{pk}:{pk+3}], v33, s[{sG}:{sG+3}], s35 offen")
            a.e("s_nop 1")
    a.e("s_endpgm")
    return lds_base + 16 * 1152 + 4096


def prep_kernel(name, exp=""):
    a = Asm()
    NX = 2 * M1
    NG = 256
    G2 = "g2inprep" in exp
    NG2 = 256 if G2 else 0
    NS = 13
    O_S, O_X = 0, NS
    O_G = O_X + NX
    O_G2 = O_G + NG
    NWG = O_G2 + NG2
    sW = 20
    a.label(name)
    a.e(f"s_cmp_ge_u32 s2, {NWG}")
    a.e(f"s_cbranch_scc1 L_{name}_done")
    a.e(f"v_readfirstlane_b32 s{sW}, v0")
    a.e(f"s_lshr_b32 s{sW}, s{sW}, 6")
    a.e(f"s_cmp_lt_u32 s2, {O_X}")
    a.e(f"s_cbranch_scc1 L_{name}_slab")
    a.e(f"s_cmp_ge_u32 s2, {O_G}")
    a.e(f"s_cbranch_scc1 L_{name}_g")

    sX, sO = 8, 12
    a.e("s_load_dwordx2 s[4:5], s[0:1], 0")
    a.e("s_load_dwordx2 s[6:7], s[0:1], 72")
    a.e(f"s_sub_u32 s24, s2, {O_X}")
    a.e(f"s_cmp_ge_u32 s24, {M1}")
    a.e("s_cselect_b32 s25, 1, 0")
    a.e(f"s_mul_i32 s26, s25, {M1}")
    a.e("s_sub_u32 s24, s24, s26")
    a.e("s_lshr_b32 s26, s24, 1")
    a.e("s_and_b32 s27, s24, 1")
    lane = 1
    a.e(f"v_and_b32 v{lane}, 63, v0")
    a.e(f"v_lshrrev_b32 v2, 3, v{lane}")
    a.e("s_mul_i32 s28, s26, 96")
    a.e("s_add_u32 s28, s28, s27")
    a.e("s_sub_u32 s28, s28, 15")
    a.e("v_lshlrev_b32 v3, 1, v2")
    a.e("v_add_u32 v3, s28, v3")
    a.e("v_lshlrev_b32 v3, 9, v3")
    a.e(f"s_lshl_b32 s29, s{sW}, 7")
    a.e("v_add_u32 v3, s29, v3")
    a.e("v_bfe_u32 v4, v2, 1, 1")
    a.e("v_lshlrev_b32 v4, 1, v4")
    a.e(f"v_and_b32 v5, 7, v{lane}")
    a.e("v_xor_b32 v4, v4, v5")
    a.e("v_lshl_add_u32 v3, v4, 4, v3")
    a.e("v_xor_b32 v4, 64, v3")
    a.e("s_waitcnt lgkmcnt(0)")
    a.e(f"s_mul_i32 s30, s25, {16000*512}")
    a.e(f"s_add_u32 s{sX}, s4, s30")
    a.e(f"s_addc_u32 s{sX+1}, s5, 0")
    a.e(f"s_mov_b32 s{sX+2}, {16000*512}")
    a.e(f"s_mov_b32 s{sX+3}, 0x00020000")
    a.e(f"s_lshl_b32 s31, s{sW}, 13")
    for q in range(8):
        a.e(f"s_add_u32 m0, s31, {q*1024}")
        a.e(f"v_add_u32 v5, {q*8192}, v{4 if q & 1 else 3}")
        a.e(f"buffer_load_dwordx4 v5, s[{sX}:{sX+3}], 0 offen lds")
    a.add64(sO, 6, WS_XH1)
    a.e(f"s_mov_b32 s{sO+2}, {32*XBIN1}")
    a.e(f"s_mov_b32 s{sO+3}, 0x00020000")
    TB = 32768
    a.e(f"v_mov_b32 v8, v{lane}")
    a.e(f"s_lshl_b32 s32, s{sW}, 4")
    a.e(f"v_lshlrev_b32 v6, 4, v{lane}")
    a.e(f"s_lshl_b32 s33, s{sW}, 11")
    a.e("v_add_u32 v7, s33, v6")
    for kk in range(2):
        fwd_table_frag(a, "s32", kk, 24 + 4 * kk, 8)
        a.e(f"ds_write_b128 v7, v[{24+4*kk}:{24+4*kk+3}] offset:{TB + kk*1024}")
    a.e(f"v_bfe_u32 v8, v{lane}, 2, 2")
    a.e(f"v_lshrrev_b32 v9, 4, v{lane}")
    a.e("v_lshl_add_u32 v10, v9, 3, v8")
    a.e("v_lshlrev_b32 v10, 7, v10")
    a.e("v_lshrrev_b32 v8, 1, v8")
    a.e("v_and_b32 v11, 1, v9")
    a.e("v_lshl_add_u32 v8, v11, 1, v8")
    a.e("v_lshlrev_b32 v8, 1, v8")
    a.e(f"v_bfe_u32 v11, v{lane}, 1, 1")
    a.e("v_xor_b32 v8, v8, v11")
    a.e("v_lshl_add_u32 v10, v8, 4, v10")
    a.e(f"v_and_b32 v11, 1, v{lane}")
    a.e("v_lshl_add_u32 v10, v11, 3, v10")
    a.e("v_add_u32 v10, s31, v10")
    vTR = [12, 13, 14, 15]
    for h in range(2):
        for t in range(2):
            a.e(f"v_xor_b32 v{vTR[h*2+t]}, {h*64 + t*32}, v10")
    a.e(f"v_bfe_u32 v8, v{lane}, 1, 3")
    a.e(f"s_mov_b32 s33, {XBIN1}")
    a.e("v_mul_lo_u32 v8, v8, s33")
    a.e(f"v_and_b32 v11, 1, v{lane}")
    a.e("v_lshl_add_u32 v8, v11, 6, v8")
    a.e("v_lshl_add_u32 v16, v9, 4, v8")
    a.e(f"s_mul_i32 s34, s25, {NB1}")
    a.e("s_add_u32 s34, s34, s26")
    a.e("s_lshl_b32 s34, s34, 11")
    a.e("s_lshl_b32 s35, s27, 3")
    a.e(f"s_lshl_b32 s36, s{sW}, 1")
    a.e("s_add_u32 s35, s35, s36")
    a.e("s_lshl_b32 s35, s35, 7")
    a.e("s_add_u32 s34, s34, s35")
    a.e("s_waitcnt lgkmcnt(0)")
    a.e("s_barrier")
    FF, AA, DD, PK = 24, 56, 72, 104
    for jt in range(4):
        for kk in range(2):
            f = FF + (jt * 2 + kk) * 4
            a.e(f"ds_read_b128 v[{f}:{f+3}], v6 offset:{TB + (jt*2+kk)*1024}")
    a.e("s_waitcnt vmcnt(0)")
    for h in range(2):
        for t in range(2):
            for kk in range(2):
                r_ = AA + (t * 2 + kk) * 4
                for xx in range(2):
                    a.e(f"ds_read_b64_tr_b16 v[{r_+2*xx}:{r_+2*xx+1}], v{vTR[h*2+t]} offset:{kk*4096 + xx*512}")
        a.e("s_waitcnt lgkmcnt(0)")
        for kk in range(2):
            for t in range(2):
                for jt in range(4):
                    d = DD + (t * 4 + jt) * 4
                    r_ = AA + (t * 2 + kk) * 4
                    f = FF + (jt * 2 + kk) * 4
                    c = "0" if kk == 0 else f"v[{d}:{d+3}]"
                    a.e(f"v_mfma_f32_16x16x32_bf16 v[{d}:{d+3}], v[{r_}:{r_+3}], v[{f}:{f+3}], {c}")
        a.e("s_nop 7")
        for jt in range(4):
            pk = PK + 4 * (jt & 1)
            d0, d1 = DD + jt * 4, DD + (4 + jt) * 4
            a.e(f"v_cvt_pk_bf16_f32 v{pk}, v{d0}, v{d0+1}")
            a.e(f"v_cvt_pk_bf16_f32 v{pk+1}, v{d0+2}, v{d0+3}")
            a.e(f"v_cvt_pk_bf16_f32 v{pk+2}, v{d1}, v{d1+1}")
            a.e(f"v_cvt_pk_bf16_f32 v{pk+3}, v{d1+2}, v{d1+3}")
            a.e(f"s_add_u32 s35, s34, {jt*8*XBIN1 + h*128}")
            a.e(f"buffer_store_dwordx4 v[{pk}:{pk+3}], v16, s[{sO}:{sO+3}], s35 offen")
            a.e("s_nop 1")
    a.e("s_endpgm")

    a.label(f"L_{name}_g")
    if G2:
        a.e(f"s_cmp_ge_u32 s2, {O_G2}")
        a.e(f"s_cbranch_scc1 L_{name}_g2")
    a.e(f"s_sub_u32 s3, s2, {O_G}")
    ghat_part(a, name, 1, sW, "s3")
    if G2:
        a.label(f"L_{name}_g2")
        a.e(f"s_sub_u32 s3, s2, {O_G2}")
        ghat_part(a, name, 2, sW, "s3")

    a.label(f"L_{name}_slab")
    sM, sT = 8, 12
    a.e("s_load_dwordx2 s[6:7], s[0:1], 72")
    a.e("s_cmp_eq_u32 s2, 12")
    a.e(f"s_cbranch_scc1 L_{name}_tab")
    a.e("s_lshr_b32 s24, s2, 2")
    a.e("s_and_b32 s26, s2, 3")
    a.e("s_mov_b32 s25, 40")
    a.e("s_cmp_eq_u32 s24, 1")
    a.e("s_cselect_b32 s25, 32, s25")
    a.e("s_cmp_eq_u32 s24, 2")
    a.e("s_cselect_b32 s25, 48, s25")
    a.e("s_load_dwordx2 s[4:5], s[0:1], s25")
    a.e("s_load_dwordx2 s[28:29], s[0:1], 24")
    lane = 1
    a.e(f"v_and_b32 v{lane}, 63, v0")
    a.e(f"v_lshrrev_b32 v2, 3, v{lane}")
    a.e(f"s_lshl_b32 s27, s{sW}, 6")
    a.e("v_add_u32 v2, s27, v2")
    a.e("v_lshlrev_b32 v2, 9, v2")
    a.e(f"v_and_b32 v3, 7, v{lane}")
    a.e("v_lshl_add_u32 v2, v3, 4, v2")
    a.e("s_lshl_b32 s27, s26, 7")
    a.e("v_add_u32 v2, s27, v2")
    a.e("s_waitcnt lgkmcnt(0)")
    a.srd(sM, "s4", "s5", 131072)
    a.add64(sT, 6, WS_TAB)
    a.e(f"s_mov_b32 s{sT+2}, {TAB_WO + 131072}")
    a.e(f"s_mov_b32 s{sT+3}, 0x00020000")
    a.e(f"s_lshl_b32 s31, s{sW}, 13")
    for q in range(8):
        a.e(f"s_add_u32 m0, s31, {q*1024}")
        a.e(f"s_mov_b32 s32, {q*4096}")
        a.e(f"buffer_load_dwordx4 v2, s[{sM}:{sM+3}], s32 offen lds")
    a.e("s_cmp_eq_u32 s24, 0")
    a.e(f"s_cbranch_scc1 L_{name}_ge")
    a.e(f"v_bfe_u32 v4, v{lane}, 2, 2")
    a.e(f"v_lshrrev_b32 v5, 5, v{lane}")
    a.e(f"v_bfe_u32 v6, v{lane}, 4, 1")
    a.e(f"v_and_b32 v7, 3, v{lane}")
    a.e("s_cmp_eq_u32 s24, 1")
    a.e(f"s_cbranch_scc0 L_{name}_wo")
    a.e("v_lshl_add_u32 v8, v5, 4, v4")
    a.e("v_lshlrev_b32 v8, 7, v8")
    a.e("v_lshl_add_u32 v8, v6, 5, v8")
    a.e("v_lshl_add_u32 v8, v7, 3, v8")
    a.e(f"s_lshl_b32 s33, s{sW}, 13")
    a.e("v_add_u32 v8, s33, v8")
    a.e(f"s_mov_b32 s34, {TAB_WF}")
    offs = lambda kq, xx, it: (32 * (kq >> 1) + 8 * xx + 4 * (kq & 1)) * 128 + it * 64

    def emit_frags(offs_fn, is_wo=False):
        a.e("s_lshl_b32 s35, s26, 15")
        a.e("s_add_u32 s34, s34, s35")
        a.e(f"s_lshl_b32 s35, s{sW}, 12")
        a.e("s_add_u32 s34, s34, s35")
        a.e(f"v_lshlrev_b32 v9, 4, v{lane}")
        a.e("s_waitcnt vmcnt(0)")
        a.e("s_barrier")
        for it in range(2):
            for kq in range(4):
                r_ = 16 + (it * 4 + kq) * 4
                for xx in range(2):
                    a.e(f"ds_read_b64_tr_b16 v[{r_+2*xx}:{r_+2*xx+1}], v8 offset:{offs_fn(kq, xx, it)}")
            a.e("s_waitcnt lgkmcnt(0)")
            if is_wo:
                if it == 0:
                    for x in range(4):
                        a.e(f"v_mov_b32 v{48+x}, 0x3f803f80")
                    a.e("s_nop 1")
                d = 64 + 16 * it
                for kq in range(4):
                    r_ = 16 + (it * 4 + kq) * 4
                    c = "0" if kq == 0 else f"v[{d}:{d+15}]"
                    a.e(f"v_mfma_f32_32x32x16_bf16 v[{d}:{d+15}], v[{r_}:{r_+3}], v[48:51], {c}")
                for kq in range(4):
                    r_ = 16 + (it * 4 + kq) * 4
                    for x in range(4):
                        a.e(f"v_lshlrev_b32 v52, 16, v{r_+x}")
                        a.e(f"v_and_b32 v53, 0xffff0000, v{r_+x}")
                        a.e("v_mul_f32 v52, -2.0, v52")
                        a.e("v_mul_f32 v53, -2.0, v53")
                        a.e(f"v_cvt_pk_bf16_f32 v{r_+x}, v52, v53")
            for kq in range(4):
                r_ = 16 + (it * 4 + kq) * 4
                a.e(f"s_add_u32 s35, s34, {it*16384 + kq*1024}")
                a.e(f"buffer_store_dwordx4 v[{r_}:{r_+3}], v9, s[{sT}:{sT+3}], s35 offen")
        if is_wo:
            a.e("s_nop 7")
            a.e("s_barrier")
            a.e(f"v_lshlrev_b32 v10, 6, v{lane}")
            a.e(f"s_lshl_b32 s35, s{sW}, 13")
            a.e("v_add_u32 v11, s35, v10")
            for it in range(2):
                for x in range(4):
                    a.e(f"ds_write_b128 v11, v[{64+16*it+4*x}:{64+16*it+4*x+3}] offset:{it*4096 + x*16}")
            a.e("s_waitcnt lgkmcnt(0)")
            a.e("s_barrier")
            a.e(f"s_cmp_ge_u32 s{sW}, 2")
            a.e(f"s_cbranch_scc1 L_{name}_done")
            a.e(f"s_lshl_b32 s35, s{sW}, 12")
            a.e("v_add_u32 v11, s35, v10")
            for ww in range(4):
                for x in range(4):
                    a.e(f"ds_read_b128 v[{16+16*ww+4*x}:{16+16*ww+4*x+3}], v11 offset:{ww*8192 + x*16}")
                if ww % 2 == 1:
                    a.e("s_waitcnt lgkmcnt(0)")
            for x in range(16):
                a.e(f"v_add_f32 v{16+x}, v{16+x}, v{32+x}")
                a.e(f"v_add_f32 v{48+x}, v{48+x}, v{64+x}")
            for x in range(16):
                a.e(f"v_add_f32 v{16+x}, v{16+x}, v{48+x}")
            a.e(f"v_and_b32 v10, 31, v{lane}")
            a.e("v_cmp_eq_u32 vcc, 0, v10")
            a.e(f"v_lshrrev_b32 v10, 5, v{lane}")
            a.e("v_lshlrev_b32 v10, 6, v10")
            a.e("s_lshl_b32 s35, s26, 8")
            a.e(f"s_lshl_b32 s36, s{sW}, 7")
            a.e("s_add_u32 s35, s35, s36")
            a.e(f"s_add_u32 s35, s35, {TAB_CS}")
            a.e("s_and_saveexec_b64 s[38:39], vcc")
            for x in range(4):
                a.e(f"buffer_store_dwordx4 v[{16+4*x}:{16+4*x+3}], v10, s[{sT}:{sT+3}], s35 offen offset:{x*16}")
        a.e("s_endpgm")

    emit_frags(offs)
    a.label(f"L_{name}_wo")
    a.e("v_lshl_add_u32 v8, v5, 2, v4")
    a.e("v_lshlrev_b32 v8, 7, v8")
    a.e("v_lshl_add_u32 v8, v6, 5, v8")
    a.e("v_and_b32 v10, 1, v7")
    a.e("v_lshl_add_u32 v8, v10, 4, v8")
    a.e("v_lshrrev_b32 v10, 1, v7")
    a.e("v_lshl_add_u32 v8, v10, 3, v8")
    a.e(f"s_lshl_b32 s33, s{sW}, 13")
    a.e("v_add_u32 v8, s33, v8")
    a.e(f"s_mov_b32 s34, {TAB_WO}")
    emit_frags(lambda kq, xx, it: (16 * kq + 8 * xx) * 128 + it * 64, True)

    a.label(f"L_{name}_ge")
    sGg = 36
    a.srd(sGg, "s28", "s29", 8192)
    a.e(f"v_and_b32 v4, 15, v{lane}")
    a.e(f"v_lshrrev_b32 v5, 4, v{lane}")
    a.e("v_lshlrev_b32 v6, 9, v4")
    a.e("v_lshl_add_u32 v6, v5, 4, v6")
    BB = 16
    for ks in range(8):
        a.e(f"buffer_load_dwordx4 v[{BB+4*ks}:{BB+4*ks+3}], v6, s[{sGg}:{sGg+3}], 0 offen offset:{ks*64}")
    a.e(f"v_bfe_u32 v7, v{lane}, 2, 2")
    a.e("v_lshl_add_u32 v7, v5, 3, v7")
    a.e("v_lshlrev_b32 v7, 7, v7")
    a.e(f"v_and_b32 v8, 3, v{lane}")
    a.e("v_lshl_add_u32 v7, v8, 3, v7")
    a.e(f"s_lshl_b32 s33, s{sW}, 5")
    a.e("v_add_u32 v7, s33, v7")
    a.e("s_waitcnt vmcnt(0)")
    a.e("s_barrier")
    AA = 48
    for ks in range(8):
        for xx in range(2):
            a.e(f"ds_read_b64_tr_b16 v[{AA+4*ks+2*xx}:{AA+4*ks+2*xx+1}], v7 offset:{(32*ks + 4*xx)*128}")
        if ks == 3:
            a.e("s_waitcnt lgkmcnt(0)")
    a.e("s_waitcnt lgkmcnt(0)")
    for ks in range(8):
        c = "0" if ks == 0 else "v[80:83]"
        a.e(f"v_mfma_f32_16x16x32_bf16 v[80:83], v[{AA+4*ks}:{AA+4*ks+3}], v[{BB+4*ks}:{BB+4*ks+3}], {c}")
    a.e("s_nop 7")
    a.e("v_cvt_pk_bf16_f32 v84, v80, v81")
    a.e("v_cvt_pk_bf16_f32 v85, v82, v83")
    a.e(f"s_mov_b32 s33, 0x{f2u(LOG2E2):08x}")
    a.e("v_lshlrev_b32 v80, 16, v84")
    a.e("v_and_b32 v81, 0xffff0000, v84")
    a.e("v_lshlrev_b32 v82, 16, v85")
    a.e("v_and_b32 v83, 0xffff0000, v85")
    for x in range(4):
        a.e(f"v_mul_f32 v{80+x}, s33, v{80+x}")
    a.e("v_lshlrev_b32 v6, 10, v4")
    a.e("v_lshl_add_u32 v6, v5, 4, v6")
    a.e("s_lshl_b32 s33, s26, 8")
    a.e(f"s_lshl_b32 s34, s{sW}, 6")
    a.e("s_add_u32 s33, s33, s34")
    a.e(f"s_add_u32 s33, s33, {TAB_BP}")
    a.e(f"buffer_store_dwordx4 v[80:83], v6, s[{sT}:{sT+3}], s33 offen")
    a.e("s_endpgm")

    a.label(f"L_{name}_tab")
    a.e(f"v_and_b32 v8, 63, v0")
    a.e("v_lshlrev_b32 v6, 4, v8")
    a.e("s_waitcnt lgkmcnt(0)")
    a.add64(sT, 6, WS_TAB)
    a.e(f"s_mov_b32 s{sT+2}, {TAB_WO + 131072}")
    a.e(f"s_mov_b32 s{sT+3}, 0x00020000")
    a.e(f"s_lshl_b32 s32, s{sW}, 4")
    a.e(f"s_lshl_b32 s33, s{sW}, 11")
    for kk in range(2):
        fwd_table_frag(a, "s32", kk, 24 + 4 * kk, 8)
        a.e(f"s_add_u32 s34, s33, {TAB_F + kk*1024}")
        a.e(f"buffer_store_dwordx4 v[{24+4*kk}:{24+4*kk+3}], v6, s[{sT}:{sT+3}], s34 offen")
    a.e(f"s_cmp_ge_u32 s{sW}, 3")
    a.e(f"s_cbranch_scc1 L_{name}_done")
    a.e("v_and_b32 v9, 15, v8")
    a.e("v_add_u32 v9, s32, v9")
    a.e("v_cvt_f32_u32 v9, v9")
    a.e("v_mul_f32 v9, 0x3c000000, v9")
    a.e("v_lshrrev_b32 v10, 4, v8")
    a.e("v_lshlrev_b32 v10, 3, v10")
    for kk in range(2):
        for x in range(8):
            a.e(f"v_add_u32 v11, {32*kk + 2*(x >> 1) + 1}, v10")
            a.e("v_cvt_f32_u32 v11, v11")
            if x & 1:
                a.e("v_fma_f32 v11, v11, v9, 0.25") if False else None
                a.e("v_mul_f32 v11, v11, v9")
                a.e("v_add_f32 v11, 0x3e800000, v11")
            else:
                a.e("v_mul_f32 v11, v11, v9")
            a.e(f"v_fract_f32 v{12+x}, v11")
        for x in range(8):
            a.e(f"v_cos_f32 v{12+x}, v{12+x}")
        a.e("s_nop 0")
        for x in range(4):
            a.e(f"v_cvt_pk_bf16_f32 v{24+x}, v{12+2*x}, v{12+2*x+1}")
        a.e(f"s_add_u32 s34, s33, {TAB_FI + kk*1024}")
        a.e(f"buffer_store_dwordx4 v[24:27], v6, s[{sT}:{sT+3}], s34 offen")
        a.e("s_nop 1")
    a.label(f"L_{name}_done")
    a.e("s_endpgm")
    return a.text(), 40960, 128, NWG
```

```python
import os
import sys
sys.path.insert(0, os.path.dirname(os.path.abspath(__file__)))
from asmlib import kd
from gemm import gemm_kernel

HEADER = """; Kernarg layout for this problem (80 bytes, ptrs only, base s[0:1]):
"""


def build(which, exp=""):
    ks = []
    for nm in which:
        if nm == "gemm1":
            code, lds, nv = gemm_kernel("gemm1_kernel", 1, exp)
            ks.append(("gemm1_kernel", 256, 512, code, lds, nv))
        elif nm == "gemm2":
            code, lds, nv = gemm_kernel("gemm2_kernel", 2, exp)
            ks.append(("gemm2_kernel", 256, 512, code, lds, nv))
        elif nm == "prep":
            from prep import prep_kernel
            code, lds, nv, grid = prep_kernel("prep_kernel", exp)
            ks.append(("prep_kernel", grid, 256, code, lds, nv))
        elif nm == "mid":
            from mid import mid_kernel
            code, lds, nv, grid = mid_kernel("mid_kernel", exp)
            ks.append(("mid_kernel", grid, 256, code, lds, nv))
        elif nm == "joint":
            from joint import joint_kernel
            code, lds, nv, grid = joint_kernel("joint_kernel", exp)
            ks.append(("joint_kernel", grid, 256, code, lds, nv))
        else:
            raise ValueError(nm)
    pol = {"st": "sc1", "sto": "nt"}
    for tok in exp.split(","):
        for k in ("st", "sto"):
            if tok.startswith(k + "="):
                pol[k] = tok[len(k) + 1:].replace("+", " ")
    ks2 = []
    for nm, grid, block, code, lds, nv in ks:
        sfx = pol["sto"] if nm == "joint_kernel" else pol["st"]
        sfx = "" if sfx == "plain" else " " + sfx
        lines = []
        for ln in code.split("\n"):
            if ln.strip().startswith("buffer_store_dwordx4") and "s[56:59]" not in ln:
                ln = ln + sfx
            lines.append(ln)
        ks2.append((nm, grid, block, "\n".join(lines), lds, nv))
    ks = ks2
    out = HEADER
    for nm, grid, block, code, lds, nv in ks:
        out += f"; @launch kernel={nm} grid=({grid},1,1) block=({block},1,1) lds={lds}\n"
    out += '.amdgcn_target "amdgcn-amd-amdhsa--gfx950"\n.text\n'
    for nm, grid, block, code, lds, nv in ks:
        out += f".globl {nm}\n.p2align 8\n.type {nm},@function\n" + code
    out += '.section .rodata,"a"\n'
    for nm, grid, block, code, lds, nv in ks:
        out += ".p2align 6\n" + kd(nm, vgpr=(nv + 7) // 8 * 8, accum=min(256, (nv + 7) // 8 * 8))
    return out


if __name__ == "__main__":
    path = sys.argv[1]
    which = sys.argv[2].split(",") if len(sys.argv) > 2 else ["prep", "gemm1", "mid", "gemm2", "joint"]
    open(path, "w").write(build(which, os.environ.get("EXP", "")))
```

```python
import struct


def f2u(f):
    return struct.unpack('<I', struct.pack('<f', f))[0]


class Asm:
    def __init__(self):
        self.L = []
        self.vm = []
        self.lg = []

    def e(self, s):
        self.L.append("    " + s)

    def label(self, s):
        self.L.append(s + ":")

    def c(self, s):
        self.L.append("    ; " + s)

    def vm_issue(self, tag):
        self.vm.append(tag)
        assert len(self.vm) <= 63, "vmcnt overflow"

    def lg_issue(self, tag):
        self.lg.append(tag)
        assert len(self.lg) <= 15, ("lgkmcnt overflow", self.lg)

    def _need(self, q, tags):
        idx = -1
        for i, t in enumerate(q):
            if t in tags:
                idx = i
        return idx

    def wait(self, vm_tags=(), lg_tags=(), force=False):
        parts = []
        if vm_tags:
            idx = self._need(self.vm, vm_tags)
            if idx >= 0:
                parts.append(f"vmcnt({len(self.vm) - idx - 1})")
                self.vm = self.vm[idx + 1:]
        if lg_tags:
            idx = self._need(self.lg, lg_tags)
            if idx >= 0:
                parts.append(f"lgkmcnt({len(self.lg) - idx - 1})")
                self.lg = self.lg[idx + 1:]
        if parts:
            self.e("s_waitcnt " + " ".join(parts))

    def wait_all(self, vm=True, lg=True):
        parts = []
        if vm:
            parts.append("vmcnt(0)")
            self.vm = []
        if lg:
            parts.append("lgkmcnt(0)")
            self.lg = []
        self.e("s_waitcnt " + " ".join(parts))

    def text(self):
        return "\n".join(self.L) + "\n"

    trace_region = None
    _ntr = 0

    def trace_begin(self, region):
        self.trace_region = region
        self.e("s_memrealtime s[98:99]")
        self.e("v_readfirstlane_b32 s97, v0")

    def end(self):
        if self.trace_region is not None:
            Asm._ntr += 1
            lab = f"L_trace_skip_{Asm._ntr}"
            self.e("s_waitcnt vmcnt(0) lgkmcnt(0)")
            self.e("s_memrealtime s[100:101]")
            self.e("s_cmp_lg_u32 s97, 0")
            self.e(f"s_cbranch_scc1 {lab}")
            self.e("s_load_dwordx2 s[92:93], s[0:1], 72")
            self.e("s_waitcnt lgkmcnt(0)")
            self.e(f"s_add_u32 s92, s92, {0x8000000 + self.trace_region*65536}")
            self.e("s_addc_u32 s93, s93, 0")
            self.e("s_mov_b32 s94, 65536")
            self.e("s_mov_b32 s95, 0x00020000")
            self.e("s_lshl_b32 s96, s2, 4")
            self.e("s_mov_b64 exec, 1")
            self.e("v_mov_b32 v2, s96")
            self.e("v_mov_b32 v0, s98")
            self.e("v_mov_b32 v1, s100")
            self.e("buffer_store_dwordx2 v[0:1], v2, s[92:95], 0 offen")
            self.label(lab)
        self.e("s_endpgm")

    def srd(self, s, base_lo, base_hi, nbytes):
        self.e(f"s_mov_b32 s{s}, {base_lo}")
        self.e(f"s_mov_b32 s{s+1}, {base_hi}")
        self.e(f"s_mov_b32 s{s+2}, {nbytes}")
        self.e(f"s_mov_b32 s{s+3}, 0x00020000")

    def add64(self, d, a, off):
        self.e(f"s_add_u32 s{d}, s{a}, {off}")
        self.e(f"s_addc_u32 s{d+1}, s{a+1}, 0")


class Stamps:
    def __init__(self, a, on, s0=60):
        self.a, self.on, self.s0, self.n = a, on, s0, 0

    def begin(self):
        if not self.on: return
        a = self.a
        a.e(f"s_load_dwordx2 s[{self.s0}:{self.s0+1}], s[0:1], 64")
        a.e(f"s_memrealtime s[{self.s0+2}:{self.s0+3}]")
        self.stamp()

    def stamp(self):
        if not self.on: return
        r = self.s0 + 6 + 2 * self.n
        self.a.e(f"s_memtime s[{r}:{r+1}]")
        self.n += 1

    def trace(self, wave_sgpr, wave, label, region):
        a, s0 = self.a, self.s0
        a.e(f"s_cmp_lg_u32 s{wave_sgpr}, {wave}")
        a.e(f"s_cbranch_scc1 {label}")
        a.e("s_load_dwordx2 s[56:57], s[0:1], 72")
        a.e("s_waitcnt lgkmcnt(0)")
        a.e(f"s_add_u32 s56, s56, {0x8000000 + region*65536}")
        a.e("s_addc_u32 s57, s57, 0")
        a.e("s_mov_b32 s58, 65536")
        a.e("s_mov_b32 s59, 0x00020000")
        a.e("s_lshl_b32 s55, s2, 4")
        a.e("v_mov_b32 v2, s55")
        a.e(f"v_mov_b32 v0, s{s0+2}")
        a.e(f"v_mov_b32 v1, s{s0+4}")
        a.e("buffer_store_dwordx2 v[0:1], v2, s[56:59], 0 offen")
        a.label(label)

    def dump(self, wg, wave_sgpr, wave, label, region=None):
        if not self.on: return
        a, s0 = self.a, self.s0
        a.e(f"s_memrealtime s[{s0+4}:{s0+5}]")
        a.e("s_waitcnt lgkmcnt(0)")
        if region is not None:
            self.trace(wave_sgpr, wave, label + "_tr", region)
        a.e(f"s_cmp_lg_u32 s2, {wg}")
        a.e(f"s_cbranch_scc1 {label}")
        a.e(f"s_cmp_lg_u32 s{wave_sgpr}, {wave}")
        a.e(f"s_cbranch_scc1 {label}")
        a.e(f"s_mov_b32 s56, s{s0}")
        a.e(f"s_mov_b32 s57, s{s0+1}")
        a.e("s_mov_b32 s58, 256")
        a.e("s_mov_b32 s59, 0x00020000")
        a.e("v_mov_b32 v2, 0")
        a.e(f"s_sub_u32 s{s0+4}, s{s0+4}, s{s0+2}")
        a.e(f"v_mov_b32 v0, s{s0+4}")
        a.e("buffer_store_dword v0, v2, s[56:59], 0 offen")
        for i in range(1, self.n):
            r = s0 + 6 + 2 * i
            a.e(f"s_sub_u32 s{s0+5}, s{r}, s{s0+6}")
            a.e(f"v_mov_b32 v0, s{s0+5}")
            a.e(f"buffer_store_dword v0, v2, s[56:59], 0 offen offset:{4*i}")
        a.label(label)


def kd(name, vgpr=256, sgpr=102, accum=None):
    accum = accum or ((vgpr + 3) // 4 * 4)
    return f""".amdhsa_kernel {name}
  .amdhsa_next_free_vgpr {vgpr}
  .amdhsa_next_free_sgpr {sgpr}
  .amdhsa_accum_offset {accum}
  .amdhsa_group_segment_fixed_size 0
  .amdhsa_kernarg_size 80
  .amdhsa_user_sgpr_count 2
  .amdhsa_user_sgpr_kernarg_segment_ptr 1
  .amdhsa_system_sgpr_workgroup_id_x 1
.end_amdhsa_kernel
"""
```

```python
from asmlib import Asm, Stamps
from layout import *


def gemm_kernel(name, conv, exp=""):
    a = Asm()
    if conv == 1:
        NT, S, M, XBIN, WS_X, WS_G, WS_Y = 4, 5, M1, XBIN1, WS_XH1, WS_GH1, WS_YH1
    else:
        NT, S, M, XBIN, WS_X, WS_G, WS_Y = 2, 7, M2, XBIN2, WS_XH2, WS_GH2, WS_YH2
    NSTEP = 16
    ROWS = 84
    ABYTES = 12288
    BP = 2 * NT * 2
    SLOT = ABYTES + BP * 1024
    SPW = 65536 // SLOT
    NWIN = (S + SPW - 1) // SPW
    LDS = S * SLOT
    BPW = BP // 4
    NLD = 3 + BPW
    NWG = 256

    ACCR, ACCI = 0, NT * 12
    FR0 = 2 * NT * 12
    FSZ = NT * 8 + 24
    vAre = FR0 + 2 * FSZ
    vAim = vAre + NWIN
    vB = vAim + NWIN
    vT = vB + NWIN
    NV = vT + 12
    assert NV <= 256

    def G(st, t, ri):
        return FR0 + st * FSZ + (t * 2 + ri) * 4

    def U(st, r, ri):
        return FR0 + st * FSZ + NT * 8 + (r * 2 + ri) * 4

    def accr(t, r):
        return ACCR + (t * 3 + r) * 4

    def acci(t, r):
        return ACCI + (t * 3 + r) * 4

    sA, sB, sY = 8, 12, 16
    sW = 20
    sBin = 21
    sM0 = 22
    sT = 24
    a.label(name)
    a.e(f"s_cmp_ge_u32 s2, {NWG}")
    a.e(f"s_cbranch_scc1 L_{name}_done")
    if "trace" in exp and a.trace_region is None: a.trace_begin(conv*2-1)
    st_ = Stamps(a, "stamp" in exp)
    st_.begin()
    a.e("s_load_dwordx2 s[4:5], s[0:1], 72")
    a.e(f"s_load_dwordx2 s[6:7], s[0:1], {X_PTR}")
    a.e(f"v_readfirstlane_b32 s{sW}, v0")
    a.e(f"s_lshr_b32 s{sW}, s{sW}, 6")
    a.e("s_and_b32 s24, s2, 7")
    a.e("s_lshr_b32 s25, s2, 3")
    a.e("s_lshr_b32 s26, s25, 3")
    a.e("s_lshl_b32 s24, s24, 2")
    a.e(f"s_add_u32 s{sBin}, s24, s26")
    a.e("s_and_b32 s25, s25, 7")
    if conv == 1:
        a.e("s_lshr_b32 s26, s25, 1")
        a.e("s_and_b32 s27, s25, 1")
    else:
        a.e("s_lshr_b32 s26, s25, 2")
        a.e("s_and_b32 s27, s25, 3")
    a.e(f"s_mul_i32 s{sM0}, s26, {ROWS}")
    a.e(f"s_sub_u32 s28, {M}, s{sM0}")
    a.e(f"s_min_u32 s28, s28, {ROWS}")
    a.e("s_waitcnt lgkmcnt(0)")
    a.e(f"s_mul_i32 s29, s{sBin}, {XBIN}")
    a.e(f"s_lshl_b32 s30, s{sM0}, 11")
    a.e("s_add_u32 s29, s29, s30")
    a.e(f"s_add_u32 s29, s29, {WS_X}")
    a.e(f"s_add_u32 s{sA}, s6, s29")
    a.e(f"s_addc_u32 s{sA+1}, s7, 0")
    a.e(f"s_lshl_b32 s{sA+2}, s28, 11")
    a.e(f"s_mov_b32 s{sA+3}, 0x00020000")
    a.e(f"s_mul_i32 s29, s{sBin}, {GBIN}")
    a.e(f"s_mul_i32 s30, s27, {2*NT*2048}")
    a.e("s_add_u32 s29, s29, s30")
    a.e(f"s_add_u32 s29, s29, {WS_G}")
    a.e(f"s_add_u32 s{sB}, s4, s29")
    a.e(f"s_addc_u32 s{sB+1}, s5, 0")
    a.e(f"s_mov_b32 s{sB+2}, {15*32768 + BP*1024}")
    a.e(f"s_mov_b32 s{sB+3}, 0x00020000")
    a.e(f"s_cmp_ge_u32 s{sW}, 4")
    a.e(f"s_cbranch_scc1 L_{name}_loader")

    a.e(f"s_lshl_b32 s29, s{sM0}, 15")
    a.e(f"s_add_u32 s29, s29, {WS_Y}")
    a.e(f"s_add_u32 s{sY}, s4, s29")
    a.e(f"s_addc_u32 s{sY+1}, s5, 0")
    a.e(f"s_lshl_b32 s{sY+2}, s28, 15")
    a.e(f"s_mov_b32 s{sY+3}, 0x00020000")
    a.e(f"s_lshr_b32 s29, s{sW}, 1")
    a.e(f"s_and_b32 s30, s{sW}, 1")
    a.e(f"v_and_b32 v{vT}, 15, v0")
    a.e(f"v_bfe_u32 v{vT+1}, v0, 4, 2")
    a.e(f"v_and_b32 v{vT+2}, 63, v0")
    a.e(f"s_mul_i32 s31, s29, {48*128}")
    a.e(f"v_and_b32 v{vT+3}, 7, v{vT}")
    a.e(f"v_xor_b32 v{vT+3}, v{vT+1}, v{vT+3}")
    a.e(f"v_lshlrev_b32 v{vT+3}, 4, v{vT+3}")
    a.e(f"v_lshl_add_u32 v{vT+3}, v{vT}, 7, v{vT+3}")
    a.e(f"v_add_u32 v{vT+3}, s31, v{vT+3}")
    for w in range(NWIN):
        a.e(f"v_add_u32 v{vAre+w}, {w*SPW*SLOT}, v{vT+3}")
        a.e(f"v_xor_b32 v{vAim+w}, 64, v{vAre+w}")
    a.e(f"s_mul_i32 s31, s30, {NT*2048}")
    a.e(f"s_add_u32 s31, s31, {ABYTES}")
    a.e(f"v_lshlrev_b32 v{vT+3}, 4, v{vT+2}")
    a.e(f"v_add_u32 v{vT+3}, s31, v{vT+3}")
    for w in range(NWIN):
        a.e(f"v_add_u32 v{vB+w}, {w*SPW*SLOT}, v{vT+3}")
    vY = vT + 4
    a.e(f"s_mul_i32 s31, s29, {48*32768}")
    a.e(f"v_lshlrev_b32 v{vY}, 15, v{vT}")
    a.e(f"v_lshl_add_u32 v{vY}, v{vT+1}, 4, v{vY}")
    a.e(f"v_add_u32 v{vY}, s31, v{vY}")
    a.e(f"s_mul_i32 s31, s27, {NT}")
    a.e(f"s_mul_i32 s29, s30, {NT//2}")
    a.e("s_add_u32 s31, s31, s29")
    a.e("s_lshl_b32 s31, s31, 12")
    a.e(f"s_lshl_b32 s29, s{sBin}, 7")
    a.e("s_add_u32 s33, s31, s29")
    a.e("s_mov_b32 s34, 0x80008000")

    def reads(step):
        st = step & 1
        sl = step % S
        w, siw = sl // SPW, sl % SPW
        ops = []
        seq = []
        seq.append(("G", 0, 0))
        seq += [("U", r, 0) for r in range(3)]
        seq += [("G", t, 0) for t in range(1, NT)]
        seq += [("U", r, 1) for r in range(3)]
        seq += [("G", t, 1) for t in range(NT)]
        for kind, x, ri in seq:
            if kind == "G":
                r_ = G(st, x, ri)
                ops.append(f"ds_read_b128 v[{r_}:{r_+3}], v{vB+w} offset:{siw*SLOT + (x*2+ri)*1024}")
            else:
                r_ = U(st, x, ri)
                va = (vAim if ri else vAre) + w
                ops.append(f"ds_read_b128 v[{r_}:{r_+3}], v{va} offset:{siw*SLOT + x*2048}")
        return ops

    def mfma(d, ga, ub, c):
        cs = "0" if c is None else f"v[{c}:{c+3}]"
        return f"v_mfma_f32_16x16x32_bf16 v[{d}:{d+3}], v[{ga}:{ga+3}], v[{ub}:{ub+3}], {cs}"

    st_.stamp()
    a.e("s_barrier")
    st_.stamp()
    for op in reads(0):
        a.e(op)
    a.e("s_waitcnt lgkmcnt(0)")
    a.e("s_barrier")
    NM = NT * 12
    st_.stamp()
    for s in range(NSTEP):
        if s in (1, 4, 8, 12): st_.stamp()
        st = s & 1
        first = s == 0
        mf = []
        for t in range(NT):
            for r in range(3):
                mf.append(mfma(accr(t, r), G(st, t, 0), U(st, r, 0), None if first else accr(t, r)))
        for t in range(NT):
            for r in range(3):
                mf.append(mfma(acci(t, r), G(st, t, 0), U(st, r, 1), None if first else acci(t, r)))
        for t in range(NT):
            for r in range(3):
                mf.append(mfma(acci(t, r), G(st, t, 1), U(st, r, 0), acci(t, r)))
        for t in range(NT):
            for r in range(3):
                mf.append(mfma(accr(t, r), G(st, t, 1), U(st, r, 1), accr(t, r)))
        fill = [[] for _ in range(NM)]
        rd = reads(s + 1) if s + 1 < NSTEP else []
        rstep = 2 if NT == 4 else 1
        for i, op in enumerate(rd):
            fill[i * rstep].append(op)
        xs = [f"v_xor_b32 v{U(st, r, 1)+k}, s34, v{U(st, r, 1)+k}" for r in range(3) for k in range(4)]
        g3 = 2 * NT * 3
        per = 2
        for i, op in enumerate(xs):
            fill[g3 + i // per].append(op)
        assert g3 + (len(xs) - 1) // per <= 3 * NT * 3 - 1
        barpos = NM - (8 if NT == 4 else 4)
        for i in range(NM):
            if "nomfma" not in exp:
                a.e(mf[i])
            for op in fill[i]:
                a.e(op)
            if i == barpos and s + 1 < NSTEP:
                a.e("s_waitcnt lgkmcnt(0)")
                if s + 1 <= NSTEP - 2:
                    a.e("s_barrier")
    st_.stamp()
    a.e("s_nop 7")
    a.e("s_nop 7")
    tmp = FR0
    k = 0
    for ri in (1, 0):
        acc = acci if ri else accr
        for P in range(NT // 2):
            for r in range(3):
                d = tmp + (k % 8) * 4
                k += 1
                a0, a1 = acc(2 * P, r), acc(2 * P + 1, r)
                a.e(f"v_cvt_pk_bf16_f32 v{d}, v{a0}, v{a0+1}")
                a.e(f"v_cvt_pk_bf16_f32 v{d+1}, v{a0+2}, v{a0+3}")
                a.e(f"v_cvt_pk_bf16_f32 v{d+2}, v{a1}, v{a1+1}")
                a.e(f"v_cvt_pk_bf16_f32 v{d+3}, v{a1+2}, v{a1+3}")
                a.e(f"s_add_u32 s35, s33, {r*16*32768 + P*4096}")
                a.e(f"buffer_store_dwordx4 v[{d}:{d+3}], v{vY}, s[{sY}:{sY+3}], s35 offen offset:{ri*64}")
    if st_.on:
        st_.stamp()
        a.e("s_waitcnt vmcnt(0)")
        st_.stamp()
        st_.dump(int(exp.split("wg=")[1].split(",")[0]) if "wg=" in exp else 0, sW, 0, f"L_{name}_nodump")
    a.end()

    a.label(f"L_{name}_loader")
    a.e(f"s_sub_u32 s{sW}, s{sW}, 4")
    vA_, vB_ = 1, 2
    a.e("v_and_b32 v3, 63, v0")
    a.e("v_lshrrev_b32 v4, 3, v3")
    a.e("v_and_b32 v5, 7, v3")
    a.e("v_xor_b32 v5, v5, v4")
    a.e("v_lshlrev_b32 v5, 4, v5")
    a.e(f"v_lshl_add_u32 v{vA_}, v4, 11, v5")
    a.e(f"v_lshlrev_b32 v{vB_}, 4, v3")
    for qi in range(3):
        a.e(f"s_add_u32 s24, s{sW}, {4*qi}")
        a.e(f"s_lshl_b32 s{40+qi}, s24, 10")
        a.e(f"s_lshl_b32 s{43+qi}, s24, 14")
    a.e(f"s_mul_i32 s46, s{sW}, {BPW*1024}")
    a.e(f"s_add_u32 s47, s46, {ABYTES}")

    def issue(step):
        sl = step % S
        for qi in range(3):
            a.e(f"s_add_u32 m0, s{40+qi}, {sl*SLOT}")
            a.e(f"s_add_u32 s24, s{43+qi}, {step*128}")
            a.e(f"buffer_load_dwordx4 v{vA_}, s[{sA}:{sA+3}], s24 offen lds")
            a.vm_issue(step)
        a.e(f"s_add_u32 m0, s47, {sl*SLOT}")
        a.e(f"s_add_u32 s24, s46, {step*32768}")
        for x in range(BPW):
            a.e(f"buffer_load_dwordx4 v{vB_}, s[{sB}:{sB+3}], s24 offen offset:{x*1024} lds")
            a.vm_issue(step)

    a.vm = []
    if "oldramp" in exp:
        for s in range(S):
            issue(s)
        a.wait(vm_tags=(0,))
        a.e("s_barrier")
        for s in range(NSTEP - 1):
            a.wait(vm_tags=(s + 1,))
            a.e("s_barrier")
            if s + S < NSTEP:
                issue(s + S)
    else:
        issue(0)
        issue(1)
        a.wait(vm_tags=(0,))
        a.e("s_barrier")
        nxt = 2
        issue(nxt); nxt += 1
        for s in range(NSTEP - 1):
            a.wait(vm_tags=(s + 1,))
            a.e("s_barrier")
            cnt = 0
            while nxt <= min(s + S, NSTEP - 1) and cnt < 2:
                issue(nxt); nxt += 1; cnt += 1
        assert nxt == NSTEP
    a.label(f"L_{name}_done")
    a.e("s_endpgm")
    return a.text(), LDS, NV
```

```python
from asmlib import Asm, Stamps, f2u
from layout import *
from mid import gelu_group2, GK0, GK1

LOG2E2 = 2.8853900817779268
ATHR = 40.0
BTHR = 84.0


def joint_kernel(name, exp=""):
    a = Asm()
    NWG = 250
    sW = 20
    sR = 21
    STG = 0
    JB = [0, 16384, 32768]
    CSL = 49152
    FB = 65536
    EAP = 1056
    EAT = FB + 16384
    OTP = 528
    OT = [EAT + 32 * EAP, EAT + 32 * EAP + 32 * OTP]
    LDS = OT[1] + 32 * OTP
    sY, sT, sO = 8, 12, 16
    a.label(name)
    a.e(f"s_cmp_ge_u32 s2, {NWG}")
    a.e(f"s_cbranch_scc1 L_{name}_done")
    if "trace" in exp and a.trace_region is None: a.trace_begin(4)
    st_ = Stamps(a, "stamp" in exp)
    HS = "hstamp" in exp
    st_.begin()

    def ms():
        if not HS: st_.stamp()

    def hs():
        if HS: st_.stamp()
    a.e("s_load_dwordx2 s[6:7], s[0:1], 72")
    a.e("s_load_dwordx2 s[4:5], s[0:1], 56")
    a.e(f"v_readfirstlane_b32 s{sW}, v0")
    a.e(f"s_lshr_b32 s{sW}, s{sW}, 6")
    a.e(f"s_and_b32 s{sR}, s{sW}, 3")
    a.e("s_cmp_ge_u32 s2, 125")
    a.e("s_cselect_b32 s24, 1, 0")
    a.e("s_mul_i32 s25, s24, 125")
    a.e("s_sub_u32 s25, s2, s25")
    for jt in range(2):
        a.e(f"s_lshl_b32 s26, s25, 1")
        a.e(f"s_add_u32 s26, s26, {jt}")
        a.e(f"s_mul_i32 s27, s26, 171")
        a.e(f"s_lshr_b32 s{28+jt}, s27, 9")
        a.e(f"s_mul_i32 s27, s{28+jt}, 3")
        a.e(f"s_sub_u32 s{30+jt}, s26, s27")
    lane = 1
    a.e(f"v_and_b32 v{lane}, 63, v0")
    a.e(f"v_lshlrev_b32 v5, 4, v{lane}")
    a.e("s_waitcnt lgkmcnt(0)")
    a.add64(sT, 6, WS_TAB)
    a.e(f"s_mov_b32 s{sT+2}, {TAB_WO + 131072}")
    a.e(f"s_mov_b32 s{sT+3}, 0x00020000")
    a.e("s_mul_i32 s36, s24, 4000")
    a.e("s_lshl_b32 s37, s25, 5")
    a.e("s_add_u32 s36, s36, s37")
    a.e("s_lshl_b32 s36, s36, 12")
    a.e(f"s_add_u32 s{sO}, s4, s36")
    a.e(f"s_addc_u32 s{sO+1}, s5, 0")
    a.e(f"s_mov_b32 s{sO+2}, 131072")
    a.e(f"s_mov_b32 s{sO+3}, 0x00020000")
    a.e(f"s_lshl_b32 s38, s{sR}, 15")

    def w_load(i, tab):
        kp, it = i >> 1, i & 1
        r_ = (it * 16 + kp) * 4
        a.e(f"s_add_u32 s36, s38, {tab + (it*16+kp)*1024}")
        a.e(f"buffer_load_dwordx4 a[{r_}:{r_+3}], v5, s[{sT}:{sT+3}], s36 offen")
        a.vm_issue(("W", i))

    a.e(f"s_cmp_ge_u32 s{sW}, 4")
    a.e(f"s_cbranch_scc1 L_{name}_helper")

    a.e(f"v_lshrrev_b32 v2, 2, v{lane}")
    a.e("v_lshlrev_b32 v2, 6, v2")
    a.e(f"v_lshrrev_b32 v3, 5, v{lane}")
    a.e("v_lshlrev_b32 v3, 1, v3")
    a.e(f"v_and_b32 v4, 3, v{lane}")
    a.e("v_xor_b32 v3, v3, v4")
    a.e("v_lshl_add_u32 v2, v3, 4, v2")
    a.e(f"s_lshl_b32 s34, s{sR}, 14")
    a.e(f"s_lshl_b32 s35, s{sR}, 13")
    a.e(f"s_mul_i32 s33, s24, {NB2*YROW}")
    a.e(f"s_add_u32 s33, s33, {WS_YH2}")
    a.e(f"s_add_u32 s{sY}, s6, s33")
    a.e(f"s_addc_u32 s{sY+1}, s7, 0")
    a.e(f"s_mov_b32 s{sY+2}, {NB2*YROW}")
    a.e(f"s_mov_b32 s{sY+3}, 0x00020000")

    def ydma(jt):
        a.e(f"s_lshl_b32 s36, s{28+jt}, 15")
        a.e("s_add_u32 s36, s36, s35")
        for ci in range(2):
            a.e(f"s_add_u32 m0, s34, {STG + (jt*2+ci)*4096}")
            a.e(f"s_add_u32 s37, s36, {ci*4096}")
            for q in range(4):
                a.e(f"buffer_load_dwordx4 v2, s[{sY}:{sY+3}], s37 offen offset:{q*1024} lds")
                if jt == 0:
                    a.vm_issue(("Y", ci))
    a.e("s_mov_b32 s46, 0")
    a.e("s_cmp_eq_u32 s28, s29")
    a.e(f"s_cbranch_scc1 L_{name}_same")
    ydma(1)
    a.e("s_mov_b32 s46, 8192")
    a.label(f"L_{name}_same")
    FI = 8
    for jt in range(2):
        a.e(f"s_lshl_b32 s36, s{30+jt}, 11")
        a.e(f"s_add_u32 s36, s36, {TAB_FI}")
        for kk in range(2):
            r_ = FI + (jt * 2 + kk) * 4
            a.e(f"buffer_load_dwordx4 v[{r_}:{r_+3}], v5, s[{sT}:{sT+3}], s36 offen offset:{kk*1024}")
            a.vm_issue("FI")
    ydma(0)
    rr, gg, cc = 32, 33, 34
    a.e(f"v_bfe_u32 v{rr}, v{lane}, 2, 2")
    a.e(f"v_lshrrev_b32 v{gg}, 4, v{lane}")
    a.e(f"v_and_b32 v{cc}, 3, v{lane}")
    vI = [[36, 37], [38, 39]]
    a.e(f"v_lshl_add_u32 v35, v{gg}, 3, v{rr}")
    a.e("v_lshlrev_b32 v40, 6, v35")
    a.e(f"v_and_b32 v41, 1, v{gg}")
    a.e("v_lshlrev_b32 v41, 1, v41")
    a.e(f"v_lshrrev_b32 v42, 1, v{cc}")
    a.e("v_xor_b32 v41, v41, v42")
    a.e("v_lshl_add_u32 v40, v41, 4, v40")
    a.e(f"v_and_b32 v42, 1, v{cc}")
    a.e("v_lshl_add_u32 v40, v42, 3, v40")
    a.e(f"v_add_u32 v{vI[0][0]}, s34, v40")
    a.e(f"v_xor_b32 v{vI[0][1]}, 32, v{vI[0][0]}")
    a.e(f"v_add_u32 v{vI[1][0]}, s46, v{vI[0][0]}")
    a.e(f"v_add_u32 v{vI[1][1]}, s46, v{vI[0][1]}")
    vFW = 43
    a.e(f"v_lshrrev_b32 v41, 1, v{gg}")
    a.e("v_lshlrev_b32 v41, 10, v41")
    a.e(f"v_and_b32 v42, 1, v{gg}")
    a.e("v_lshl_add_u32 v41, v42, 9, v41")
    a.e(f"v_and_b32 v42, 15, v{lane}")
    a.e("v_lshl_add_u32 v41, v42, 4, v41")
    a.e(f"s_lshl_b32 s36, s{sR}, 12")
    a.e(f"s_add_u32 s36, s36, {FB}")
    a.e(f"v_add_u32 v{vFW}, s36, v41")
    vK0 = 44
    a.e(f"s_mov_b32 s40, 0x{f2u(GK1):08x}")
    a.e(f"v_mov_b32 v{vK0}, 0x{f2u(GK0):08x}")
    ms()
    AA, DD, TT, PK = [48, 84], [64, 100], 72, [80, 108]
    units = [(jt, ci) for ci in range(2) for jt in range(2)]

    def a_reads(ui):
        jt, ci = units[ui]
        for t in range(2):
            for kk in range(2):
                r_ = AA[ui & 1] + (t * 2 + kk) * 4
                for xx in range(2):
                    a.e(f"ds_read_b64_tr_b16 v[{r_+2*xx}:{r_+2*xx+1}], v{vI[jt][t]} offset:{ci*4096 + kk*2048 + xx*256}")
                    a.lg_issue(("AR", ui))
    a.lg = []
    a.wait(vm_tags=(("Y", 0),))
    ms()
    a_reads(0)
    for ui, (jt, ci) in enumerate(units):
        if ui == 1:
            a.wait(vm_tags=(("Y", 1),))
        a.wait(lg_tags=(("AR", ui),))
        for kk in range(2):
            for t in range(2):
                d = DD[ui & 1] + t * 4
                r_ = AA[ui & 1] + (t * 2 + kk) * 4
                f = FI + (jt * 2 + kk) * 4
                c = "0" if kk == 0 else f"v[{d}:{d+3}]"
                a.e(f"v_mfma_f32_16x16x32_bf16 v[{d}:{d+3}], v[{r_}:{r_+3}], v[{f}:{f+3}], {c}")
        if ui + 1 < 4:
            a_reads(ui + 1)
        else:
            a.e("s_nop 7")
        xs = [DD[ui & 1] + i for i in range(8)]
        gelu_group2(a, xs, TT, vK0, 40)
        pk = PK[ui & 1]
        for i in range(4):
            a.e(f"v_cvt_pk_bf16_f32 v{pk+i}, v{xs[2*i]}, v{xs[2*i+1]}")
        a.e(f"ds_write_b128 v{vFW}, v[{pk}:{pk+3}] offset:{ci*2048 + jt*256}")
        a.lg_issue(("FW", ui))
    ms()
    nw = 0
    a.e("s_waitcnt lgkmcnt(0)")
    a.e("s_barrier")
    a.lg = []
    while nw < 32:
        w_load(nw, TAB_WO); nw += 1
    ACC = [8, 40]
    CS = 72
    JR = 104
    NJR, PRE = 4, 3
    OP = 120
    vJR, vOW = 5, 6
    a.e(f"v_and_b32 v46, 31, v{lane}")
    a.e(f"v_mul_u32_u24 v47, {OTP}, v46")
    a.e(f"v_lshrrev_b32 v45, 5, v{lane}")
    a.e(f"v_lshl_add_u32 v47, v45, 4, v47")
    a.e(f"s_lshl_b32 s36, s{sR}, 7")
    a.e(f"s_add_u32 s36, s36, {OT[0]}")
    a.e(f"v_add_u32 v{vOW}, s36, v47")
    a.e(f"v_lshlrev_b32 v7, 6, v45")
    a.e(f"s_lshl_b32 s36, s{sR}, 8")
    a.e(f"s_add_u32 s36, s36, {TAB_CS}")
    for it in range(2):
        for x in range(4):
            a.e(f"buffer_load_dwordx4 v[{CS+16*it+4*x}:{CS+16*it+4*x+3}], v7, s[{sT}:{sT+3}], s36 offen offset:{it*128 + x*16}")
    if "noprio" not in exp:
        a.e("s_setprio 1")
    a.e("s_waitcnt vmcnt(0)")
    a.vm = []
    ms()
    a.e("s_barrier")
    ms()
    a.lg = []

    def emit(op):
        s, tag = op
        if s is not None:
            if "j_nostore" in exp and s.startswith("buffer_store"): return
        if tag and tag[0] == "wait_lg":
            a.wait(lg_tags=tag[1])
            return
        a.e(s)
        if tag:
            if tag[0] == "lg": a.lg_issue(tag[1])
            else: a.vm_issue(tag[1])

    def jread(i, k):
        r_ = JR + ((16 * i + k) % NJR) * 4
        a.e(f"ds_read_b128 v[{r_}:{r_+3}], v{vJR} offset:{JB[i % 3] + k*1024}")
        a.lg_issue(("JR", i, k))

    def out_wr(i):
        ops = []
        acc = ACC[i & 1]
        dlt = OT[i & 1] - OT[0]
        for it in range(2):
            for qp in range(2):
                r_ = OP + qp * 4
                for k in range(4):
                    s0 = acc + it * 16 + qp * 8 + 2 * k
                    ops.append((f"v_cvt_pk_bf16_f32 v{r_+k}, v{s0}, v{s0+1}", None))
                ops.append((f"ds_write_b128 v{vOW}, v[{r_}:{r_+3}] offset:{dlt + it*64 + qp*32}", ("lg", ("OW", i))))
        return ops

    for k in range(PRE): jread(0, k)
    for u in range(8):
        acc = ACC[u & 1]
        per = [[] for _ in range(32)]
        if u > 0:
            ow = out_wr(u - 1)
            for i, op in enumerate(ow):
                per[2 + (i * 20) // len(ow)].append(op)
        for k in range(16):
            a.wait(lg_tags=(("JR", u, k),))
            r_ = JR + ((16 * u + k) % NJR) * 4
            for it in range(2):
                d = acc + it * 16
                w_ = (it * 16 + k) * 4
                c = f"v[{CS+16*it}:{CS+16*it+15}]" if k == 0 else f"v[{d}:{d+15}]"
                a.e(f"v_mfma_f32_32x32x16_bf16 v[{d}:{d+15}], a[{w_}:{w_+3}], v[{r_}:{r_+3}], {c}")
                if it == 0:
                    if k + PRE < 16:
                        jread(u, k + PRE)
                    elif u + 1 < 8:
                        jread(u + 1, k + PRE - 16)
                for op in per[2 * k + it]: emit(op)
            if k == 15:
                a.wait(lg_tags=(("OW", u - 1),))
                a.e("s_barrier")
        if u == 0: ms()
    ms()
    a.e("s_nop 7")
    a.e("s_nop 7")
    for op in out_wr(7): emit(op)
    a.wait(lg_tags=(("OW", 7),))
    a.e("s_barrier")
    if st_.on and not HS:
        ms()
        st_.dump(int(exp.split("wg=")[1].split(",")[0]) if "wg=" in exp else 0, sW, 0, f"L_{name}_nodump")
    a.end()

    a.label(f"L_{name}_helper")
    a.vm = []
    a.lg = []
    nw = 0
    EBV = 96
    while nw < 32:
        w_load(nw, TAB_WF); nw += 1
    a.e(f"v_and_b32 v45, 7, v{lane}")
    a.e("v_lshlrev_b32 v45, 10, v45")
    a.e(f"v_lshrrev_b32 v46, 5, v{lane}")
    a.e("v_lshl_add_u32 v45, v46, 4, v45")
    a.e("s_lshl_b32 s36, s24, 13")
    a.e(f"s_lshl_b32 s37, s{sR}, 8")
    a.e("s_add_u32 s36, s36, s37")
    a.e(f"s_add_u32 s37, s36, {TAB_BP}")
    for it in range(2):
        for q in range(4):
            r_ = EBV + (it * 4 + q) * 4
            a.e(f"buffer_load_dwordx4 v[{r_}:{r_+3}], v45, s[{sT}:{sT+3}], s37 offen offset:{(32*it + 8*q)*4}")
            a.vm_issue("BP")
    hs()
    a.e("s_barrier")
    hs()
    ACF, BFR = 32, 64
    a.e(f"v_add_u32 v7, {FB}, v5")
    for half in range(2):
        for k8 in range(8):
            kp = half * 8 + k8
            a.e(f"ds_read_b128 v[{BFR+4*k8}:{BFR+4*k8+3}], v7 offset:{kp*1024}")
        a.e("s_waitcnt lgkmcnt(0)")
        for k8 in range(8):
            kp = half * 8 + k8
            a.wait(vm_tags=[("W", 2 * kp + 1)])
            for it in range(2):
                d = ACF + it * 16
                w_ = (it * 16 + kp) * 4
                c = "0" if kp == 0 else f"v[{d}:{d+15}]"
                a.e(f"v_mfma_f32_32x32x16_bf16 v[{d}:{d+15}], a[{w_}:{w_+3}], v[{BFR+4*k8}:{BFR+4*k8+3}], {c}")
    hs()
    a.wait(vm_tags=("BP",))
    a.e(f"v_max3_f32 v8, |v{EBV}|, |v{EBV+1}|, |v{EBV+2}|")
    for i in range(3, 31, 2):
        a.e(f"v_max3_f32 v8, v8, |v{EBV+i}|, |v{EBV+i+1}|")
    a.e(f"v_max_f32 v8, v8, |v{EBV+31}|")
    a.e(f"s_mov_b32 s41, 0x{f2u(BTHR):08x}")
    a.e("v_cmp_lt_f32 s[42:43], s41, v8")
    vJW, vEA, vOR, vOS, vEW = 2, 4, 6, 7, 9
    a.e(f"s_lshl_b32 s36, s{sR}, 12")
    a.e(f"v_add_u32 v{vJW}, s36, v5")
    a.e(f"v_lshrrev_b32 v10, 5, v{lane}")
    a.e(f"v_lshlrev_b32 v11, 4, v10")
    a.e(f"s_lshl_b32 s36, s{sR}, 8")
    a.e(f"s_add_u32 s36, s36, {EAT}")
    a.e(f"v_add_u32 v11, s36, v11")
    a.e(f"v_and_b32 v12, 31, v{lane}")
    a.e(f"v_mul_u32_u24 v13, {EAP}, v12")
    a.e(f"v_add_u32 v{vEW}, v11, v13")
    a.e(f"v_lshrrev_b32 v13, 3, v12")
    a.e(f"v_mul_u32_u24 v13, {EAP}, v13")
    a.e(f"v_add_u32 v{vEA}, v11, v13")
    a.e(f"s_lshl_b32 s36, s{sR}, 3")
    a.e(f"v_add_u32 v10, s36, v10")
    a.e(f"v_mul_u32_u24 v13, {OTP}, v10")
    a.e(f"v_lshl_add_u32 v13, v12, 4, v13")
    a.e(f"v_add_u32 v{vOR}, {OT[0]}, v13")
    a.e(f"v_lshlrev_b32 v13, 9, v10")
    a.e(f"v_lshl_add_u32 v{vOS}, v12, 4, v13")
    AP = 64
    a.e(f"s_mov_b32 s41, 0x{f2u(LOG2E2):08x}")
    for i in range(32):
        a.e(f"v_mul_f32 v{AP+i}, s41, v{ACF+i}")
    a.e(f"v_max3_f32 v8, |v{AP}|, |v{AP+1}|, |v{AP+2}|")
    for i in range(3, 31, 2):
        a.e(f"v_max3_f32 v8, v8, |v{AP+i}|, |v{AP+i+1}|")
    a.e(f"v_max_f32 v8, v8, |v{AP+31}|")
    a.e(f"s_mov_b32 s41, 0x{f2u(ATHR):08x}")
    a.e("v_cmp_lt_f32 vcc, s41, v8")
    a.e("s_nop 3")
    a.e("s_or_b64 s[42:43], s[42:43], vcc")
    a.e("s_cmp_lg_u64 s[42:43], 0")
    a.e("s_cselect_b32 s44, 1, 0")
    if "forceslow" in exp:
        a.e("s_mov_b32 s44, 1")
    a.e("s_cmp_lg_u32 s44, 0")
    a.e(f"s_cbranch_scc1 L_{name}_slow")
    vm2 = list(a.vm)

    def helper(slow):
        a.vm = list(vm2)
        a.lg = []
        EAV = 32
        TT = 64
        JP = 80
        if not slow:
            for i in range(32):
                a.e(f"v_exp_f32 v{ACF+i}, v{AP+i}")
            for i in range(32):
                a.e(f"v_exp_f32 v{EBV+i}, v{EBV+i}")
            src = ACF
        else:
            src = AP
        for it in range(2):
            for q in range(4):
                r_ = src + (it * 4 + q) * 4
                a.e(f"ds_write_b128 v{vEW}, v[{r_}:{r_+3}] offset:{(32*it + 8*q)*4}")
        a.e("s_waitcnt lgkmcnt(0)")

        def ea_read(i, grp):
            it, qp = grp >> 1, grp & 1
            for s_ in range(2):
                q = 2 * qp + s_
                r_ = EAV + (it * 4 + q) * 4
                a.e(f"ds_read_b128 v[{r_}:{r_+3}], v{vEA} offset:{i*4*EAP + (32*it + 8*q)*4}")
                a.lg_issue(("EA", i, grp))

        def tanh(i, mid=None):
            for grp in range(4):
                t0 = TT + (grp & 1) * 8
                jp = JP + (grp & 1) * 4
                a.wait(lg_tags=(("EA", i, grp),))
                for x in range(8):
                    if slow: a.e(f"v_add_f32 v{t0+x}, v{EAV+grp*8+x}, v{EBV+grp*8+x}")
                    else: a.e(f"v_fma_f32 v{t0+x}, v{EAV+grp*8+x}, v{EBV+grp*8+x}, 1.0")
                if i + 1 < 8: ea_read(i + 1, grp)
                if slow:
                    for x in range(8): a.e(f"v_exp_f32 v{t0+x}, v{t0+x}")
                    for x in range(8): a.e(f"v_add_f32 v{t0+x}, 1.0, v{t0+x}")
                for x in range(8): a.e(f"v_rcp_f32 v{t0+x}, v{t0+x}")
                if mid and grp in mid: mid[grp]()
                else: a.e("s_nop 0")
                for k in range(4):
                    a.e(f"v_cvt_pk_bf16_f32 v{jp+k}, v{t0+2*k}, v{t0+2*k+1}")
                a.e(f"ds_write_b128 v{vJW}, v[{jp}:{jp+3}] offset:{JB[i % 3] + grp*1024}")
                a.lg_issue(("JW", i))

        def out_rd(i, ks=(0, 1, 2, 3)):
            dlt = OT[i & 1] - OT[0]
            for k in ks:
                a.e(f"ds_read_b128 a[{4*k}:{4*k+3}], v{vOR} offset:{dlt + 2*k*OTP}")
                a.lg_issue(("OR", i, k))

        def out_st(i, ks=(0, 1, 2, 3)):
            for k in ks:
                a.wait(lg_tags=(("OR", i, k),))
                if "j_nostore" in exp: continue
                a.e(f"s_mov_b32 s36, {i*16384 + k*1024}")
                a.e(f"buffer_store_dwordx4 a[{4*k}:{4*k+3}], v{vOS}, s[{sO}:{sO+3}], s36 offen")
                a.vm_issue(("O", i))

        if not slow: hs()
        for grp in range(4): ea_read(0, grp)
        tanh(0)
        tanh(1)
        a.wait(lg_tags=(("JW", 1),))
        if not slow: hs()
        a.e("s_barrier")
        if not slow: hs()
        mark = len(a.L)
        for u in range(8):
            if "j_hidle" in exp:
                a.e("s_barrier")
                continue
            if u >= 2:
                out_rd(u - 2)
            if u + 2 < 8:
                mid = {}
                if u >= 2:
                    mid = {0: (lambda uu=u: out_st(uu - 2, (0, 1))), 1: (lambda uu=u: out_st(uu - 2, (2, 3)))}
                tanh(u + 2, mid)
                a.wait(lg_tags=(("JW", u + 2),))
            elif u >= 2:
                out_st(u - 2)
            if not slow and u in (2, 3): hs()
            a.e("s_barrier")
            if not slow and u in (2, 3): hs()
        if "j_hnovalu" in exp:
            a.L[mark:] = [l for l in a.L[mark:] if not l.strip().startswith("v_")]
        if "j_hnolds" in exp:
            a.L[mark:] = [l for l in a.L[mark:] if not l.strip().startswith("ds_")]
        if "j_hnotrans" in exp:
            a.L[mark:] = [l for l in a.L[mark:] if not l.strip().startswith("v_rcp")]
        out_rd(6)
        out_st(6)
        a.e("s_barrier")
        out_rd(7)
        out_st(7)
        if st_.on and HS and not slow:
            st_.stamp()
            a.e("s_waitcnt vmcnt(0)")
            st_.stamp()
            st_.dump(0, sW, 4, f"L_{name}_nodump")
        a.end()

    helper(False)
    a.label(f"L_{name}_slow")
    helper(True)
    a.label(f"L_{name}_done")
    a.e("s_endpgm")
    return a.text(), LDS, 256, NWG
```

```python
NFFT = 64
V = 48
NBINS = 32
NB1 = 167
NB2 = 84
M1 = 2 * NB1
M2 = 2 * NB2
XROW = 2048
XBIN1 = M1 * XROW
XBIN2 = M2 * XROW
GBIN = 524288 + 4352
import os as _os
YROW = int(_os.environ.get('YROW', '37120'))


def al(x, a=4096):
    return (x + a - 1) // a * a


WS_XH1 = int(_os.environ.get('WSB', '0')) << 20
WS_GH1 = al(WS_XH1 + NBINS * XBIN1 + 65536)
WS_YH1 = al(WS_GH1 + NBINS * GBIN)
WS_XH2 = al(WS_YH1 + M1 * YROW)
WS_GH2 = al(WS_XH2 + NBINS * XBIN2 + 65536)
WS_YH2 = al(WS_GH2 + NBINS * GBIN)
WS_TAB = al(WS_YH2 + M2 * YROW)
import os
REUSE = int(os.environ.get("REUSE", "0"))
X_PTR = 72
if REUSE in (1, 2):
    WS_XH2, WS_GH2, WS_YH2 = WS_XH1, WS_GH1, WS_YH1
if REUSE in (2, 3):
    X_PTR = 56
    WS_XH1 = WS_XH2 = 0
TAB_F = 0
TAB_FI = 8192
TAB_BP = 16384
TAB_CS = 14336
TAB_WF = 32768
TAB_WO = TAB_WF + 131072
WS_END = al(WS_TAB + TAB_WO + 131072)


def pi(q):
    g, t, e = q >> 3, (q >> 2) & 1, q & 3
    return 16 * t + 4 * g + e


if __name__ == "__main__":
    for k in ("WS_XH1", "WS_GH1", "WS_YH1", "WS_XH2", "WS_GH2", "WS_YH2", "WS_TAB", "WS_END"):
        print(k, hex(globals()[k]), globals()[k] / 1e6)
```

```python
from asmlib import Asm, Stamps, f2u
from layout import *
from prep import ghat_part

GK0 = -2.302208198144325
GK1 = GK0 * 0.044715


def gelu_group(a, xs, tmp, s0):
    n = len(xs)
    for i, x in enumerate(xs):
        a.e(f"v_mul_f32 v{tmp+i}, v{x}, v{x}")
    for i, x in enumerate(xs):
        a.e(f"v_fma_f32 v{tmp+i}, v{tmp+i}, s{s0}, v{x}") if False else None
    for i, x in enumerate(xs):
        a.e(f"v_mul_f32 v{tmp+i}, s{s0}, v{tmp+i}")
    for i, x in enumerate(xs):
        a.e(f"v_add_f32 v{tmp+i}, s{s0+1}, v{tmp+i}")
    for i, x in enumerate(xs):
        a.e(f"v_mul_f32 v{tmp+i}, v{tmp+i}, v{x}")
    for i, x in enumerate(xs):
        a.e(f"v_exp_f32 v{tmp+i}, v{tmp+i}")
    for i, x in enumerate(xs):
        a.e(f"v_add_f32 v{tmp+i}, 1.0, v{tmp+i}")
    for i, x in enumerate(xs):
        a.e(f"v_rcp_f32 v{tmp+i}, v{tmp+i}")
    for i, x in enumerate(xs):
        a.e(f"v_mul_f32 v{x}, v{x}, v{tmp+i}")


def gelu_group2(a, xs, tmp, vk1, s0):
    for i, x in enumerate(xs):
        a.e(f"v_mul_f32 v{tmp+i}, v{x}, v{x}")
    for i, x in enumerate(xs):
        a.e(f"v_fma_f32 v{tmp+i}, v{tmp+i}, s{s0}, v{vk1}")
    for i, x in enumerate(xs):
        a.e(f"v_mul_f32 v{tmp+i}, v{tmp+i}, v{x}")
    for i, x in enumerate(xs):
        a.e(f"v_exp_f32 v{tmp+i}, v{tmp+i}")
    for i, x in enumerate(xs):
        a.e(f"v_add_f32 v{tmp+i}, 1.0, v{tmp+i}")
    for i, x in enumerate(xs):
        a.e(f"v_rcp_f32 v{tmp+i}, v{tmp+i}")
    for i, x in enumerate(xs):
        a.e(f"v_mul_f32 v{x}, v{x}, v{tmp+i}")


def mid_kernel(name, exp=""):
    a = Asm()
    NMAIN = 2 * 28 * 8
    G2 = "g2inprep" not in exp
    NWG = NMAIN + (256 if G2 else 0)
    sW = 20
    STG = 0
    HT = 32768
    PL = 160 * 64
    LDS = HT + 2 * PL
    SH0, SH1 = 17 * 64, 16 * 64
    sY, sT, sO = 8, 12, 16
    a.label(name)
    a.e(f"s_cmp_ge_u32 s2, {NWG}")
    a.e(f"s_cbranch_scc1 L_{name}_done")
    if "trace" in exp and a.trace_region is None: a.trace_begin(2)
    st_ = Stamps(a, "stamp" in exp)
    st_.begin()
    a.e(f"v_readfirstlane_b32 s{sW}, v0")
    a.e(f"s_lshr_b32 s{sW}, s{sW}, 6")
    if G2:
        a.e(f"s_cmp_ge_u32 s2, {NMAIN}")
        a.e(f"s_cbranch_scc1 L_{name}_g")
    a.e("s_load_dwordx2 s[6:7], s[0:1], 72")
    a.e(f"s_load_dwordx2 s[4:5], s[0:1], {X_PTR}")
    a.e("s_cmp_ge_u32 s2, 224")
    a.e("s_cselect_b32 s24, 1, 0")
    a.e("s_mul_i32 s25, s24, 224")
    a.e("s_sub_u32 s25, s2, s25")
    a.e("s_lshr_b32 s26, s25, 3")
    a.e("s_and_b32 s27, s25, 7")
    lane = 1
    a.e(f"v_and_b32 v{lane}, 63, v0")
    a.e(f"v_lshrrev_b32 v2, 2, v{lane}")
    a.e("v_lshlrev_b32 v2, 6, v2")
    a.e(f"v_lshrrev_b32 v3, 5, v{lane}")
    a.e("v_lshlrev_b32 v3, 1, v3")
    a.e(f"v_and_b32 v4, 3, v{lane}")
    a.e("v_xor_b32 v3, v3, v4")
    a.e("v_lshl_add_u32 v2, v3, 4, v2")
    a.e("s_mul_i32 s28, s26, 6")
    a.e(f"s_lshl_b32 s29, s{sW}, 1")
    a.e("s_add_u32 s28, s28, s29")
    a.e("s_sub_u32 s28, s28, 1")
    a.e("s_lshl_b32 s30, s27, 12")
    for bb in range(2):
        a.e(f"s_add_u32 s31, s28, {bb}")
        a.e("s_lshl_b32 s32, s31, 15")
        a.e("s_add_u32 s32, s32, s30")
        a.e("s_cmp_lt_i32 s31, 0")
        a.e("s_cselect_b32 s32, 0x7f000000, s32")
        a.e(f"v_add_u32 v{3+bb}, s32, v2")
    a.e("s_waitcnt lgkmcnt(0)")
    a.e(f"s_mul_i32 s33, s24, {NB1*YROW}")
    a.e(f"s_add_u32 s33, s33, {WS_YH1}")
    a.e(f"s_add_u32 s{sY}, s6, s33")
    a.e(f"s_addc_u32 s{sY+1}, s7, 0")
    a.e(f"s_mov_b32 s{sY+2}, {NB1*YROW}")
    a.e(f"s_mov_b32 s{sY+3}, 0x00020000")
    a.add64(sT, 6, WS_TAB)
    a.e(f"s_mov_b32 s{sT+2}, 16384")
    a.e(f"s_mov_b32 s{sT+3}, 0x00020000")
    a.e(f"s_lshl_b32 s34, s{sW}, 13")
    for bb in range(2):
        a.e(f"s_add_u32 m0, s34, {STG + bb*4096}")
        a.e("s_nop 0")
        for q in range(4):
            a.e(f"buffer_load_dwordx4 v{3+bb}, s[{sY}:{sY+3}], 0 offen offset:{q*1024} lds")
            a.vm_issue(("Y", bb))
    FI, FF = 8, 32
    a.e(f"v_lshlrev_b32 v5, 4, v{lane}")
    for jt in range(3):
        for kk in range(2):
            r_ = FI + (jt * 2 + kk) * 4
            a.e(f"s_mov_b32 s35, {TAB_FI + (jt*2+kk)*1024}")
            a.e(f"buffer_load_dwordx4 v[{r_}:{r_+3}], v5, s[{sT}:{sT+3}], s35 offen")
            a.vm_issue("FI")
    a.e(f"s_lshl_b32 s35, s{sW}, 11")
    for kk in range(2):
        a.e(f"buffer_load_dwordx4 v[{FF+4*kk}:{FF+4*kk+3}], v5, s[{sT}:{sT+3}], s35 offen offset:{TAB_F + kk*1024}")
        a.vm_issue("F")
    rr, gg, cc = 40, 41, 42
    a.e(f"v_bfe_u32 v{rr}, v{lane}, 2, 2")
    a.e(f"v_lshrrev_b32 v{gg}, 4, v{lane}")
    a.e(f"v_and_b32 v{cc}, 3, v{lane}")
    vI = [44, 45]
    a.e(f"v_lshl_add_u32 v43, v{gg}, 3, v{rr}")
    a.e(f"v_lshlrev_b32 v46, 6, v43")
    a.e(f"v_and_b32 v47, 1, v{gg}")
    a.e("v_lshlrev_b32 v47, 1, v47")
    a.e(f"v_lshrrev_b32 v48, 1, v{cc}")
    a.e("v_xor_b32 v47, v47, v48")
    a.e("v_lshl_add_u32 v46, v47, 4, v46")
    a.e(f"v_and_b32 v48, 1, v{cc}")
    a.e("v_lshl_add_u32 v46, v48, 3, v46")
    a.e(f"v_add_u32 v{vI[0]}, s34, v46")
    a.e(f"v_xor_b32 v{vI[1]}, 32, v{vI[0]}")
    vF0 = [49, 50]
    a.e(f"v_add_u32 v{vF0[0]}, {HT + PL + 16*64 - SH1}, v46")
    a.e(f"v_xor_b32 v{vF0[1]}, 32, v{vF0[0]}")
    vF1 = [[51, 52], [53, 54]]
    for xx in range(2):
        a.e(f"v_add_u32 v47, {1 + 4*xx}, v43")
        a.e("v_bfe_u32 v48, v47, 3, 1")
        a.e("v_lshlrev_b32 v48, 1, v48")
        a.e(f"v_lshrrev_b32 v55, 1, v{cc}")
        a.e("v_xor_b32 v48, v48, v55")
        a.e(f"v_lshlrev_b32 v47, 6, v47")
        a.e("v_lshl_add_u32 v47, v48, 4, v47")
        a.e(f"v_and_b32 v48, 1, v{cc}")
        a.e("v_lshl_add_u32 v47, v48, 3, v47")
        a.e(f"v_add_u32 v{vF1[xx][0]}, {HT + 16*64 - SH0}, v47")
        a.e(f"v_xor_b32 v{vF1[xx][1]}, 32, v{vF1[xx][0]}")
    vH = [56, 57]
    vRho = 62 + 60
    a.e(f"v_and_b32 v47, 1, v{lane}")
    a.e(f"v_mul_u32_u24 v55, {PL - SH1 + SH0}, v47")
    a.e(f"v_bfe_u32 v48, v{lane}, 1, 3")
    a.e("v_lshl_add_u32 v55, v48, 6, v55")
    a.e(f"v_lshl_add_u32 v55, v{gg}, 4, v55")
    a.e(f"s_mul_i32 s35, s{sW}, {48*64}")
    a.e(f"s_add_u32 s35, s35, {HT - SH0}")
    a.e(f"v_add_u32 v{vH[0]}, s35, v55")
    a.e(f"v_xor_b32 v{vH[1]}, 32, v{vH[0]}")
    a.e(f"s_mul_i32 s35, s{sW}, 48")
    a.e(f"s_sub_u32 s35, s35, 17")
    a.e(f"v_add_u32 v{vRho}, v48, v47")
    a.e(f"v_add_u32 v{vRho}, s35, v{vRho}")
    vS = 58
    a.e(f"s_mov_b32 s35, {XBIN2}")
    a.e(f"v_mul_lo_u32 v{vS}, v48, s35")
    a.e(f"v_and_b32 v47, 1, v{lane}")
    a.e(f"v_lshl_add_u32 v{vS}, v47, 6, v{vS}")
    a.e(f"v_lshl_add_u32 v{vS}, v{gg}, 4, v{vS}")
    vK0 = 59
    a.e(f"s_mov_b32 s36, 0x{f2u(GK1):08x}")
    a.e(f"v_mov_b32 v{vK0}, 0x{f2u(GK0):08x}")
    a.add64(sO, 4, WS_XH2)
    a.e(f"s_mov_b32 s{sO+2}, {32*XBIN2}")
    a.e(f"s_mov_b32 s{sO+3}, 0x00020000")
    a.e(f"s_mul_i32 s37, s{sW}, {8*XBIN2}")
    a.e(f"s_mul_i32 s38, s24, {NB2}")
    a.e("s_mul_i32 s39, s26, 3")
    a.e("s_add_u32 s38, s38, s39")
    a.e("s_lshl_b32 s38, s38, 11")
    a.e("s_add_u32 s37, s37, s38")
    a.e("s_lshl_b32 s38, s27, 7")
    a.e("s_add_u32 s37, s37, s38")
    AA, DD, TT, PK = 60, 76, 100, 108
    st_.stamp()
    for bb in range(2):
        a.wait(vm_tags=(("Y", bb),) if bb == 1 else (("Y", 0), "FI"))
        if bb == 0:
            st_.stamp()
        for t in range(2):
            for kk in range(2):
                r_ = AA + (t * 2 + kk) * 4
                for xx in range(2):
                    a.e(f"ds_read_b64_tr_b16 v[{r_+2*xx}:{r_+2*xx+1}], v{vI[t]} offset:{bb*4096 + kk*2048 + xx*256}")
        a.e("s_waitcnt lgkmcnt(0)")
        for kk in range(2):
            for jt in range(3):
                for t in range(2):
                    d = DD + (jt * 2 + t) * 4
                    r_ = AA + (t * 2 + kk) * 4
                    f = FI + (jt * 2 + kk) * 4
                    c = "0" if kk == 0 else f"v[{d}:{d+3}]"
                    a.e(f"v_mfma_f32_16x16x32_bf16 v[{d}:{d+3}], v[{r_}:{r_+3}], v[{f}:{f+3}], {c}")
        a.e(f"s_add_u32 s31, s28, {bb}")
        a.e(f"s_cmp_eq_u32 s31, {NB1-1}")
        a.e("s_cselect_b32 s39, 0, -1")
        a.e("s_nop 4")
        for jt in range(3):
            xs = [DD + jt * 8 + i for i in range(8)]
            gelu_group2(a, xs, TT, vK0, 36)
            pk = PK + jt * 4
            for i in range(4):
                a.e(f"v_cvt_pk_bf16_f32 v{pk+i}, v{xs[2*i]}, v{xs[2*i+1]}")
            if jt == 2:
                for i in range(4):
                    a.e(f"v_and_b32 v{pk+i}, s39, v{pk+i}")
            a.e(f"v_add_u32 v{vRho+1}, {24*bb + 8*jt}, v{vRho}")
            a.e(f"v_cmp_gt_u32 vcc, 160, v{vRho+1}")
            a.e("s_nop 0")
            a.e("s_and_saveexec_b64 s[40:41], vcc")
            a.e(f"ds_write_b128 v{vH[(bb + jt) & 1]}, v[{pk}:{pk+3}] offset:{(24*bb + 8*jt)*64}")
            a.e("s_mov_b64 exec, s[40:41]")
    st_.stamp()
    a.wait(vm_tags=("F",))
    a.e("s_waitcnt lgkmcnt(0)")
    a.e("s_barrier")
    st_.stamp()
    units = [(aa, p) for aa in range(3) for p in range(2)]
    A2 = [60, 76]
    D2 = [92, 100]
    PK2 = [108, 112]

    def fwd_reads(u):
        aa, p = units[u]
        base = A2[u & 1]
        for t in range(2):
            for kk in range(2):
                r_ = base + (t * 2 + kk) * 4
                for xx in range(2):
                    if p == 0:
                        va, off = vF0[t], (48 * aa + 32 * kk + 4 * xx) * 64
                    else:
                        va, off = vF1[xx][t], (48 * aa + 32 * kk) * 64
                    a.e(f"ds_read_b64_tr_b16 v[{r_+2*xx}:{r_+2*xx+1}], v{va} offset:{off}")
                    a.lg_issue(("A2", u))

    a.lg = []
    fwd_reads(0)
    for u, (aa, p) in enumerate(units):
        a.wait(lg_tags=(("A2", u),))
        if u + 1 < len(units):
            pass
        base = A2[u & 1]
        dd = D2[u & 1]
        for kk in range(2):
            for t in range(2):
                d = dd + t * 4
                r_ = base + (t * 2 + kk) * 4
                c = "0" if kk == 0 else f"v[{d}:{d+3}]"
                a.e(f"v_mfma_f32_16x16x32_bf16 v[{d}:{d+3}], v[{r_}:{r_+3}], v[{FF+4*kk}:{FF+4*kk+3}], {c}")
        if u + 1 < len(units):
            fwd_reads(u + 1)
        else:
            a.e("s_nop 7")
        pk = PK2[u & 1]
        a.e(f"v_cvt_pk_bf16_f32 v{pk}, v{dd}, v{dd+1}")
        a.e(f"v_cvt_pk_bf16_f32 v{pk+1}, v{dd+2}, v{dd+3}")
        a.e(f"v_cvt_pk_bf16_f32 v{pk+2}, v{dd+4}, v{dd+5}")
        a.e(f"v_cvt_pk_bf16_f32 v{pk+3}, v{dd+6}, v{dd+7}")
        a.e(f"s_add_u32 s38, s37, {aa*2048 + p*8*128}")
        a.e(f"buffer_store_dwordx4 v[{pk}:{pk+3}], v{vS}, s[{sO}:{sO+3}], s38 offen")
    if st_.on:
        st_.stamp()
        a.e("s_waitcnt vmcnt(0)")
        st_.stamp()
        st_.dump(int(exp.split("wg=")[1].split(",")[0]) if "wg=" in exp else 0, sW, 0, f"L_{name}_nodump")
    a.end()
    if G2:
        a.label(f"L_{name}_g")
        a.e(f"s_sub_u32 s3, s2, {NMAIN}")
        ghat_part(a, name, 2, sW, "s3")
    a.label(f"L_{name}_done")
    a.e("s_endpgm")
    return a.text(), LDS, 128, NWG
```

```python
from asmlib import Asm, Stamps, f2u
from layout import *

LOG2E2 = 2.8853900817779268


def cos_vals(a, dst, rev0, step, n, tmp):
    for x in range(n):
        if x == 0:
            a.e(f"v_fract_f32 v{dst}, v{rev0}")
        else:
            a.e(f"v_add_f32 v{rev0}, v{rev0}, v{step}")
            a.e(f"v_fract_f32 v{dst+x}, v{rev0}")
    for x in range(n):
        a.e(f"v_cos_f32 v{dst+x}, v{dst+x}")
    a.e("s_nop 0")


def fwd_table_frag(a, jt_sgpr_or_int, kk, out, t):
    j, g, fo, rev = t + 1, t + 2, t + 3, t + 4
    vals = t + 5
    a.e(f"v_and_b32 v{j}, 15, v{t}")
    a.e(f"v_lshrrev_b32 v{g}, 4, v{t}")
    a.e(f"v_or_b32 v{fo}, 1, v{j}")
    if isinstance(jt_sgpr_or_int, int):
        a.e(f"v_add_u32 v{fo}, {16*jt_sgpr_or_int}, v{fo}")
    else:
        a.e(f"v_add_u32 v{fo}, {jt_sgpr_or_int}, v{fo}")
    a.e(f"v_cvt_f32_u32 v{fo}, v{fo}")
    a.e(f"v_mul_f32 v{fo}, 0x3c000000, v{fo}")
    a.e(f"v_lshlrev_b32 v{g}, 3, v{g}")
    a.e(f"v_add_u32 v{g}, {32*kk}, v{g}")
    a.e(f"v_cvt_f32_u32 v{g}, v{g}")
    a.e(f"v_and_b32 v{j}, 1, v{j}")
    a.e(f"v_cvt_f32_u32 v{j}, v{j}")
    a.e(f"v_mul_f32 v{j}, 0x3e800000, v{j}")
    a.e(f"v_fma_f32 v{rev}, v{fo}, v{g}, v{j}")
    cos_vals(a, vals, rev, fo, 8, None)
    for x in range(4):
        a.e(f"v_cvt_pk_bf16_f32 v{out+x}, v{vals+2*x}, v{vals+2*x+1}")


def ghat_part(a, name, conv, sW, wg_sgpr, lds_base=0, st_=None, wgsel=0):
    WS_G = WS_GH1 if conv == 1 else WS_GH2
    sWt, sG = 8, 12
    a.e(f"s_load_dwordx2 s[4:5], s[0:1], {8 if conv == 1 else 16}")
    a.e("s_load_dwordx2 s[6:7], s[0:1], 72")
    a.e(f"s_lshr_b32 s24, {wg_sgpr}, 4")
    a.e(f"s_bfe_u32 s25, {wg_sgpr}, 0x20002")
    a.e(f"s_and_b32 s26, {wg_sgpr}, 3")
    a.e("s_lshr_b32 s27, s24, 3")
    a.e("s_and_b32 s28, s24, 7")
    lane = 1
    a.e(f"v_and_b32 v{lane}, 63, v0")
    a.e(f"v_lshrrev_b32 v2, 3, v{lane}")
    if conv == 1:
        a.e("v_lshrrev_b32 v3, 2, v2")
        a.e("v_lshlrev_b32 v3, 4, v3")
        a.e("v_and_b32 v4, 3, v2")
        a.e("v_add_u32 v3, v3, v4")
        a.e("s_lshl_b32 s29, s25, 2")
    else:
        a.e("v_mov_b32 v3, v2")
        a.e("s_lshl_b32 s29, s25, 3")
    a.e("s_lshl_b32 s30, s28, 5")
    a.e("s_add_u32 s29, s29, s30")
    a.e("v_add_u32 v3, s29, v3")
    a.e("v_lshlrev_b32 v3, 9, v3")
    a.e(f"v_and_b32 v4, 7, v{lane}")
    a.e(f"s_lshr_b32 s30, s{sW}, 1")
    a.e("s_lshl_b32 s30, s30, 2")
    a.e("v_xor_b32 v4, s30, v4")
    a.e("v_lshl_add_u32 v3, v4, 4, v3")
    a.e("s_lshl_b32 s30, s26, 7")
    a.e("v_add_u32 v3, s30, v3")
    a.e("v_xor_b32 v4, 32, v3")
    a.e("s_waitcnt lgkmcnt(0)")
    a.srd(sWt, "s4", "s5", 31 * 131072)
    a.add64(sG, 6, WS_G)
    a.e(f"s_mov_b32 s{sG+2}, {32*GBIN}")
    a.e(f"s_mov_b32 s{sG+3}, 0x00020000")
    a.e(f"s_lshl_b32 s30, s{sW}, 3")
    a.e("s_add_u32 s30, s30, s27")
    a.e("s_lshl_b32 s30, s30, 17")
    a.e(f"s_mul_i32 s31, s{sW}, {4*1152}")
    for jj in range(4):
        a.e(f"s_add_u32 m0, s31, {lds_base + jj*1152}")
        a.e(f"s_add_u32 s32, s30, {jj*2*131072}")
        a.e(f"buffer_load_dwordx4 v{3 if jj < 2 else 4}, s[{sWt}:{sWt+3}], s32 offen lds")
    t = 8
    a.e(f"v_and_b32 v{t}, 15, v{lane}")
    a.e(f"v_or_b32 v{t+1}, 1, v{t}")
    a.e(f"s_lshl_b32 s33, s{sW}, 4")
    a.e(f"v_add_u32 v{t+1}, s33, v{t+1}")
    a.e(f"v_cvt_f32_u32 v{t+1}, v{t+1}")
    a.e(f"v_mul_f32 v{t+1}, 0x3c000000, v{t+1}")
    a.e(f"v_bfe_u32 v{t+2}, v{lane}, 4, 1")
    a.e(f"v_lshlrev_b32 v{t+2}, 3, v{t+2}")
    a.e(f"v_cvt_f32_u32 v{t+2}, v{t+2}")
    a.e(f"v_and_b32 v{t}, 1, v{t}")
    a.e(f"v_cvt_f32_u32 v{t}, v{t}")
    a.e(f"v_mul_f32 v{t}, 0x3f400000, v{t}")
    a.e(f"v_fma_f32 v{t+3}, v{t+1}, v{t+2}, v{t}")
    vals = t + 4
    cos_vals(a, vals, t + 3, t + 1, 8, None)
    for x in range(8):
        a.e(f"v_mul_f32 v{vals+x}, 0x3d000000, v{vals+x}")
    hi, lo = 20, 24
    for x in range(4):
        a.e(f"v_cvt_pk_bf16_f32 v{hi+x}, v{vals+2*x}, v{vals+2*x+1}")
    for x in range(4):
        a.e(f"v_lshlrev_b32 v28, 16, v{hi+x}")
        a.e(f"v_and_b32 v29, 0xffff0000, v{hi+x}")
        a.e(f"v_sub_f32 v28, v{vals+2*x}, v28")
        a.e(f"v_sub_f32 v29, v{vals+2*x+1}, v29")
        a.e(f"v_cvt_pk_bf16_f32 v{lo+x}, v28, v29")
    a.e(f"v_cmp_gt_u32 vcc, 32, v{lane}")
    a.e("s_nop 1")
    for x in range(4):
        a.e(f"v_cndmask_b32 v{hi+x}, v{lo+x}, v{hi+x}, vcc")
    TB = lds_base + 16 * 1152
    a.e(f"v_lshlrev_b32 v28, 4, v{lane}")
    a.e(f"s_lshl_b32 s33, s{sW}, 10")
    a.e(f"v_add_u32 v29, s33, v28")
    a.e(f"ds_write_b128 v29, v[{hi}:{hi+3}] offset:{TB}")
    a.e(f"v_bfe_u32 v30, v{lane}, 2, 2")
    a.e(f"v_bfe_u32 v31, v{lane}, 4, 1")
    a.e("v_lshl_add_u32 v32, v31, 3, v30")
    a.e("v_mul_u32_u24 v32, 1152, v32")
    a.e("v_lshrrev_b32 v30, 1, v30")
    a.e("v_lshl_add_u32 v30, v31, 1, v30")
    a.e("v_lshlrev_b32 v30, 1, v30")
    a.e(f"v_bfe_u32 v31, v{lane}, 1, 1")
    a.e(f"s_lshl_b32 s33, s{sW}, 1")
    a.e("v_add_u32 v31, s33, v31")
    a.e("v_xor_b32 v30, v30, v31")
    a.e("v_lshl_add_u32 v32, v30, 4, v32")
    a.e(f"v_and_b32 v30, 1, v{lane}")
    a.e("v_lshl_add_u32 v32, v30, 3, v32")
    a.e(f"v_lshrrev_b32 v30, 4, v{lane}")
    a.e(f"s_mov_b32 s33, {2*GBIN}")
    a.e("v_mul_lo_u32 v30, v30, s33")
    a.e(f"v_and_b32 v31, 15, v{lane}")
    a.e("v_lshl_add_u32 v33, v31, 4, v30")
    a.e("s_lshl_b32 s34, s24, 15")
    a.e("s_lshl_b32 s35, s26, 2")
    a.e(f"s_add_u32 s35, s35, s{sW}")
    a.e("s_lshl_b32 s35, s35, 11")
    a.e("s_add_u32 s34, s34, s35")
    a.e("s_lshl_b32 s35, s25, 8")
    a.e("s_add_u32 s34, s34, s35")
    if st_: st_.stamp()
    a.e("s_waitcnt vmcnt(0) lgkmcnt(0)")
    if st_: st_.stamp()
    a.e("s_barrier")
    if st_: st_.stamp()
    AF, BF, DD, PK = 36, 52, 84, 116
    for it in range(4):
        a.e(f"ds_read_b128 v[{AF+4*it}:{AF+4*it+3}], v28 offset:{TB + it*1024}")
    for c in range(8):
        for xx in range(2):
            a.e(f"ds_read_b64_tr_b16 v[{BF+4*c+2*xx}:{BF+4*c+2*xx+1}], v32 offset:{lds_base + c*128 + xx*4*1152}")
        if c == 4:
            a.e("s_waitcnt lgkmcnt(8)")
    a.e("s_waitcnt lgkmcnt(0)")
    for it in range(4):
        for c in range(8):
            d = DD + 4 * c
            a.e(f"v_mfma_f32_16x16x32_bf16 v[{d}:{d+3}], v[{AF+4*it}:{AF+4*it+3}], v[{BF+4*c}:{BF+4*c+3}], 0")
        a.e("s_nop 7")
        for e in range(4):
            pk = PK + 4 * (e & 1)
            for x in range(4):
                a.e(f"v_cvt_pk_bf16_f32 v{pk+x}, v{DD+8*x+e}, v{DD+8*x+4+e}")
            a.e(f"s_add_u32 s35, s34, {(8*it + (e >> 1))*GBIN + (e & 1)*1024}")
            a.e(f"buffer_store_dwordx4 v[{pk}:{pk+3}], v33, s[{sG}:{sG+3}], s35 offen")
            a.e("s_nop 1")
        if st_ and it == 0: st_.stamp()
    if st_ and st_.on:
        st_.stamp()
        a.e("s_waitcnt vmcnt(0)")
        st_.stamp()
        st_.dump(wgsel, sW, 0, f"L_{name}_nodump_g{conv}")
    a.end()
    return lds_base + 16 * 1152 + 4096


def prep_kernel(name, exp=""):
    a = Asm()
    NX = 2 * M1
    NG = 256
    G2 = "g2inprep" in exp
    NG2 = 256 if G2 else 0
    NS = 13
    O_S, O_G = 0, NS
    O_G2 = O_G + NG
    O_X = O_G2 + NG2
    NWG = O_X + NX
    if "xfirst" in exp:
        O_X = NS
        O_G = O_X + NX
        O_G2 = O_G + NG
        NWG = O_G2 + NG2
    sW = 20
    a.label(name)
    a.e(f"s_cmp_ge_u32 s2, {NWG}")
    a.e(f"s_cbranch_scc1 L_{name}_done")
    if "trace" in exp and a.trace_region is None: a.trace_begin(0)
    st_ = Stamps(a, "stamp" in exp)
    wgsel = int(exp.split("wg=")[1].split(",")[0]) if "wg=" in exp else 0
    st_.begin()
    nst0 = st_.n
    a.e(f"v_readfirstlane_b32 s{sW}, v0")
    a.e(f"s_lshr_b32 s{sW}, s{sW}, 6")
    a.e(f"s_cmp_lt_u32 s2, {NS}")
    a.e(f"s_cbranch_scc1 L_{name}_slab")
    if "xfirst" in exp:
        a.e(f"s_cmp_ge_u32 s2, {O_G}")
        a.e(f"s_cbranch_scc1 L_{name}_g")
    else:
        a.e(f"s_cmp_lt_u32 s2, {O_X}")
        a.e(f"s_cbranch_scc1 L_{name}_g")

    sX, sO = 8, 12
    a.e("s_load_dwordx2 s[4:5], s[0:1], 0")
    a.e(f"s_load_dwordx2 s[6:7], s[0:1], {X_PTR}")
    a.e(f"s_sub_u32 s24, s2, {O_X}")
    a.e(f"s_cmp_ge_u32 s24, {M1}")
    a.e("s_cselect_b32 s25, 1, 0")
    a.e(f"s_mul_i32 s26, s25, {M1}")
    a.e("s_sub_u32 s24, s24, s26")
    a.e("s_lshr_b32 s26, s24, 1")
    a.e("s_and_b32 s27, s24, 1")
    lane = 1
    a.e(f"v_and_b32 v{lane}, 63, v0")
    a.e(f"v_lshrrev_b32 v2, 3, v{lane}")
    a.e("s_mul_i32 s28, s26, 96")
    a.e("s_add_u32 s28, s28, s27")
    a.e("s_sub_u32 s28, s28, 15")
    a.e("v_lshlrev_b32 v3, 1, v2")
    a.e("v_add_u32 v3, s28, v3")
    a.e("v_lshlrev_b32 v3, 9, v3")
    a.e(f"s_lshl_b32 s29, s{sW}, 7")
    a.e("v_add_u32 v3, s29, v3")
    a.e("v_bfe_u32 v4, v2, 1, 1")
    a.e("v_lshlrev_b32 v4, 1, v4")
    a.e(f"v_and_b32 v5, 7, v{lane}")
    a.e("v_xor_b32 v4, v4, v5")
    a.e("v_lshl_add_u32 v3, v4, 4, v3")
    a.e("v_xor_b32 v4, 64, v3")
    a.e("s_waitcnt lgkmcnt(0)")
    a.e(f"s_mul_i32 s30, s25, {16000*512}")
    a.e(f"s_add_u32 s{sX}, s4, s30")
    a.e(f"s_addc_u32 s{sX+1}, s5, 0")
    a.e(f"s_mov_b32 s{sX+2}, {16000*512}")
    a.e(f"s_mov_b32 s{sX+3}, 0x00020000")
    a.e(f"s_lshl_b32 s31, s{sW}, 13")
    for q in range(8):
        a.e(f"s_add_u32 m0, s31, {q*1024}")
        a.e(f"v_add_u32 v5, {q*8192}, v{4 if q & 1 else 3}")
        a.e(f"buffer_load_dwordx4 v5, s[{sX}:{sX+3}], 0 offen lds")
    st_.stamp()
    a.add64(sO, 6, WS_XH1)
    a.e(f"s_mov_b32 s{sO+2}, {32*XBIN1}")
    a.e(f"s_mov_b32 s{sO+3}, 0x00020000")
    TB = 32768
    a.e(f"v_mov_b32 v8, v{lane}")
    a.e(f"s_lshl_b32 s32, s{sW}, 4")
    a.e(f"v_lshlrev_b32 v6, 4, v{lane}")
    a.e(f"s_lshl_b32 s33, s{sW}, 11")
    a.e("v_add_u32 v7, s33, v6")
    for kk in range(2):
        fwd_table_frag(a, "s32", kk, 24 + 4 * kk, 8)
        a.e(f"ds_write_b128 v7, v[{24+4*kk}:{24+4*kk+3}] offset:{TB + kk*1024}")
    a.e(f"v_bfe_u32 v8, v{lane}, 2, 2")
    a.e(f"v_lshrrev_b32 v9, 4, v{lane}")
    a.e("v_lshl_add_u32 v10, v9, 3, v8")
    a.e("v_lshlrev_b32 v10, 7, v10")
    a.e("v_lshrrev_b32 v8, 1, v8")
    a.e("v_and_b32 v11, 1, v9")
    a.e("v_lshl_add_u32 v8, v11, 1, v8")
    a.e("v_lshlrev_b32 v8, 1, v8")
    a.e(f"v_bfe_u32 v11, v{lane}, 1, 1")
    a.e("v_xor_b32 v8, v8, v11")
    a.e("v_lshl_add_u32 v10, v8, 4, v10")
    a.e(f"v_and_b32 v11, 1, v{lane}")
    a.e("v_lshl_add_u32 v10, v11, 3, v10")
    a.e("v_add_u32 v10, s31, v10")
    vTR = [12, 13, 14, 15]
    for h in range(2):
        for t in range(2):
            a.e(f"v_xor_b32 v{vTR[h*2+t]}, {h*64 + t*32}, v10")
    a.e(f"v_bfe_u32 v8, v{lane}, 1, 3")
    a.e(f"s_mov_b32 s33, {XBIN1}")
    a.e("v_mul_lo_u32 v8, v8, s33")
    a.e(f"v_and_b32 v11, 1, v{lane}")
    a.e("v_lshl_add_u32 v8, v11, 6, v8")
    a.e("v_lshl_add_u32 v16, v9, 4, v8")
    a.e(f"s_mul_i32 s34, s25, {NB1}")
    a.e("s_add_u32 s34, s34, s26")
    a.e("s_lshl_b32 s34, s34, 11")
    a.e("s_lshl_b32 s35, s27, 3")
    a.e(f"s_lshl_b32 s36, s{sW}, 1")
    a.e("s_add_u32 s35, s35, s36")
    a.e("s_lshl_b32 s35, s35, 7")
    a.e("s_add_u32 s34, s34, s35")
    st_.stamp()
    a.e("s_waitcnt lgkmcnt(0)")
    a.e("s_barrier")
    st_.stamp()
    FF, AA, DD, PK = 24, 56, 72, 104
    for jt in range(4):
        for kk in range(2):
            f = FF + (jt * 2 + kk) * 4
            a.e(f"ds_read_b128 v[{f}:{f+3}], v6 offset:{TB + (jt*2+kk)*1024}")
    a.e("s_waitcnt vmcnt(0)")
    st_.stamp()
    for h in range(2):
        for t in range(2):
            for kk in range(2):
                r_ = AA + (t * 2 + kk) * 4
                for xx in range(2):
                    a.e(f"ds_read_b64_tr_b16 v[{r_+2*xx}:{r_+2*xx+1}], v{vTR[h*2+t]} offset:{kk*4096 + xx*512}")
        a.e("s_waitcnt lgkmcnt(0)")
        for kk in range(2):
            for t in range(2):
                for jt in range(4):
                    d = DD + (t * 4 + jt) * 4
                    r_ = AA + (t * 2 + kk) * 4
                    f = FF + (jt * 2 + kk) * 4
                    c = "0" if kk == 0 else f"v[{d}:{d+3}]"
                    a.e(f"v_mfma_f32_16x16x32_bf16 v[{d}:{d+3}], v[{r_}:{r_+3}], v[{f}:{f+3}], {c}")
        a.e("s_nop 7")
        for jt in range(4):
            pk = PK + 4 * (jt & 1)
            d0, d1 = DD + jt * 4, DD + (4 + jt) * 4
            a.e(f"v_cvt_pk_bf16_f32 v{pk}, v{d0}, v{d0+1}")
            a.e(f"v_cvt_pk_bf16_f32 v{pk+1}, v{d0+2}, v{d0+3}")
            a.e(f"v_cvt_pk_bf16_f32 v{pk+2}, v{d1}, v{d1+1}")
            a.e(f"v_cvt_pk_bf16_f32 v{pk+3}, v{d1+2}, v{d1+3}")
            a.e(f"s_add_u32 s35, s34, {jt*8*XBIN1 + h*128}")
            a.e(f"buffer_store_dwordx4 v[{pk}:{pk+3}], v16, s[{sO}:{sO+3}], s35 offen")
            a.e("s_nop 1")
        st_.stamp()
    if st_.on:
        a.e("s_waitcnt vmcnt(0)")
        st_.stamp()
        st_.dump(wgsel, sW, 0, f"L_{name}_nodump_x")
    a.end()

    a.label(f"L_{name}_g")
    if G2:
        a.e(f"s_cmp_ge_u32 s2, {O_G2}")
        a.e(f"s_cbranch_scc1 L_{name}_g2")
    a.e(f"s_sub_u32 s3, s2, {O_G}")
    st_.n = nst0
    ghat_part(a, name, 1, sW, "s3", st_=st_, wgsel=wgsel)
    if G2:
        a.label(f"L_{name}_g2")
        a.e(f"s_sub_u32 s3, s2, {O_G2}")
        ghat_part(a, name, 2, sW, "s3")

    a.label(f"L_{name}_slab")
    sM, sT = 8, 12
    a.e("s_load_dwordx2 s[6:7], s[0:1], 72")
    a.e("s_cmp_eq_u32 s2, 12")
    a.e(f"s_cbranch_scc1 L_{name}_tab")
    a.e("s_lshr_b32 s24, s2, 2")
    a.e("s_and_b32 s26, s2, 3")
    a.e("s_mov_b32 s25, 40")
    a.e("s_cmp_eq_u32 s24, 1")
    a.e("s_cselect_b32 s25, 32, s25")
    a.e("s_cmp_eq_u32 s24, 2")
    a.e("s_cselect_b32 s25, 48, s25")
    a.e("s_load_dwordx2 s[4:5], s[0:1], s25")
    a.e("s_load_dwordx2 s[28:29], s[0:1], 24")
    lane = 1
    a.e(f"v_and_b32 v{lane}, 63, v0")
    a.e(f"v_lshrrev_b32 v2, 3, v{lane}")
    a.e(f"s_lshl_b32 s27, s{sW}, 6")
    a.e("v_add_u32 v2, s27, v2")
    a.e("v_lshlrev_b32 v2, 9, v2")
    a.e(f"v_and_b32 v3, 7, v{lane}")
    a.e("v_lshl_add_u32 v2, v3, 4, v2")
    a.e("s_lshl_b32 s27, s26, 7")
    a.e("v_add_u32 v2, s27, v2")
    a.e("s_waitcnt lgkmcnt(0)")
    a.srd(sM, "s4", "s5", 131072)
    a.add64(sT, 6, WS_TAB)
    a.e(f"s_mov_b32 s{sT+2}, {TAB_WO + 131072}")
    a.e(f"s_mov_b32 s{sT+3}, 0x00020000")
    a.e(f"s_lshl_b32 s31, s{sW}, 13")
    for q in range(8):
        a.e(f"s_add_u32 m0, s31, {q*1024}")
        a.e(f"s_mov_b32 s32, {q*4096}")
        a.e(f"buffer_load_dwordx4 v2, s[{sM}:{sM+3}], s32 offen lds")
    a.e("s_cmp_eq_u32 s24, 0")
    a.e(f"s_cbranch_scc1 L_{name}_ge")
    a.e(f"v_bfe_u32 v4, v{lane}, 2, 2")
    a.e(f"v_lshrrev_b32 v5, 5, v{lane}")
    a.e(f"v_bfe_u32 v6, v{lane}, 4, 1")
    a.e(f"v_and_b32 v7, 3, v{lane}")
    a.e("s_cmp_eq_u32 s24, 1")
    a.e(f"s_cbranch_scc0 L_{name}_wo")
    a.e("v_lshl_add_u32 v8, v5, 4, v4")
    a.e("v_lshlrev_b32 v8, 7, v8")
    a.e("v_lshl_add_u32 v8, v6, 5, v8")
    a.e("v_lshl_add_u32 v8, v7, 3, v8")
    a.e(f"s_lshl_b32 s33, s{sW}, 13")
    a.e("v_add_u32 v8, s33, v8")
    a.e(f"s_mov_b32 s34, {TAB_WF}")
    offs = lambda kq, xx, it: (32 * (kq >> 1) + 8 * xx + 4 * (kq & 1)) * 128 + it * 64

    def emit_frags(offs_fn, is_wo=False):
        a.e("s_lshl_b32 s35, s26, 15")
        a.e("s_add_u32 s34, s34, s35")
        a.e(f"s_lshl_b32 s35, s{sW}, 12")
        a.e("s_add_u32 s34, s34, s35")
        a.e(f"v_lshlrev_b32 v9, 4, v{lane}")
        a.e("s_waitcnt vmcnt(0)")
        a.e("s_barrier")
        for it in range(2):
            for kq in range(4):
                r_ = 16 + (it * 4 + kq) * 4
                for xx in range(2):
                    a.e(f"ds_read_b64_tr_b16 v[{r_+2*xx}:{r_+2*xx+1}], v8 offset:{offs_fn(kq, xx, it)}")
            a.e("s_waitcnt lgkmcnt(0)")
            if is_wo:
                if it == 0:
                    for x in range(4):
                        a.e(f"v_mov_b32 v{48+x}, 0x3f803f80")
                    a.e("s_nop 1")
                d = 64 + 16 * it
                for kq in range(4):
                    r_ = 16 + (it * 4 + kq) * 4
                    c = "0" if kq == 0 else f"v[{d}:{d+15}]"
                    a.e(f"v_mfma_f32_32x32x16_bf16 v[{d}:{d+15}], v[{r_}:{r_+3}], v[48:51], {c}")
                for kq in range(4):
                    r_ = 16 + (it * 4 + kq) * 4
                    for x in range(4):
                        a.e(f"v_lshlrev_b32 v52, 16, v{r_+x}")
                        a.e(f"v_and_b32 v53, 0xffff0000, v{r_+x}")
                        a.e("v_mul_f32 v52, -2.0, v52")
                        a.e("v_mul_f32 v53, -2.0, v53")
                        a.e(f"v_cvt_pk_bf16_f32 v{r_+x}, v52, v53")
            for kq in range(4):
                r_ = 16 + (it * 4 + kq) * 4
                a.e(f"s_add_u32 s35, s34, {it*16384 + kq*1024}")
                a.e(f"buffer_store_dwordx4 v[{r_}:{r_+3}], v9, s[{sT}:{sT+3}], s35 offen")
        if is_wo:
            a.e("s_nop 7")
            a.e("s_barrier")
            a.e(f"v_lshlrev_b32 v10, 6, v{lane}")
            a.e(f"s_lshl_b32 s35, s{sW}, 13")
            a.e("v_add_u32 v11, s35, v10")
            for it in range(2):
                for x in range(4):
                    a.e(f"ds_write_b128 v11, v[{64+16*it+4*x}:{64+16*it+4*x+3}] offset:{it*4096 + x*16}")
            a.e("s_waitcnt lgkmcnt(0)")
            a.e("s_barrier")
            a.e(f"s_cmp_ge_u32 s{sW}, 2")
            a.e(f"s_cbranch_scc1 L_{name}_done")
            a.e(f"s_lshl_b32 s35, s{sW}, 12")
            a.e("v_add_u32 v11, s35, v10")
            for ww in range(4):
                for x in range(4):
                    a.e(f"ds_read_b128 v[{16+16*ww+4*x}:{16+16*ww+4*x+3}], v11 offset:{ww*8192 + x*16}")
                if ww % 2 == 1:
                    a.e("s_waitcnt lgkmcnt(0)")
            for x in range(16):
                a.e(f"v_add_f32 v{16+x}, v{16+x}, v{32+x}")
                a.e(f"v_add_f32 v{48+x}, v{48+x}, v{64+x}")
            for x in range(16):
                a.e(f"v_add_f32 v{16+x}, v{16+x}, v{48+x}")
            a.e(f"v_and_b32 v10, 31, v{lane}")
            a.e("v_cmp_eq_u32 vcc, 0, v10")
            a.e(f"v_lshrrev_b32 v10, 5, v{lane}")
            a.e("v_lshlrev_b32 v10, 6, v10")
            a.e("s_lshl_b32 s35, s26, 8")
            a.e(f"s_lshl_b32 s36, s{sW}, 7")
            a.e("s_add_u32 s35, s35, s36")
            a.e(f"s_add_u32 s35, s35, {TAB_CS}")
            a.e("s_and_saveexec_b64 s[38:39], vcc")
            for x in range(4):
                a.e(f"buffer_store_dwordx4 v[{16+4*x}:{16+4*x+3}], v10, s[{sT}:{sT+3}], s35 offen offset:{x*16}")
        a.end()

    emit_frags(offs)
    a.label(f"L_{name}_wo")
    a.e("v_lshl_add_u32 v8, v5, 2, v4")
    a.e("v_lshlrev_b32 v8, 7, v8")
    a.e("v_lshl_add_u32 v8, v6, 5, v8")
    a.e("v_and_b32 v10, 1, v7")
    a.e("v_lshl_add_u32 v8, v10, 4, v8")
    a.e("v_lshrrev_b32 v10, 1, v7")
    a.e("v_lshl_add_u32 v8, v10, 3, v8")
    a.e(f"s_lshl_b32 s33, s{sW}, 13")
    a.e("v_add_u32 v8, s33, v8")
    a.e(f"s_mov_b32 s34, {TAB_WO}")
    emit_frags(lambda kq, xx, it: (16 * kq + 8 * xx) * 128 + it * 64, True)

    a.label(f"L_{name}_ge")
    sGg = 36
    a.srd(sGg, "s28", "s29", 8192)
    a.e(f"v_and_b32 v4, 15, v{lane}")
    a.e(f"v_lshrrev_b32 v5, 4, v{lane}")
    a.e("v_lshlrev_b32 v6, 9, v4")
    a.e("v_lshl_add_u32 v6, v5, 4, v6")
    BB = 16
    for ks in range(8):
        a.e(f"buffer_load_dwordx4 v[{BB+4*ks}:{BB+4*ks+3}], v6, s[{sGg}:{sGg+3}], 0 offen offset:{ks*64}")
    a.e(f"v_bfe_u32 v7, v{lane}, 2, 2")
    a.e("v_lshl_add_u32 v7, v5, 3, v7")
    a.e("v_lshlrev_b32 v7, 7, v7")
    a.e(f"v_and_b32 v8, 3, v{lane}")
    a.e("v_lshl_add_u32 v7, v8, 3, v7")
    a.e(f"s_lshl_b32 s33, s{sW}, 5")
    a.e("v_add_u32 v7, s33, v7")
    a.e("s_waitcnt vmcnt(0)")
    a.e("s_barrier")
    AA = 48
    for ks in range(8):
        for xx in range(2):
            a.e(f"ds_read_b64_tr_b16 v[{AA+4*ks+2*xx}:{AA+4*ks+2*xx+1}], v7 offset:{(32*ks + 4*xx)*128}")
        if ks == 3:
            a.e("s_waitcnt lgkmcnt(0)")
    a.e("s_waitcnt lgkmcnt(0)")
    for ks in range(8):
        c = "0" if ks == 0 else "v[80:83]"
        a.e(f"v_mfma_f32_16x16x32_bf16 v[80:83], v[{AA+4*ks}:{AA+4*ks+3}], v[{BB+4*ks}:{BB+4*ks+3}], {c}")
    a.e("s_nop 7")
    a.e("v_cvt_pk_bf16_f32 v84, v80, v81")
    a.e("v_cvt_pk_bf16_f32 v85, v82, v83")
    a.e(f"s_mov_b32 s33, 0x{f2u(LOG2E2):08x}")
    a.e("v_lshlrev_b32 v80, 16, v84")
    a.e("v_and_b32 v81, 0xffff0000, v84")
    a.e("v_lshlrev_b32 v82, 16, v85")
    a.e("v_and_b32 v83, 0xffff0000, v85")
    for x in range(4):
        a.e(f"v_mul_f32 v{80+x}, s33, v{80+x}")
    a.e("v_lshlrev_b32 v6, 10, v4")
    a.e("v_lshl_add_u32 v6, v5, 4, v6")
    a.e("s_lshl_b32 s33, s26, 8")
    a.e(f"s_lshl_b32 s34, s{sW}, 6")
    a.e("s_add_u32 s33, s33, s34")
    a.e(f"s_add_u32 s33, s33, {TAB_BP}")
    a.e(f"buffer_store_dwordx4 v[80:83], v6, s[{sT}:{sT+3}], s33 offen")
    a.end()

    a.label(f"L_{name}_tab")
    a.e(f"v_and_b32 v8, 63, v0")
    a.e("v_lshlrev_b32 v6, 4, v8")
    a.e("s_waitcnt lgkmcnt(0)")
    a.add64(sT, 6, WS_TAB)
    a.e(f"s_mov_b32 s{sT+2}, {TAB_WO + 131072}")
    a.e(f"s_mov_b32 s{sT+3}, 0x00020000")
    a.e(f"s_lshl_b32 s32, s{sW}, 4")
    a.e(f"s_lshl_b32 s33, s{sW}, 11")
    for kk in range(2):
        fwd_table_frag(a, "s32", kk, 24 + 4 * kk, 8)
        a.e(f"s_add_u32 s34, s33, {TAB_F + kk*1024}")
        a.e(f"buffer_store_dwordx4 v[{24+4*kk}:{24+4*kk+3}], v6, s[{sT}:{sT+3}], s34 offen")
    a.e(f"s_cmp_ge_u32 s{sW}, 3")
    a.e(f"s_cbranch_scc1 L_{name}_done")
    a.e("v_and_b32 v9, 15, v8")
    a.e("v_add_u32 v9, s32, v9")
    a.e("v_cvt_f32_u32 v9, v9")
    a.e("v_mul_f32 v9, 0x3c000000, v9")
    a.e("v_lshrrev_b32 v10, 4, v8")
    a.e("v_lshlrev_b32 v10, 3, v10")
    for kk in range(2):
        for x in range(8):
            a.e(f"v_add_u32 v11, {32*kk + 2*(x >> 1) + 1}, v10")
            a.e("v_cvt_f32_u32 v11, v11")
            if x & 1:
                a.e("v_fma_f32 v11, v11, v9, 0.25") if False else None
                a.e("v_mul_f32 v11, v11, v9")
                a.e("v_add_f32 v11, 0x3e800000, v11")
            else:
                a.e("v_mul_f32 v11, v11, v9")
            a.e(f"v_fract_f32 v{12+x}, v11")
        for x in range(8):
            a.e(f"v_cos_f32 v{12+x}, v{12+x}")
        a.e("s_nop 0")
        for x in range(4):
            a.e(f"v_cvt_pk_bf16_f32 v{24+x}, v{12+2*x}, v{12+2*x+1}")
        a.e(f"s_add_u32 s34, s33, {TAB_FI + kk*1024}")
        a.e(f"buffer_store_dwordx4 v[24:27], v6, s[{sT}:{sT+3}], s34 offen")
        a.e("s_nop 1")
    a.label(f"L_{name}_done")
    a.e("s_endpgm")
    return a.text(), 40960, 128, NWG
```

```python
import os
import sys
sys.path.insert(0, os.path.dirname(os.path.abspath(__file__)))
from asmlib import kd
from gemm import gemm_kernel

HEADER = """; Kernarg layout for this problem (80 bytes, ptrs only, base s[0:1]):
"""


def build(which, exp=""):
    ks = []
    for nm in which:
        if nm == "gemm1":
            code, lds, nv = gemm_kernel("gemm1_kernel", 1, exp)
            ks.append(("gemm1_kernel", 256, 512, code, lds, nv))
        elif nm == "gemm2":
            code, lds, nv = gemm_kernel("gemm2_kernel", 2, exp)
            ks.append(("gemm2_kernel", 256, 512, code, lds, nv))
        elif nm == "prep":
            from prep import prep_kernel
            code, lds, nv, grid = prep_kernel("prep_kernel", exp)
            ks.append(("prep_kernel", grid, 256, code, lds, nv))
        elif nm == "mid":
            from mid import mid_kernel
            code, lds, nv, grid = mid_kernel("mid_kernel", exp)
            ks.append(("mid_kernel", grid, 256, code, lds, nv))
        elif nm == "joint":
            from joint import joint_kernel
            code, lds, nv, grid = joint_kernel("joint_kernel", exp)
            ks.append(("joint_kernel", grid, 512, code, lds, nv))
        else:
            raise ValueError(nm)
    pol = {"st": "sc1", "sto": "sc1"}
    for tok in exp.split(","):
        for k in ("st", "sto"):
            if tok.startswith(k + "="):
                pol[k] = tok[len(k) + 1:].replace("+", " ")
    ks2 = []
    for nm, grid, block, code, lds, nv in ks:
        sfx = pol["sto"] if nm == "joint_kernel" else pol["st"]
        sfx = "" if sfx == "plain" else " " + sfx
        lines = []
        for ln in code.split("\n"):
            if ln.strip().startswith("buffer_store_dwordx4") and "s[56:59]" not in ln:
                ln = ln + sfx
            if nm == "prep_kernel" and "nontld" not in exp and ln.strip().startswith("buffer_load_dwordx4") and ln.strip().endswith(" lds"):
                ln = ln[:-4] + " nt lds"
            if nm == "mid_kernel" and "nontld" not in exp and ln.strip().startswith("buffer_load_dwordx4") and ln.strip().endswith(" lds") and "s[8:11], s32" in ln:
                ln = ln[:-4] + " nt lds"
            lines.append(ln)
        ks2.append((nm, grid, block, "\n".join(lines), lds, nv))
    ks = ks2
    out = HEADER
    for nm, grid, block, code, lds, nv in ks:
        out += f"; @launch kernel={nm} grid=({grid},1,1) block=({block},1,1) lds={lds}\n"
    out += '.amdgcn_target "amdgcn-amd-amdhsa--gfx950"\n.text\n'
    for nm, grid, block, code, lds, nv in ks:
        out += f".globl {nm}\n.p2align 8\n.type {nm},@function\n" + code
    out += '.section .rodata,"a"\n'
    for nm, grid, block, code, lds, nv in ks:
        out += ".p2align 6\n" + kd(nm, vgpr=(nv + 7) // 8 * 8, accum=128 if nm == "joint_kernel" else min(256, (nv + 7) // 8 * 8))
    return out


if __name__ == "__main__":
    path = sys.argv[1]
    which = sys.argv[2].split(",") if len(sys.argv) > 2 else ["prep", "gemm1", "mid", "gemm2", "joint"]
    open(path, "w").write(build(which, os.environ.get("EXP", "")))
```

```python
from asmlib import Asm, Stamps
from layout import *


def gemm_kernel(name, conv, exp=""):
    a = Asm()
    if conv == 1:
        M, XBIN, WS_X, WS_G, WS_Y = M1, XBIN1, WS_XH1, WS_GH1, WS_YH1
        NT, S, NP = (2, 7, 2) if "twopass" in exp else (4, 5, 1)
    else:
        M, XBIN, WS_X, WS_G, WS_Y = M2, XBIN2, WS_XH2, WS_GH2, WS_YH2
        NT, S, NP = 2, 7, 1
    KST = 16
    NSTEP = KST * NP
    ROWS = 84
    ABYTES = 12288
    CTP = 2 * NT
    BP = CTP * 2
    SLOT = ABYTES + BP * 1024
    SPW = 65536 // SLOT
    NWIN = (S + SPW - 1) // SPW
    LDS = S * SLOT
    BPW = BP // 4
    NWG = 256
    NCT = CTP * NP

    ASZ = NT * 24
    FR0 = NP * ASZ
    FSZ = NT * 8 + 24
    vAre = FR0 + 2 * FSZ
    vAim = vAre + NWIN
    vB = vAim + NWIN
    vT = vB + NWIN
    EP = (vT + 12 + 1) // 2 * 2
    NV = EP + (24 if NP > 1 else 0)
    assert NV <= 256

    def G(st, t, ri):
        return FR0 + st * FSZ + (t * 2 + ri) * 4

    def U(st, r, ri):
        return FR0 + st * FSZ + NT * 8 + (r * 2 + ri) * 4

    def accr(p, t, r):
        return p * ASZ + (t * 3 + r) * 4

    def acci(p, t, r):
        return p * ASZ + NT * 12 + (t * 3 + r) * 4

    sA, sB, sY = 8, 12, 16
    sW = 20
    sBin = 21
    sM0 = 22
    a.label(name)
    a.e(f"s_cmp_ge_u32 s2, {NWG}")
    a.e(f"s_cbranch_scc1 L_{name}_done")
    if "trace" in exp and a.trace_region is None: a.trace_begin(conv*2-1)
    st_ = Stamps(a, "stamp" in exp)
    st_.begin()
    a.e("s_load_dwordx2 s[4:5], s[0:1], 72")
    a.e(f"s_load_dwordx2 s[6:7], s[0:1], {X_PTR}")
    a.e(f"v_readfirstlane_b32 s{sW}, v0")
    a.e(f"s_lshr_b32 s{sW}, s{sW}, 6")
    a.e("s_and_b32 s24, s2, 7")
    a.e("s_lshr_b32 s25, s2, 3")
    a.e("s_lshr_b32 s26, s25, 3")
    a.e("s_lshl_b32 s24, s24, 2")
    a.e(f"s_add_u32 s{sBin}, s24, s26")
    a.e("s_and_b32 s25, s25, 7")
    if conv == 1:
        a.e("s_lshr_b32 s26, s25, 1")
        a.e("s_and_b32 s27, s25, 1")
    else:
        a.e("s_lshr_b32 s26, s25, 2")
        a.e("s_and_b32 s27, s25, 3")
    a.e(f"s_mul_i32 s{sM0}, s26, {ROWS}")
    a.e(f"s_sub_u32 s28, {M}, s{sM0}")
    a.e(f"s_min_u32 s28, s28, {ROWS}")
    a.e("s_waitcnt lgkmcnt(0)")
    a.e(f"s_mul_i32 s29, s{sBin}, {XBIN}")
    a.e(f"s_lshl_b32 s30, s{sM0}, 11")
    a.e("s_add_u32 s29, s29, s30")
    a.e(f"s_add_u32 s29, s29, {WS_X}")
    a.e(f"s_add_u32 s{sA}, s6, s29")
    a.e(f"s_addc_u32 s{sA+1}, s7, 0")
    a.e(f"s_lshl_b32 s{sA+2}, s28, 11")
    a.e(f"s_mov_b32 s{sA+3}, 0x00020000")
    a.e(f"s_mul_i32 s29, s{sBin}, {GBIN}")
    a.e(f"s_mul_i32 s30, s27, {NCT*2048}")
    a.e("s_add_u32 s29, s29, s30")
    a.e(f"s_add_u32 s29, s29, {WS_G}")
    a.e(f"s_add_u32 s{sB}, s4, s29")
    a.e(f"s_addc_u32 s{sB+1}, s5, 0")
    a.e(f"s_mov_b32 s{sB+2}, {15*32768 + NCT*2048}")
    a.e(f"s_mov_b32 s{sB+3}, 0x00020000")
    a.e(f"s_cmp_ge_u32 s{sW}, 4")
    a.e(f"s_cbranch_scc1 L_{name}_loader")

    a.e(f"s_mul_i32 s29, s{sM0}, {YROW}")
    a.e(f"s_add_u32 s29, s29, {WS_Y}")
    a.e(f"s_add_u32 s{sY}, s4, s29")
    a.e(f"s_addc_u32 s{sY+1}, s5, 0")
    a.e(f"s_mul_i32 s{sY+2}, s28, {YROW}")
    a.e(f"s_mov_b32 s{sY+3}, 0x00020000")
    a.e(f"s_lshr_b32 s29, s{sW}, 1")
    a.e(f"s_and_b32 s30, s{sW}, 1")
    a.e(f"v_and_b32 v{vT}, 15, v0")
    a.e(f"v_bfe_u32 v{vT+1}, v0, 4, 2")
    a.e(f"v_and_b32 v{vT+2}, 63, v0")
    a.e(f"s_mul_i32 s31, s29, {48*128}")
    a.e(f"v_and_b32 v{vT+3}, 7, v{vT}")
    a.e(f"v_xor_b32 v{vT+3}, v{vT+1}, v{vT+3}")
    a.e(f"v_lshlrev_b32 v{vT+3}, 4, v{vT+3}")
    a.e(f"v_lshl_add_u32 v{vT+3}, v{vT}, 7, v{vT+3}")
    a.e(f"v_add_u32 v{vT+3}, s31, v{vT+3}")
    for w in range(NWIN):
        a.e(f"v_add_u32 v{vAre+w}, {w*SPW*SLOT}, v{vT+3}")
        a.e(f"v_xor_b32 v{vAim+w}, 64, v{vAre+w}")
    a.e(f"s_mul_i32 s31, s30, {NT*2048}")
    a.e(f"s_add_u32 s31, s31, {ABYTES}")
    a.e(f"v_lshlrev_b32 v{vT+3}, 4, v{vT+2}")
    a.e(f"v_add_u32 v{vT+3}, s31, v{vT+3}")
    for w in range(NWIN):
        a.e(f"v_add_u32 v{vB+w}, {w*SPW*SLOT}, v{vT+3}")
    vY1, vY2 = vT + 5, vT + 6
    a.e(f"v_and_b32 v{vT+7}, 7, v{vT}")
    a.e(f"v_lshrrev_b32 v{vT+8}, 3, v{vT}")
    a.e(f"v_mul_u32_u24 v{vY1}, {YROW}, v{vT+7}")
    a.e(f"v_lshl_add_u32 v{vY1}, v{vT+1}, 4, v{vY1}")
    a.e(f"s_mul_i32 s31, s29, {48*YROW}")
    a.e(f"v_add_u32 v{vY1}, s31, v{vY1}")
    a.e(f"v_lshl_add_u32 v{vY1}, v{vT+8}, 6, v{vY1}")
    a.e(f"v_xor_b32 v{vT+8}, 64, v{vY1}")
    a.e(f"v_add_u32 v{vY2}, {8*YROW}, v{vT+8}")
    a.e(f"s_mul_i32 s31, s27, {NCT//2}")
    a.e(f"s_mul_i32 s29, s30, {NT//2}")
    a.e("s_add_u32 s31, s31, s29")
    a.e("s_lshl_b32 s31, s31, 12")
    a.e(f"s_lshl_b32 s29, s{sBin}, 7")
    a.e("s_add_u32 s33, s31, s29")
    a.e("s_mov_b32 s34, 0x80008000")

    def reads(step):
        st = step & 1
        sl = step % S
        w, siw = sl // SPW, sl % SPW
        ops = []
        seq = []
        seq.append(("G", 0, 0))
        seq += [("U", r, 0) for r in range(3)]
        seq += [("G", t, 0) for t in range(1, NT)]
        seq += [("U", r, 1) for r in range(3)]
        seq += [("G", t, 1) for t in range(NT)]
        for kind, x, ri in seq:
            if kind == "G":
                r_ = G(st, x, ri)
                ops.append(f"ds_read_b128 v[{r_}:{r_+3}], v{vB+w} offset:{siw*SLOT + (x*2+ri)*1024}")
            else:
                r_ = U(st, x, ri)
                va = (vAim if ri else vAre) + w
                ops.append(f"ds_read_b128 v[{r_}:{r_+3}], v{va} offset:{siw*SLOT + x*2048}")
        return ops

    def mfma(d, ga, ub, c):
        cs = "0" if c is None else f"v[{c}:{c+3}]"
        return f"v_mfma_f32_16x16x32_bf16 v[{d}:{d+3}], v[{ga}:{ga+3}], v[{ub}:{ub+3}], {cs}"

    def epilogue(p, tmp, nsets):
        ops = []
        k = 0
        for P in range(NT // 2):
            for r in range(3):
                R = tmp + (k % nsets) * 12
                I, D2 = R + 4, R + 8
                k += 1
                for dst, acc in ((R, accr), (I, acci)):
                    a0, a1 = acc(p, 2 * P, r), acc(p, 2 * P + 1, r)
                    ops.append(f"v_cvt_pk_bf16_f32 v{dst}, v{a0}, v{a0+1}")
                    ops.append(f"v_cvt_pk_bf16_f32 v{dst+1}, v{a0+2}, v{a0+3}")
                    ops.append(f"v_cvt_pk_bf16_f32 v{dst+2}, v{a1}, v{a1+1}")
                    ops.append(f"v_cvt_pk_bf16_f32 v{dst+3}, v{a1+2}, v{a1+3}")
                for x in range(4):
                    ops.append(f"v_mov_b32 v{D2+x}, v{R+x}")
                ops.append(f"s_add_u32 s35, s33, {r*16*YROW + (P + p*CTP//2)*4096}")
                for x in range(4):
                    ops.append(f"v_mov_b32_dpp v{D2+x}, v{I+x} row_ror:8 row_mask:0xf bank_mask:0x3")
                for x in range(4):
                    ops.append(f"v_mov_b32_dpp v{R+x}, v{I+x} row_ror:8 row_mask:0xf bank_mask:0xc")
                ops.append(f"buffer_store_dwordx4 v[{R}:{R+3}], v{vY1}, s[{sY}:{sY+3}], s35 offen")
                ops.append(f"buffer_store_dwordx4 v[{D2}:{D2+3}], v{vY2}, s[{sY}:{sY+3}], s35 offen")
        return ops

    st_.stamp()
    a.e("s_barrier")
    st_.stamp()
    for op in reads(0):
        a.e(op)
    a.e("s_waitcnt lgkmcnt(0)")
    a.e("s_barrier")
    NM = NT * 12
    st_.stamp()
    pending = []
    for s in range(NSTEP):
        if s in ((1, 4, 8, 12) if NP == 1 else (4, 12, 16, 24)): st_.stamp()
        st = s & 1
        p = s // KST
        first = s % KST == 0
        if first and p > 0:
            pending = epilogue(p - 1, EP, 2)
        mf = []
        for t in range(NT):
            for r in range(3):
                mf.append(mfma(accr(p, t, r), G(st, t, 0), U(st, r, 0), None if first else accr(p, t, r)))
        for t in range(NT):
            for r in range(3):
                mf.append(mfma(acci(p, t, r), G(st, t, 0), U(st, r, 1), None if first else acci(p, t, r)))
        for t in range(NT):
            for r in range(3):
                mf.append(mfma(acci(p, t, r), G(st, t, 1), U(st, r, 0), acci(p, t, r)))
        for t in range(NT):
            for r in range(3):
                mf.append(mfma(accr(p, t, r), G(st, t, 1), U(st, r, 1), accr(p, t, r)))
        fill = [[] for _ in range(NM)]
        rd = reads(s + 1) if s + 1 < NSTEP else []
        rstep = 2 if NT == 4 else 1
        for i, op in enumerate(rd):
            fill[i * rstep].append(op)
        xs = [f"v_xor_b32 v{U(st, r, 1)+k}, s34, v{U(st, r, 1)+k}" for r in range(3) for k in range(4)]
        g3 = 2 * NT * 3
        per = 2
        for i, op in enumerate(xs):
            fill[g3 + i // per].append(op)
        assert g3 + (len(xs) - 1) // per <= 3 * NT * 3 - 1
        if pending:
            slots = [i for i in range(NM) if not (g3 <= i < g3 + 6) and (i >= 8 or not first)]
            for i in slots:
                if pending: fill[i].append(pending.pop(0))
        barpos = NM - (8 if NT == 4 else 4)
        for i in range(NM):
            if "nomfma" not in exp:
                a.e(mf[i])
            for op in fill[i]:
                a.e(op)
            if i == barpos and s + 1 < NSTEP:
                a.e("s_waitcnt lgkmcnt(0)")
                if s + 1 <= NSTEP - 2:
                    a.e("s_barrier")
    assert not pending
    st_.stamp()
    a.e("s_nop 7")
    a.e("s_nop 7")
    for op in epilogue(NP - 1, FR0, 3):
        a.e(op)
    if st_.on:
        st_.stamp()
        a.e("s_waitcnt vmcnt(0)")
        st_.stamp()
        st_.dump(int(exp.split("wg=")[1].split(",")[0]) if "wg=" in exp else 0, sW, 0, f"L_{name}_nodump")
    a.end()

    a.label(f"L_{name}_loader")
    a.e(f"s_sub_u32 s{sW}, s{sW}, 4")
    vA_, vB_ = 1, 2
    a.e("v_and_b32 v3, 63, v0")
    a.e("v_lshrrev_b32 v4, 3, v3")
    a.e("v_and_b32 v5, 7, v3")
    a.e("v_xor_b32 v5, v5, v4")
    a.e("v_lshlrev_b32 v5, 4, v5")
    a.e(f"v_lshl_add_u32 v{vA_}, v4, 11, v5")
    a.e(f"v_lshlrev_b32 v{vB_}, 4, v3")
    for qi in range(3):
        a.e(f"s_add_u32 s24, s{sW}, {4*qi}")
        a.e(f"s_lshl_b32 s{40+qi}, s24, 10")
        a.e(f"s_lshl_b32 s{43+qi}, s24, 14")
    a.e(f"s_mul_i32 s46, s{sW}, {BPW*1024}")
    a.e(f"s_add_u32 s47, s46, {ABYTES}")

    def issue(step):
        sl = step % S
        p, k = step // KST, step % KST
        for qi in range(3):
            a.e(f"s_add_u32 m0, s{40+qi}, {sl*SLOT}")
            a.e(f"s_add_u32 s24, s{43+qi}, {k*128}")
            a.e(f"buffer_load_dwordx4 v{vA_}, s[{sA}:{sA+3}], s24 offen lds")
            a.vm_issue(step)
        a.e(f"s_add_u32 m0, s47, {sl*SLOT}")
        a.e(f"s_add_u32 s24, s46, {k*32768 + p*CTP*2048}")
        for x in range(BPW):
            a.e(f"buffer_load_dwordx4 v{vB_}, s[{sB}:{sB+3}], s24 offen offset:{x*1024} lds")
            a.vm_issue(step)

    a.vm = []
    issue(0)
    issue(1)
    a.wait(vm_tags=(0,))
    a.e("s_barrier")
    nxt = 2
    issue(nxt); nxt += 1
    for s in range(NSTEP - 1):
        a.wait(vm_tags=(s + 1,))
        a.e("s_barrier")
        cnt = 0
        while nxt <= min(s + S, NSTEP - 1) and cnt < 2:
            issue(nxt); nxt += 1; cnt += 1
    assert nxt == NSTEP
    a.label(f"L_{name}_done")
    a.e("s_endpgm")
    return a.text(), LDS, NV
```

```python
from asmlib import Asm, Stamps, f2u
from layout import *
from mid import gelu_group2, gelu_group_pk, GK0, GK1

LOG2E2 = 2.8853900817779268
ATHR = 40.0
BTHR = 84.0


def joint_kernel(name, exp=""):
    a = Asm()
    NWG = 250
    sW = 20
    sR = 21
    STG = 0
    JB = [0, 16384, 32768]
    CSL = 49152
    FB = 65536
    EAP = 1056
    EAT = FB + 16384
    OTP = 528
    OT = [EAT + 32 * EAP, EAT + 32 * EAP + 32 * OTP]
    LDS = OT[1] + 32 * OTP
    sY, sT, sO = 8, 12, 16
    a.label(name)
    a.e(f"s_cmp_ge_u32 s2, {NWG}")
    a.e(f"s_cbranch_scc1 L_{name}_done")
    if "trace" in exp and a.trace_region is None: a.trace_begin(4)
    st_ = Stamps(a, "stamp" in exp)
    HS = "hstamp" in exp
    st_.begin()

    def ms():
        if not HS: st_.stamp()

    def hs():
        if HS: st_.stamp()
    a.e("s_load_dwordx2 s[6:7], s[0:1], 72")
    a.e("s_load_dwordx2 s[4:5], s[0:1], 56")
    a.e(f"v_readfirstlane_b32 s{sW}, v0")
    a.e(f"s_lshr_b32 s{sW}, s{sW}, 6")
    a.e(f"s_and_b32 s{sR}, s{sW}, 3")
    a.e("s_cmp_ge_u32 s2, 125")
    a.e("s_cselect_b32 s24, 1, 0")
    a.e("s_mul_i32 s25, s24, 125")
    a.e("s_sub_u32 s25, s2, s25")
    for jt in range(2):
        a.e(f"s_lshl_b32 s26, s25, 1")
        a.e(f"s_add_u32 s26, s26, {jt}")
        a.e(f"s_mul_i32 s27, s26, 171")
        a.e(f"s_lshr_b32 s{28+jt}, s27, 9")
        a.e(f"s_mul_i32 s27, s{28+jt}, 3")
        a.e(f"s_sub_u32 s{30+jt}, s26, s27")
    lane = 1
    a.e(f"v_and_b32 v{lane}, 63, v0")
    a.e(f"v_lshlrev_b32 v5, 4, v{lane}")
    a.e("s_waitcnt lgkmcnt(0)")
    a.add64(sT, 6, WS_TAB)
    a.e(f"s_mov_b32 s{sT+2}, {TAB_WO + 131072}")
    a.e(f"s_mov_b32 s{sT+3}, 0x00020000")
    a.e("s_mul_i32 s36, s24, 4000")
    a.e("s_lshl_b32 s37, s25, 5")
    a.e("s_add_u32 s36, s36, s37")
    a.e("s_lshl_b32 s36, s36, 12")
    a.e(f"s_add_u32 s{sO}, s4, s36")
    a.e(f"s_addc_u32 s{sO+1}, s5, 0")
    a.e(f"s_mov_b32 s{sO+2}, 131072")
    a.e(f"s_mov_b32 s{sO+3}, 0x00020000")
    a.e(f"s_lshl_b32 s38, s{sR}, 15")

    def w_load(i, tab):
        kp, it = i >> 1, i & 1
        r_ = (it * 16 + kp) * 4
        a.e(f"s_add_u32 s36, s38, {tab + (it*16+kp)*1024}")
        a.e(f"buffer_load_dwordx4 a[{r_}:{r_+3}], v5, s[{sT}:{sT+3}], s36 offen")
        a.vm_issue(("W", i))

    a.e(f"s_cmp_ge_u32 s{sW}, 4")
    a.e(f"s_cbranch_scc1 L_{name}_helper")

    if "nol2pf" not in exp:
        a.e("s_lshr_b32 s36, s2, 3")
        a.e("s_and_b32 s36, s36, 31")
        a.e("s_lshl_b32 s36, s36, 13")
        a.e(f"s_add_u32 s36, s36, {TAB_WF}")
        a.e(f"v_lshlrev_b32 v6, 7, v{lane}")
        a.e(f"s_cmp_lg_u32 s{sW}, 0")
        a.e(f"s_cbranch_scc1 L_{name}_nopf")
        a.e(f"buffer_load_dword v7, v6, s[{sT}:{sT+3}], s36 offen")
        a.label(f"L_{name}_nopf")
    a.e(f"v_lshrrev_b32 v2, 2, v{lane}")
    a.e("v_lshlrev_b32 v2, 6, v2")
    a.e(f"v_lshrrev_b32 v3, 5, v{lane}")
    a.e("v_lshlrev_b32 v3, 1, v3")
    a.e(f"v_and_b32 v4, 3, v{lane}")
    a.e("v_xor_b32 v3, v3, v4")
    a.e("v_lshl_add_u32 v2, v3, 4, v2")
    a.e(f"s_lshl_b32 s34, s{sR}, 14")
    a.e(f"s_lshl_b32 s35, s{sR}, 13")
    a.e(f"s_mul_i32 s33, s24, {NB2*YROW}")
    a.e(f"s_add_u32 s33, s33, {WS_YH2}")
    a.e(f"s_add_u32 s{sY}, s6, s33")
    a.e(f"s_addc_u32 s{sY+1}, s7, 0")
    a.e(f"s_mov_b32 s{sY+2}, {NB2*YROW}")
    a.e(f"s_mov_b32 s{sY+3}, 0x00020000")

    def ydma(jt):
        a.e(f"s_mul_i32 s36, s{28+jt}, {YROW}")
        a.e("s_add_u32 s36, s36, s35")
        for ci in range(2):
            a.e(f"s_add_u32 m0, s34, {STG + (jt*2+ci)*4096}")
            a.e(f"s_add_u32 s37, s36, {ci*4096}")
            for q in range(4):
                a.e(f"buffer_load_dwordx4 v2, s[{sY}:{sY+3}], s37 offen offset:{q*1024} lds")
                if jt == 0:
                    a.vm_issue(("Y", ci))
    a.e("s_mov_b32 s46, 0")
    a.e("s_cmp_eq_u32 s28, s29")
    a.e(f"s_cbranch_scc1 L_{name}_same")
    ydma(1)
    a.e("s_mov_b32 s46, 8192")
    a.label(f"L_{name}_same")
    FI = 8
    for jt in range(2):
        a.e(f"s_lshl_b32 s36, s{30+jt}, 11")
        a.e(f"s_add_u32 s36, s36, {TAB_FI}")
        for kk in range(2):
            r_ = FI + (jt * 2 + kk) * 4
            a.e(f"buffer_load_dwordx4 v[{r_}:{r_+3}], v5, s[{sT}:{sT+3}], s36 offen offset:{kk*1024}")
            a.vm_issue("FI")
    ydma(0)
    nw_early = int(exp.split("woearly=")[1].split(",")[0]) if "woearly=" in exp else 0
    for i in range(nw_early):
        w_load(i, TAB_WO)
    rr, gg, cc = 32, 33, 34
    a.e(f"v_bfe_u32 v{rr}, v{lane}, 2, 2")
    a.e(f"v_lshrrev_b32 v{gg}, 4, v{lane}")
    a.e(f"v_and_b32 v{cc}, 3, v{lane}")
    vI = [[36, 37], [38, 39]]
    a.e(f"v_lshl_add_u32 v35, v{gg}, 3, v{rr}")
    a.e("v_lshlrev_b32 v40, 6, v35")
    a.e(f"v_and_b32 v41, 1, v{gg}")
    a.e("v_lshlrev_b32 v41, 1, v41")
    a.e(f"v_lshrrev_b32 v42, 1, v{cc}")
    a.e("v_xor_b32 v41, v41, v42")
    a.e("v_lshl_add_u32 v40, v41, 4, v40")
    a.e(f"v_and_b32 v42, 1, v{cc}")
    a.e("v_lshl_add_u32 v40, v42, 3, v40")
    a.e(f"v_add_u32 v{vI[0][0]}, s34, v40")
    a.e(f"v_xor_b32 v{vI[0][1]}, 32, v{vI[0][0]}")
    a.e(f"v_add_u32 v{vI[1][0]}, s46, v{vI[0][0]}")
    a.e(f"v_add_u32 v{vI[1][1]}, s46, v{vI[0][1]}")
    vFW = 43
    a.e(f"v_lshrrev_b32 v41, 1, v{gg}")
    a.e("v_lshlrev_b32 v41, 10, v41")
    a.e(f"v_and_b32 v42, 1, v{gg}")
    a.e("v_lshl_add_u32 v41, v42, 9, v41")
    a.e(f"v_and_b32 v42, 15, v{lane}")
    a.e("v_lshl_add_u32 v41, v42, 4, v41")
    a.e(f"s_lshl_b32 s36, s{sR}, 12")
    a.e(f"s_add_u32 s36, s36, {FB}")
    a.e(f"v_add_u32 v{vFW}, s36, v41")
    vK0 = 44
    a.e(f"s_mov_b32 s40, 0x{f2u(GK1):08x}")
    a.e(f"v_mov_b32 v{vK0}, 0x{f2u(GK0):08x}")
    a.e(f"s_mov_b32 s41, 0x{f2u(GK1):08x}")
    a.e(f"v_mov_b32 v{vK0+1}, 0x{f2u(GK0):08x}")
    ms()
    AA, DD, TT, PK = [48, 84], [64, 100], 72, [80, 108]
    units = [(jt, ci) for ci in range(2) for jt in range(2)]

    def a_reads(ui):
        jt, ci = units[ui]
        for t in range(2):
            for kk in range(2):
                r_ = AA[ui & 1] + (t * 2 + kk) * 4
                for xx in range(2):
                    a.e(f"ds_read_b64_tr_b16 v[{r_+2*xx}:{r_+2*xx+1}], v{vI[jt][t]} offset:{ci*4096 + kk*2048 + xx*256}")
                    a.lg_issue(("AR", ui))
    a.lg = []
    a.wait(vm_tags=(("Y", 0),))
    ms()
    a_reads(0)
    nwi = nw_early
    PACE = int(exp.split("pace=")[1].split(",")[0]) if "pace=" in exp else 0

    def paced(lines_start):
        nonlocal nwi
        body = a.L[lines_start:]
        del a.L[lines_start:]
        cnt = 0
        for ln in body:
            a.L.append(ln)
            cnt += 1
            if PACE and cnt % PACE == 0 and nwi < 32:
                w_load(nwi, TAB_WO); nwi += 1

    for ui, (jt, ci) in enumerate(units):
        if ui == 1:
            a.wait(vm_tags=(("Y", 1),))
        a.wait(lg_tags=(("AR", ui),))
        for kk in range(2):
            for t in range(2):
                d = DD[ui & 1] + t * 4
                r_ = AA[ui & 1] + (t * 2 + kk) * 4
                f = FI + (jt * 2 + kk) * 4
                c = "0" if kk == 0 else f"v[{d}:{d+3}]"
                a.e(f"v_mfma_f32_16x16x32_bf16 v[{d}:{d+3}], v[{r_}:{r_+3}], v[{f}:{f+3}], {c}")
        if ui + 1 < 4:
            a_reads(ui + 1)
        else:
            a.e("s_nop 7")
        xs = [DD[ui & 1] + i for i in range(8)]
        mark = len(a.L)
        if "pk" not in exp.split(","): gelu_group2(a, xs, TT, vK0, 40)
        else: gelu_group_pk(a, xs, TT, vK0, 40)
        if ui >= 1: paced(mark)
        pk = PK[ui & 1]
        for i in range(4):
            a.e(f"v_cvt_pk_bf16_f32 v{pk+i}, v{xs[2*i]}, v{xs[2*i+1]}")
        a.e(f"ds_write_b128 v{vFW}, v[{pk}:{pk+3}] offset:{ci*2048 + jt*256}")
        a.lg_issue(("FW", ui))
    ms()
    nw = nwi
    a.e("s_waitcnt lgkmcnt(0)")
    a.e("s_barrier")
    a.lg = []
    if "earlyprio" in exp:
        a.e("s_setprio 3")
    ms()
    while nw < 32:
        w_load(nw, TAB_WO); nw += 1
        if nw in (8, 16, 24) and "finestamp" in exp: ms()
    ms()
    ACC = [8, 40]
    CS = 72
    JR = 104
    NJR, PRE = 4, 3
    OP = 120
    vJR, vOW = 5, 6
    a.e(f"v_and_b32 v46, 31, v{lane}")
    a.e(f"v_mul_u32_u24 v47, {OTP}, v46")
    a.e(f"v_lshrrev_b32 v45, 5, v{lane}")
    a.e(f"v_lshl_add_u32 v47, v45, 4, v47")
    a.e(f"s_lshl_b32 s36, s{sR}, 7")
    a.e(f"s_add_u32 s36, s36, {OT[0]}")
    a.e(f"v_add_u32 v{vOW}, s36, v47")
    a.e(f"v_lshlrev_b32 v7, 6, v45")
    a.e(f"s_lshl_b32 s36, s{sR}, 8")
    a.e(f"s_add_u32 s36, s36, {TAB_CS}")
    for it in range(2):
        for x in range(4):
            a.e(f"buffer_load_dwordx4 v[{CS+16*it+4*x}:{CS+16*it+4*x+3}], v7, s[{sT}:{sT+3}], s36 offen offset:{it*128 + x*16}")
    if "noprio" not in exp:
        a.e("s_setprio 1")
    a.e("s_waitcnt vmcnt(0)")
    a.vm = []
    ms()
    a.e("s_barrier")
    ms()
    a.lg = []

    def emit(op):
        s, tag = op
        if s is not None:
            if "j_nostore" in exp and s.startswith("buffer_store"): return
        if tag and tag[0] == "wait_lg":
            a.wait(lg_tags=tag[1])
            return
        a.e(s)
        if tag:
            if tag[0] == "lg": a.lg_issue(tag[1])
            else: a.vm_issue(tag[1])

    def jread(i, k):
        r_ = JR + ((16 * i + k) % NJR) * 4
        a.e(f"ds_read_b128 v[{r_}:{r_+3}], v{vJR} offset:{JB[i % 3] + k*1024}")
        a.lg_issue(("JR", i, k))

    def out_wr(i):
        ops = []
        acc = ACC[i & 1]
        dlt = OT[i & 1] - OT[0]
        for it in range(2):
            for qp in range(2):
                r_ = OP + qp * 4
                for k in range(4):
                    s0 = acc + it * 16 + qp * 8 + 2 * k
                    ops.append((f"v_cvt_pk_bf16_f32 v{r_+k}, v{s0}, v{s0+1}", None))
                ops.append((f"ds_write_b128 v{vOW}, v[{r_}:{r_+3}] offset:{dlt + it*64 + qp*32}", ("lg", ("OW", i))))
        return ops

    for k in range(PRE): jread(0, k)
    for u in range(8):
        acc = ACC[u & 1]
        per = [[] for _ in range(32)]
        if u > 0:
            ow = out_wr(u - 1)
            for i, op in enumerate(ow):
                per[2 + (i * 20) // len(ow)].append(op)
        for k in range(16):
            a.wait(lg_tags=(("JR", u, k),))
            r_ = JR + ((16 * u + k) % NJR) * 4
            for it in range(2):
                d = acc + it * 16
                w_ = (it * 16 + k) * 4
                c = f"v[{CS+16*it}:{CS+16*it+15}]" if k == 0 else f"v[{d}:{d+15}]"
                a.e(f"v_mfma_f32_32x32x16_bf16 v[{d}:{d+15}], a[{w_}:{w_+3}], v[{r_}:{r_+3}], {c}")
                if it == 0:
                    if k + PRE < 16:
                        jread(u, k + PRE)
                    elif u + 1 < 8:
                        jread(u + 1, k + PRE - 16)
                for op in per[2 * k + it]: emit(op)
            if k == 15:
                a.wait(lg_tags=(("OW", u - 1),))
                a.e("s_barrier")
        if u == 0: ms()
    ms()
    a.e("s_nop 7")
    a.e("s_nop 7")
    for op in out_wr(7): emit(op)
    a.wait(lg_tags=(("OW", 7),))
    a.e("s_barrier")
    if st_.on and not HS:
        ms()
        st_.dump(int(exp.split("wg=")[1].split(",")[0]) if "wg=" in exp else 0, sW, 0, f"L_{name}_nodump")
    a.end()

    a.label(f"L_{name}_helper")
    a.vm = []
    a.lg = []
    nw = 0
    EBV = 96
    a.e(f"v_and_b32 v14, 7, v{lane}")
    a.e("v_lshlrev_b32 v14, 10, v14")
    a.e(f"v_lshrrev_b32 v15, 5, v{lane}")
    a.e("v_lshl_add_u32 v14, v15, 4, v14")
    a.e("s_lshl_b32 s36, s24, 13")
    a.e(f"s_lshl_b32 s37, s{sR}, 8")
    a.e("s_add_u32 s36, s36, s37")
    a.e(f"s_add_u32 s37, s36, {TAB_BP}")
    for it in range(2):
        for q in range(4):
            r_ = EBV + (it * 4 + q) * 4
            a.e(f"buffer_load_dwordx4 v[{r_}:{r_+3}], v14, s[{sT}:{sT+3}], s37 offen offset:{(32*it + 8*q)*4}")
            a.vm_issue("BP")
    NWF0 = int(exp.split("nwf0=")[1].split(",")[0]) if "nwf0=" in exp else 32
    while nw < NWF0:
        w_load(nw, TAB_WF); nw += 1
    a.wait(vm_tags=("BP",))
    a.e(f"v_max3_f32 v8, |v{EBV}|, |v{EBV+1}|, |v{EBV+2}|")
    for i in range(3, 31, 2):
        a.e(f"v_max3_f32 v8, v8, |v{EBV+i}|, |v{EBV+i+1}|")
    a.e(f"v_max_f32 v8, v8, |v{EBV+31}|")
    a.e(f"s_mov_b32 s41, 0x{f2u(BTHR):08x}")
    a.e("v_cmp_lt_f32 s[42:43], s41, v8")
    for i in range(32):
        a.e(f"v_exp_f32 v{EBV+i}, v{EBV+i}")
    hs()
    a.e("s_barrier")
    hs()
    ACF, BFR = 32, 64
    a.e(f"v_add_u32 v7, {FB}, v5")
    for k8 in range(8):
        a.e(f"ds_read_b128 v[{BFR+4*k8}:{BFR+4*k8+3}], v7 offset:{k8*1024}")
        a.lg_issue(("FR", k8))
    for kp in range(16):
        k8 = kp & 7
        for _ in range(2):
            if nw < 32:
                w_load(nw, TAB_WF); nw += 1
        assert nw > 2 * kp + 1
        a.wait(vm_tags=[("W", 2 * kp + 1)], lg_tags=[("FR", kp)])
        for it in range(2):
            d = ACF + it * 16
            w_ = (it * 16 + kp) * 4
            c = "0" if kp == 0 else f"v[{d}:{d+15}]"
            a.e(f"v_mfma_f32_32x32x16_bf16 v[{d}:{d+15}], a[{w_}:{w_+3}], v[{BFR+4*k8}:{BFR+4*k8+3}], {c}")
        if kp >= 1 and kp + 7 < 16:
            kn = kp + 7
            a.e(f"ds_read_b128 v[{BFR+4*(kn & 7)}:{BFR+4*(kn & 7)+3}], v7 offset:{kn*1024}")
            a.lg_issue(("FR", kn))
    hs()
    vJW, vEA, vOR, vOS, vEW = 2, 4, 6, 7, 9
    a.e(f"s_lshl_b32 s36, s{sR}, 12")
    a.e(f"v_add_u32 v{vJW}, s36, v5")
    a.e(f"v_lshrrev_b32 v10, 5, v{lane}")
    a.e(f"v_lshlrev_b32 v11, 4, v10")
    a.e(f"s_lshl_b32 s36, s{sR}, 8")
    a.e(f"s_add_u32 s36, s36, {EAT}")
    a.e(f"v_add_u32 v11, s36, v11")
    a.e(f"v_and_b32 v12, 31, v{lane}")
    a.e(f"v_mul_u32_u24 v13, {EAP}, v12")
    a.e(f"v_add_u32 v{vEW}, v11, v13")
    a.e(f"v_lshrrev_b32 v13, 3, v12")
    a.e(f"v_mul_u32_u24 v13, {EAP}, v13")
    a.e(f"v_add_u32 v{vEA}, v11, v13")
    a.e(f"s_lshl_b32 s36, s{sR}, 3")
    a.e(f"v_add_u32 v10, s36, v10")
    a.e(f"v_mul_u32_u24 v13, {OTP}, v10")
    a.e(f"v_lshl_add_u32 v13, v12, 4, v13")
    a.e(f"v_add_u32 v{vOR}, {OT[0]}, v13")
    a.e(f"v_lshlrev_b32 v13, 9, v10")
    a.e(f"v_lshl_add_u32 v{vOS}, v12, 4, v13")
    AP = 64
    a.e(f"s_mov_b32 s41, 0x{f2u(LOG2E2):08x}")
    for i in range(32):
        a.e(f"v_mul_f32 v{AP+i}, s41, v{ACF+i}")
    a.e(f"v_max3_f32 v8, |v{AP}|, |v{AP+1}|, |v{AP+2}|")
    for i in range(3, 31, 2):
        a.e(f"v_max3_f32 v8, v8, |v{AP+i}|, |v{AP+i+1}|")
    a.e(f"v_max_f32 v8, v8, |v{AP+31}|")
    a.e(f"s_mov_b32 s41, 0x{f2u(ATHR):08x}")
    a.e("v_cmp_lt_f32 vcc, s41, v8")
    a.e("s_nop 3")
    a.e("s_or_b64 s[42:43], s[42:43], vcc")
    a.e("s_cmp_lg_u64 s[42:43], 0")
    a.e("s_cselect_b32 s44, 1, 0")
    if "forceslow" in exp:
        a.e("s_mov_b32 s44, 1")
    a.e("s_cmp_lg_u32 s44, 0")
    a.e(f"s_cbranch_scc1 L_{name}_slow")
    vm2 = list(a.vm)

    def helper(slow):
        a.vm = list(vm2)
        a.lg = []
        EAV = 32
        TT = 64
        JP = 80
        if not slow:
            for i in range(32):
                a.e(f"v_exp_f32 v{ACF+i}, v{AP+i}")
            src = ACF
        else:
            for it in range(2):
                for q in range(4):
                    r_ = EBV + (it * 4 + q) * 4
                    a.e(f"buffer_load_dwordx4 v[{r_}:{r_+3}], v14, s[{sT}:{sT+3}], s37 offen offset:{(32*it + 8*q)*4}")
            a.e("s_waitcnt vmcnt(0)")
            a.vm = []
            src = AP
        for it in range(2):
            for q in range(4):
                r_ = src + (it * 4 + q) * 4
                a.e(f"ds_write_b128 v{vEW}, v[{r_}:{r_+3}] offset:{(32*it + 8*q)*4}")
        a.e("s_waitcnt lgkmcnt(0)")

        def ea_read(i, grp):
            it, qp = grp >> 1, grp & 1
            for s_ in range(2):
                q = 2 * qp + s_
                r_ = EAV + (it * 4 + q) * 4
                a.e(f"ds_read_b128 v[{r_}:{r_+3}], v{vEA} offset:{i*4*EAP + (32*it + 8*q)*4}")
                a.lg_issue(("EA", i, grp))

        def tanh(i, mid=None):
            for grp in range(4):
                t0 = TT + (grp & 1) * 8
                jp = JP + (grp & 1) * 4
                a.wait(lg_tags=(("EA", i, grp),))
                for x in range(8):
                    if slow: a.e(f"v_add_f32 v{t0+x}, v{EAV+grp*8+x}, v{EBV+grp*8+x}")
                    else: a.e(f"v_fma_f32 v{t0+x}, v{EAV+grp*8+x}, v{EBV+grp*8+x}, 1.0")
                if i + 1 < 8: ea_read(i + 1, grp)
                if slow:
                    for x in range(8): a.e(f"v_exp_f32 v{t0+x}, v{t0+x}")
                    for x in range(8): a.e(f"v_add_f32 v{t0+x}, 1.0, v{t0+x}")
                for x in range(8): a.e(f"v_rcp_f32 v{t0+x}, v{t0+x}")
                if mid and grp in mid: mid[grp]()
                else: a.e("s_nop 0")
                for k in range(4):
                    a.e(f"v_cvt_pk_bf16_f32 v{jp+k}, v{t0+2*k}, v{t0+2*k+1}")
                a.e(f"ds_write_b128 v{vJW}, v[{jp}:{jp+3}] offset:{JB[i % 3] + grp*1024}")
                a.lg_issue(("JW", i))

        def out_rd(i, ks=(0, 1, 2, 3)):
            dlt = OT[i & 1] - OT[0]
            for k in ks:
                a.e(f"ds_read_b128 a[{4*k}:{4*k+3}], v{vOR} offset:{dlt + 2*k*OTP}")
                a.lg_issue(("OR", i, k))

        def out_st(i, ks=(0, 1, 2, 3)):
            for k in ks:
                a.wait(lg_tags=(("OR", i, k),))
                if "j_nostore" in exp: continue
                a.e(f"s_mov_b32 s36, {i*16384 + k*1024}")
                a.e(f"buffer_store_dwordx4 a[{4*k}:{4*k+3}], v{vOS}, s[{sO}:{sO+3}], s36 offen")
                a.vm_issue(("O", i))

        if not slow: hs()
        for grp in range(4): ea_read(0, grp)
        tanh(0)
        tanh(1)
        a.wait(lg_tags=(("JW", 1),))
        if not slow: hs()
        a.e("s_barrier")
        if not slow: hs()
        mark = len(a.L)
        for u in range(8):
            if "j_hidle" in exp:
                a.e("s_barrier")
                continue
            if u >= 2:
                out_rd(u - 2)
            if u + 2 < 8:
                mid = {}
                if u >= 2:
                    mid = {0: (lambda uu=u: out_st(uu - 2, (0, 1))), 1: (lambda uu=u: out_st(uu - 2, (2, 3)))}
                tanh(u + 2, mid)
                a.wait(lg_tags=(("JW", u + 2),))
            elif u >= 2:
                out_st(u - 2)
            if not slow and u in (2, 3): hs()
            a.e("s_barrier")
            if not slow and u in (2, 3): hs()
        if "j_hnovalu" in exp:
            a.L[mark:] = [l for l in a.L[mark:] if not l.strip().startswith("v_")]
        if "j_hnolds" in exp:
            a.L[mark:] = [l for l in a.L[mark:] if not l.strip().startswith("ds_")]
        if "j_hnotrans" in exp:
            a.L[mark:] = [l for l in a.L[mark:] if not l.strip().startswith("v_rcp")]
        out_rd(6)
        out_st(6)
        a.e("s_barrier")
        out_rd(7)
        out_st(7)
        if st_.on and HS and not slow:
            st_.stamp()
            a.e("s_waitcnt vmcnt(0)")
            st_.stamp()
            st_.dump(0, sW, 4, f"L_{name}_nodump")
        a.end()

    helper(False)
    a.label(f"L_{name}_slow")
    helper(True)
    a.label(f"L_{name}_done")
    a.e("s_endpgm")
    return a.text(), LDS, 256, NWG
```

```python
from asmlib import Asm, Stamps, f2u
from layout import *
from prep import ghat_part

GK0 = -2.302208198144325
GK1 = GK0 * 0.044715


def gelu_group(a, xs, tmp, s0):
    n = len(xs)
    for i, x in enumerate(xs):
        a.e(f"v_mul_f32 v{tmp+i}, v{x}, v{x}")
    for i, x in enumerate(xs):
        a.e(f"v_fma_f32 v{tmp+i}, v{tmp+i}, s{s0}, v{x}") if False else None
    for i, x in enumerate(xs):
        a.e(f"v_mul_f32 v{tmp+i}, s{s0}, v{tmp+i}")
    for i, x in enumerate(xs):
        a.e(f"v_add_f32 v{tmp+i}, s{s0+1}, v{tmp+i}")
    for i, x in enumerate(xs):
        a.e(f"v_mul_f32 v{tmp+i}, v{tmp+i}, v{x}")
    for i, x in enumerate(xs):
        a.e(f"v_exp_f32 v{tmp+i}, v{tmp+i}")
    for i, x in enumerate(xs):
        a.e(f"v_add_f32 v{tmp+i}, 1.0, v{tmp+i}")
    for i, x in enumerate(xs):
        a.e(f"v_rcp_f32 v{tmp+i}, v{tmp+i}")
    for i, x in enumerate(xs):
        a.e(f"v_mul_f32 v{x}, v{x}, v{tmp+i}")


def gelu_group2(a, xs, tmp, vk1, s0):
    for i, x in enumerate(xs):
        a.e(f"v_mul_f32 v{tmp+i}, v{x}, v{x}")
    for i, x in enumerate(xs):
        a.e(f"v_fma_f32 v{tmp+i}, v{tmp+i}, s{s0}, v{vk1}")
    for i, x in enumerate(xs):
        a.e(f"v_mul_f32 v{tmp+i}, v{tmp+i}, v{x}")
    for i, x in enumerate(xs):
        a.e(f"v_exp_f32 v{tmp+i}, v{tmp+i}")
    for i, x in enumerate(xs):
        a.e(f"v_add_f32 v{tmp+i}, 1.0, v{tmp+i}")
    for i, x in enumerate(xs):
        a.e(f"v_rcp_f32 v{tmp+i}, v{tmp+i}")
    for i, x in enumerate(xs):
        a.e(f"v_mul_f32 v{x}, v{x}, v{tmp+i}")


def gelu_group_pk(a, xs, tmp, vk0, sk1):
    n = len(xs)
    x0 = xs[0]
    assert x0 % 2 == 0 and tmp % 2 == 0 and vk0 % 2 == 0 and sk1 % 2 == 0 and xs == list(range(x0, x0 + n))
    P = range(0, n, 2)
    for i in P:
        a.e(f"v_pk_mul_f32 v[{tmp+i}:{tmp+i+1}], v[{x0+i}:{x0+i+1}], v[{x0+i}:{x0+i+1}]")
    for i in P:
        a.e(f"v_pk_fma_f32 v[{tmp+i}:{tmp+i+1}], v[{tmp+i}:{tmp+i+1}], s[{sk1}:{sk1+1}], v[{vk0}:{vk0+1}]")
    for i in P:
        a.e(f"v_pk_mul_f32 v[{tmp+i}:{tmp+i+1}], v[{tmp+i}:{tmp+i+1}], v[{x0+i}:{x0+i+1}]")
    for i in range(n):
        a.e(f"v_exp_f32 v{tmp+i}, v{tmp+i}")
    for i in P:
        a.e(f"v_pk_add_f32 v[{tmp+i}:{tmp+i+1}], v[{tmp+i}:{tmp+i+1}], 1.0 op_sel_hi:[1,0]")
    for i in range(n):
        a.e(f"v_rcp_f32 v{tmp+i}, v{tmp+i}")
    for i in P:
        a.e(f"v_pk_mul_f32 v[{x0+i}:{x0+i+1}], v[{x0+i}:{x0+i+1}], v[{tmp+i}:{tmp+i+1}]")


def mid_kernel(name, exp=""):
    a = Asm()
    NMAIN = 2 * 28 * 8
    G2 = "g2inprep" not in exp and "g2ingemm" not in exp
    NWG = NMAIN + (256 if G2 else 0)
    sW = 20
    STG = 0
    HT = 32768
    PL = 160 * 64
    LDS = HT + 2 * PL
    SH0, SH1 = 17 * 64, 16 * 64
    sY, sT, sO = 8, 12, 16
    a.label(name)
    a.e(f"s_cmp_ge_u32 s2, {NWG}")
    a.e(f"s_cbranch_scc1 L_{name}_done")
    if "trace" in exp and a.trace_region is None: a.trace_begin(2)
    st_ = Stamps(a, "stamp" in exp)
    st_.begin()
    a.e(f"v_readfirstlane_b32 s{sW}, v0")
    a.e(f"s_lshr_b32 s{sW}, s{sW}, 6")
    if G2:
        a.e(f"s_cmp_ge_u32 s2, {NMAIN}")
        a.e(f"s_cbranch_scc1 L_{name}_g")
    a.e("s_load_dwordx2 s[6:7], s[0:1], 72")
    a.e(f"s_load_dwordx2 s[4:5], s[0:1], {X_PTR}")
    a.e("s_cmp_ge_u32 s2, 224")
    a.e("s_cselect_b32 s24, 1, 0")
    a.e("s_mul_i32 s25, s24, 224")
    a.e("s_sub_u32 s25, s2, s25")
    a.e("s_lshr_b32 s26, s25, 3")
    a.e("s_and_b32 s27, s25, 7")
    lane = 1
    a.e(f"v_and_b32 v{lane}, 63, v0")
    a.e(f"v_lshrrev_b32 v2, 2, v{lane}")
    a.e("v_lshlrev_b32 v2, 6, v2")
    a.e(f"v_lshrrev_b32 v3, 5, v{lane}")
    a.e("v_lshlrev_b32 v3, 1, v3")
    a.e(f"v_and_b32 v4, 3, v{lane}")
    a.e("v_xor_b32 v3, v3, v4")
    a.e("v_lshl_add_u32 v2, v3, 4, v2")
    a.e("s_mul_i32 s28, s26, 6")
    a.e(f"s_lshl_b32 s29, s{sW}, 1")
    a.e("s_add_u32 s28, s28, s29")
    a.e("s_sub_u32 s28, s28, 1")
    a.e("s_lshl_b32 s30, s27, 12")
    for bb in range(2):
        a.e(f"s_add_u32 s31, s28, {bb}")
        a.e(f"s_mul_i32 s32, s31, {YROW}")
        a.e("s_add_u32 s32, s32, s30")
        a.e("s_cmp_lt_i32 s31, 0")
        a.e("s_cselect_b32 s32, 0x7f000000, s32")
        a.e(f"v_add_u32 v{3+bb}, s32, v2")
    a.e("s_waitcnt lgkmcnt(0)")
    a.e(f"s_mul_i32 s33, s24, {NB1*YROW}")
    a.e(f"s_add_u32 s33, s33, {WS_YH1}")
    a.e(f"s_add_u32 s{sY}, s6, s33")
    a.e(f"s_addc_u32 s{sY+1}, s7, 0")
    a.e(f"s_mov_b32 s{sY+2}, {NB1*YROW}")
    a.e(f"s_mov_b32 s{sY+3}, 0x00020000")
    a.add64(sT, 6, WS_TAB)
    a.e(f"s_mov_b32 s{sT+2}, 16384")
    a.e(f"s_mov_b32 s{sT+3}, 0x00020000")
    a.e(f"s_lshl_b32 s34, s{sW}, 13")
    for bb in range(2):
        a.e(f"s_add_u32 m0, s34, {STG + bb*4096}")
        a.e("s_nop 0")
        for q in range(4):
            a.e(f"buffer_load_dwordx4 v{3+bb}, s[{sY}:{sY+3}], 0 offen offset:{q*1024} lds")
            a.vm_issue(("Y", bb))
    FI, FF = 8, 32
    a.e(f"v_lshlrev_b32 v5, 4, v{lane}")
    for jt in range(3):
        for kk in range(2):
            r_ = FI + (jt * 2 + kk) * 4
            a.e(f"s_mov_b32 s35, {TAB_FI + (jt*2+kk)*1024}")
            a.e(f"buffer_load_dwordx4 v[{r_}:{r_+3}], v5, s[{sT}:{sT+3}], s35 offen")
            a.vm_issue("FI")
    a.e(f"s_lshl_b32 s35, s{sW}, 11")
    for kk in range(2):
        a.e(f"buffer_load_dwordx4 v[{FF+4*kk}:{FF+4*kk+3}], v5, s[{sT}:{sT+3}], s35 offen offset:{TAB_F + kk*1024}")
        a.vm_issue("F")
    rr, gg, cc = 40, 41, 42
    a.e(f"v_bfe_u32 v{rr}, v{lane}, 2, 2")
    a.e(f"v_lshrrev_b32 v{gg}, 4, v{lane}")
    a.e(f"v_and_b32 v{cc}, 3, v{lane}")
    vI = [44, 45]
    a.e(f"v_lshl_add_u32 v43, v{gg}, 3, v{rr}")
    a.e(f"v_lshlrev_b32 v46, 6, v43")
    a.e(f"v_and_b32 v47, 1, v{gg}")
    a.e("v_lshlrev_b32 v47, 1, v47")
    a.e(f"v_lshrrev_b32 v48, 1, v{cc}")
    a.e("v_xor_b32 v47, v47, v48")
    a.e("v_lshl_add_u32 v46, v47, 4, v46")
    a.e(f"v_and_b32 v48, 1, v{cc}")
    a.e("v_lshl_add_u32 v46, v48, 3, v46")
    a.e(f"v_add_u32 v{vI[0]}, s34, v46")
    a.e(f"v_xor_b32 v{vI[1]}, 32, v{vI[0]}")
    vF0 = [49, 50]
    a.e(f"v_add_u32 v{vF0[0]}, {HT + PL + 16*64 - SH1}, v46")
    a.e(f"v_xor_b32 v{vF0[1]}, 32, v{vF0[0]}")
    vF1 = [[51, 52], [53, 54]]
    for xx in range(2):
        a.e(f"v_add_u32 v47, {1 + 4*xx}, v43")
        a.e("v_bfe_u32 v48, v47, 3, 1")
        a.e("v_lshlrev_b32 v48, 1, v48")
        a.e(f"v_lshrrev_b32 v55, 1, v{cc}")
        a.e("v_xor_b32 v48, v48, v55")
        a.e(f"v_lshlrev_b32 v47, 6, v47")
        a.e("v_lshl_add_u32 v47, v48, 4, v47")
        a.e(f"v_and_b32 v48, 1, v{cc}")
        a.e("v_lshl_add_u32 v47, v48, 3, v47")
        a.e(f"v_add_u32 v{vF1[xx][0]}, {HT + 16*64 - SH0}, v47")
        a.e(f"v_xor_b32 v{vF1[xx][1]}, 32, v{vF1[xx][0]}")
    vH = [56, 57]
    vRho = 62 + 60
    a.e(f"v_and_b32 v47, 1, v{lane}")
    a.e(f"v_mul_u32_u24 v55, {PL - SH1 + SH0}, v47")
    a.e(f"v_bfe_u32 v48, v{lane}, 1, 3")
    a.e("v_lshl_add_u32 v55, v48, 6, v55")
    a.e(f"v_lshl_add_u32 v55, v{gg}, 4, v55")
    a.e(f"s_mul_i32 s35, s{sW}, {48*64}")
    a.e(f"s_add_u32 s35, s35, {HT - SH0}")
    a.e(f"v_add_u32 v{vH[0]}, s35, v55")
    a.e(f"v_xor_b32 v{vH[1]}, 32, v{vH[0]}")
    a.e(f"s_mul_i32 s35, s{sW}, 48")
    a.e(f"s_sub_u32 s35, s35, 17")
    a.e(f"v_add_u32 v{vRho}, v48, v47")
    a.e(f"v_add_u32 v{vRho}, s35, v{vRho}")
    vS = 58
    a.e(f"s_mov_b32 s35, {XBIN2}")
    a.e(f"v_mul_lo_u32 v{vS}, v48, s35")
    a.e(f"v_and_b32 v47, 1, v{lane}")
    a.e(f"v_lshl_add_u32 v{vS}, v47, 6, v{vS}")
    a.e(f"v_lshl_add_u32 v{vS}, v{gg}, 4, v{vS}")
    vK0 = 59
    a.e(f"s_mov_b32 s36, 0x{f2u(GK1):08x}")
    a.e(f"v_mov_b32 v{vK0}, 0x{f2u(GK0):08x}")
    a.e(f"s_mov_b32 s42, 0x{f2u(GK1):08x}")
    a.e(f"s_mov_b32 s43, 0x{f2u(GK1):08x}")
    a.e(f"v_mov_b32 v120, 0x{f2u(GK0):08x}")
    a.e(f"v_mov_b32 v121, 0x{f2u(GK0):08x}")
    a.add64(sO, 4, WS_XH2)
    a.e(f"s_mov_b32 s{sO+2}, {32*XBIN2}")
    a.e(f"s_mov_b32 s{sO+3}, 0x00020000")
    a.e(f"s_mul_i32 s37, s{sW}, {8*XBIN2}")
    a.e(f"s_mul_i32 s38, s24, {NB2}")
    a.e("s_mul_i32 s39, s26, 3")
    a.e("s_add_u32 s38, s38, s39")
    a.e("s_lshl_b32 s38, s38, 11")
    a.e("s_add_u32 s37, s37, s38")
    a.e("s_lshl_b32 s38, s27, 7")
    a.e("s_add_u32 s37, s37, s38")
    AA, DD, TT, PK = 60, 76, 100, 108
    st_.stamp()
    for bb in range(2):
        a.wait(vm_tags=(("Y", bb),) if bb == 1 else (("Y", 0), "FI"))
        if bb == 0:
            st_.stamp()
        for t in range(2):
            for kk in range(2):
                r_ = AA + (t * 2 + kk) * 4
                for xx in range(2):
                    a.e(f"ds_read_b64_tr_b16 v[{r_+2*xx}:{r_+2*xx+1}], v{vI[t]} offset:{bb*4096 + kk*2048 + xx*256}")
        a.e("s_waitcnt lgkmcnt(0)")
        for kk in range(2):
            for jt in range(3):
                for t in range(2):
                    d = DD + (jt * 2 + t) * 4
                    r_ = AA + (t * 2 + kk) * 4
                    f = FI + (jt * 2 + kk) * 4
                    c = "0" if kk == 0 else f"v[{d}:{d+3}]"
                    a.e(f"v_mfma_f32_16x16x32_bf16 v[{d}:{d+3}], v[{r_}:{r_+3}], v[{f}:{f+3}], {c}")
        a.e(f"s_add_u32 s31, s28, {bb}")
        a.e(f"s_cmp_eq_u32 s31, {NB1-1}")
        a.e("s_cselect_b32 s39, 0, -1")
        a.e("s_nop 4")
        for jt in range(3):
            xs = [DD + jt * 8 + i for i in range(8)]
            if "pk" not in exp.split(","): gelu_group2(a, xs, TT, vK0, 36)
            else: gelu_group_pk(a, xs, TT, 120, 42)
            pk = PK + jt * 4
            for i in range(4):
                a.e(f"v_cvt_pk_bf16_f32 v{pk+i}, v{xs[2*i]}, v{xs[2*i+1]}")
            if jt == 2:
                for i in range(4):
                    a.e(f"v_and_b32 v{pk+i}, s39, v{pk+i}")
            a.e(f"v_add_u32 v{vRho+1}, {24*bb + 8*jt}, v{vRho}")
            a.e(f"v_cmp_gt_u32 vcc, 160, v{vRho+1}")
            a.e("s_nop 0")
            a.e("s_and_saveexec_b64 s[40:41], vcc")
            a.e(f"ds_write_b128 v{vH[(bb + jt) & 1]}, v[{pk}:{pk+3}] offset:{(24*bb + 8*jt)*64}")
            a.e("s_mov_b64 exec, s[40:41]")
    st_.stamp()
    a.wait(vm_tags=("F",))
    a.e("s_waitcnt lgkmcnt(0)")
    a.e("s_barrier")
    st_.stamp()
    units = [(aa, p) for aa in range(3) for p in range(2)]
    A2 = [60, 76]
    D2 = [92, 100]
    PK2 = [108, 112]

    def fwd_reads(u):
        aa, p = units[u]
        base = A2[u & 1]
        for t in range(2):
            for kk in range(2):
                r_ = base + (t * 2 + kk) * 4
                for xx in range(2):
                    if p == 0:
                        va, off = vF0[t], (48 * aa + 32 * kk + 4 * xx) * 64
                    else:
                        va, off = vF1[xx][t], (48 * aa + 32 * kk) * 64
                    a.e(f"ds_read_b64_tr_b16 v[{r_+2*xx}:{r_+2*xx+1}], v{va} offset:{off}")
                    a.lg_issue(("A2", u))

    a.lg = []
    fwd_reads(0)
    for u, (aa, p) in enumerate(units):
        a.wait(lg_tags=(("A2", u),))
        if u + 1 < len(units):
            pass
        base = A2[u & 1]
        dd = D2[u & 1]
        for kk in range(2):
            for t in range(2):
                d = dd + t * 4
                r_ = base + (t * 2 + kk) * 4
                c = "0" if kk == 0 else f"v[{d}:{d+3}]"
                a.e(f"v_mfma_f32_16x16x32_bf16 v[{d}:{d+3}], v[{r_}:{r_+3}], v[{FF+4*kk}:{FF+4*kk+3}], {c}")
        if u + 1 < len(units):
            fwd_reads(u + 1)
        else:
            a.e("s_nop 7")
        pk = PK2[u & 1]
        a.e(f"v_cvt_pk_bf16_f32 v{pk}, v{dd}, v{dd+1}")
        a.e(f"v_cvt_pk_bf16_f32 v{pk+1}, v{dd+2}, v{dd+3}")
        a.e(f"v_cvt_pk_bf16_f32 v{pk+2}, v{dd+4}, v{dd+5}")
        a.e(f"v_cvt_pk_bf16_f32 v{pk+3}, v{dd+6}, v{dd+7}")
        a.e(f"s_add_u32 s38, s37, {aa*2048 + p*8*128}")
        a.e(f"buffer_store_dwordx4 v[{pk}:{pk+3}], v{vS}, s[{sO}:{sO+3}], s38 offen")
    if st_.on:
        st_.stamp()
        a.e("s_waitcnt vmcnt(0)")
        st_.stamp()
        st_.dump(int(exp.split("wg=")[1].split(",")[0]) if "wg=" in exp else 0, sW, 0, f"L_{name}_nodump")
    a.end()
    if G2:
        a.label(f"L_{name}_g")
        a.e(f"s_sub_u32 s3, s2, {NMAIN}")
        ghat_part(a, name, 2, sW, "s3")
    a.label(f"L_{name}_done")
    a.e("s_endpgm")
    return a.text(), LDS, 128, NWG
```

```python
from asmlib import Asm, Stamps, f2u
from layout import *

LOG2E2 = 2.8853900817779268


def cos_vals(a, dst, rev0, step, n, tmp):
    for x in range(n):
        if x == 0:
            a.e(f"v_fract_f32 v{dst}, v{rev0}")
        else:
            a.e(f"v_add_f32 v{rev0}, v{rev0}, v{step}")
            a.e(f"v_fract_f32 v{dst+x}, v{rev0}")
    for x in range(n):
        a.e(f"v_cos_f32 v{dst+x}, v{dst+x}")
    a.e("s_nop 0")


def fwd_table_frag(a, jt_sgpr_or_int, kk, out, t):
    j, g, fo, rev = t + 1, t + 2, t + 3, t + 4
    vals = t + 5
    a.e(f"v_and_b32 v{j}, 15, v{t}")
    a.e(f"v_lshrrev_b32 v{g}, 4, v{t}")
    a.e(f"v_or_b32 v{fo}, 1, v{j}")
    if isinstance(jt_sgpr_or_int, int):
        a.e(f"v_add_u32 v{fo}, {16*jt_sgpr_or_int}, v{fo}")
    else:
        a.e(f"v_add_u32 v{fo}, {jt_sgpr_or_int}, v{fo}")
    a.e(f"v_cvt_f32_u32 v{fo}, v{fo}")
    a.e(f"v_mul_f32 v{fo}, 0x3c000000, v{fo}")
    a.e(f"v_lshlrev_b32 v{g}, 3, v{g}")
    a.e(f"v_add_u32 v{g}, {32*kk}, v{g}")
    a.e(f"v_cvt_f32_u32 v{g}, v{g}")
    a.e(f"v_and_b32 v{j}, 1, v{j}")
    a.e(f"v_cvt_f32_u32 v{j}, v{j}")
    a.e(f"v_mul_f32 v{j}, 0x3e800000, v{j}")
    a.e(f"v_fma_f32 v{rev}, v{fo}, v{g}, v{j}")
    cos_vals(a, vals, rev, fo, 8, None)
    for x in range(4):
        a.e(f"v_cvt_pk_bf16_f32 v{out+x}, v{vals+2*x}, v{vals+2*x+1}")


def ghat_part(a, name, conv, sW, wg_sgpr, lds_base=0, st_=None, wgsel=0):
    WS_G = WS_GH1 if conv == 1 else WS_GH2
    sWt, sG = 8, 12
    a.e(f"s_load_dwordx2 s[4:5], s[0:1], {8 if conv == 1 else 16}")
    a.e("s_load_dwordx2 s[6:7], s[0:1], 72")
    a.e(f"s_lshr_b32 s24, {wg_sgpr}, 4")
    a.e(f"s_bfe_u32 s25, {wg_sgpr}, 0x20002")
    a.e(f"s_and_b32 s26, {wg_sgpr}, 3")
    a.e("s_lshr_b32 s27, s24, 3")
    a.e("s_and_b32 s28, s24, 7")
    lane = 1
    a.e(f"v_and_b32 v{lane}, 63, v0")
    a.e(f"v_lshrrev_b32 v2, 3, v{lane}")
    if conv == 1:
        a.e("v_lshrrev_b32 v3, 2, v2")
        a.e("v_lshlrev_b32 v3, 4, v3")
        a.e("v_and_b32 v4, 3, v2")
        a.e("v_add_u32 v3, v3, v4")
        a.e("s_lshl_b32 s29, s25, 2")
    else:
        a.e("v_mov_b32 v3, v2")
        a.e("s_lshl_b32 s29, s25, 3")
    a.e("s_lshl_b32 s30, s28, 5")
    a.e("s_add_u32 s29, s29, s30")
    a.e("v_add_u32 v3, s29, v3")
    a.e("v_lshlrev_b32 v3, 9, v3")
    a.e(f"v_and_b32 v4, 7, v{lane}")
    a.e(f"s_lshr_b32 s30, s{sW}, 1")
    a.e("s_lshl_b32 s30, s30, 2")
    a.e("v_xor_b32 v4, s30, v4")
    a.e("v_lshl_add_u32 v3, v4, 4, v3")
    a.e("s_lshl_b32 s30, s26, 7")
    a.e("v_add_u32 v3, s30, v3")
    a.e("v_xor_b32 v4, 32, v3")
    a.e("s_waitcnt lgkmcnt(0)")
    a.srd(sWt, "s4", "s5", 31 * 131072)
    a.add64(sG, 6, WS_G)
    a.e(f"s_mov_b32 s{sG+2}, {32*GBIN}")
    a.e(f"s_mov_b32 s{sG+3}, 0x00020000")
    a.e(f"s_lshl_b32 s30, s{sW}, 3")
    a.e("s_add_u32 s30, s30, s27")
    a.e("s_lshl_b32 s30, s30, 17")
    a.e(f"s_mul_i32 s31, s{sW}, {4*1152}")
    for jj in range(4):
        a.e(f"s_add_u32 m0, s31, {lds_base + jj*1152}")
        a.e(f"s_add_u32 s32, s30, {jj*2*131072}")
        a.e(f"buffer_load_dwordx4 v{3 if jj < 2 else 4}, s[{sWt}:{sWt+3}], s32 offen lds")
    t = 8
    a.e(f"v_and_b32 v{t}, 15, v{lane}")
    a.e(f"v_or_b32 v{t+1}, 1, v{t}")
    a.e(f"s_lshl_b32 s33, s{sW}, 4")
    a.e(f"v_add_u32 v{t+1}, s33, v{t+1}")
    a.e(f"v_cvt_f32_u32 v{t+1}, v{t+1}")
    a.e(f"v_mul_f32 v{t+1}, 0x3c000000, v{t+1}")
    a.e(f"v_bfe_u32 v{t+2}, v{lane}, 4, 1")
    a.e(f"v_lshlrev_b32 v{t+2}, 3, v{t+2}")
    a.e(f"v_cvt_f32_u32 v{t+2}, v{t+2}")
    a.e(f"v_and_b32 v{t}, 1, v{t}")
    a.e(f"v_cvt_f32_u32 v{t}, v{t}")
    a.e(f"v_mul_f32 v{t}, 0x3f400000, v{t}")
    a.e(f"v_fma_f32 v{t+3}, v{t+1}, v{t+2}, v{t}")
    vals = t + 4
    cos_vals(a, vals, t + 3, t + 1, 8, None)
    for x in range(8):
        a.e(f"v_mul_f32 v{vals+x}, 0x3d000000, v{vals+x}")
    hi, lo = 20, 24
    for x in range(4):
        a.e(f"v_cvt_pk_bf16_f32 v{hi+x}, v{vals+2*x}, v{vals+2*x+1}")
    for x in range(4):
        a.e(f"v_lshlrev_b32 v28, 16, v{hi+x}")
        a.e(f"v_and_b32 v29, 0xffff0000, v{hi+x}")
        a.e(f"v_sub_f32 v28, v{vals+2*x}, v28")
        a.e(f"v_sub_f32 v29, v{vals+2*x+1}, v29")
        a.e(f"v_cvt_pk_bf16_f32 v{lo+x}, v28, v29")
    a.e(f"v_cmp_gt_u32 vcc, 32, v{lane}")
    a.e("s_nop 1")
    for x in range(4):
        a.e(f"v_cndmask_b32 v{hi+x}, v{lo+x}, v{hi+x}, vcc")
    TB = lds_base + 16 * 1152
    a.e(f"v_lshlrev_b32 v28, 4, v{lane}")
    a.e(f"s_lshl_b32 s33, s{sW}, 10")
    a.e(f"v_add_u32 v29, s33, v28")
    a.e(f"ds_write_b128 v29, v[{hi}:{hi+3}] offset:{TB}")
    a.e(f"v_bfe_u32 v30, v{lane}, 2, 2")
    a.e(f"v_bfe_u32 v31, v{lane}, 4, 1")
    a.e("v_lshl_add_u32 v32, v31, 3, v30")
    a.e("v_mul_u32_u24 v32, 1152, v32")
    a.e("v_lshrrev_b32 v30, 1, v30")
    a.e("v_lshl_add_u32 v30, v31, 1, v30")
    a.e("v_lshlrev_b32 v30, 1, v30")
    a.e(f"v_bfe_u32 v31, v{lane}, 1, 1")
    a.e(f"s_lshl_b32 s33, s{sW}, 1")
    a.e("v_add_u32 v31, s33, v31")
    a.e("v_xor_b32 v30, v30, v31")
    a.e("v_lshl_add_u32 v32, v30, 4, v32")
    a.e(f"v_and_b32 v30, 1, v{lane}")
    a.e("v_lshl_add_u32 v32, v30, 3, v32")
    a.e(f"v_lshrrev_b32 v30, 4, v{lane}")
    a.e(f"s_mov_b32 s33, {2*GBIN}")
    a.e("v_mul_lo_u32 v30, v30, s33")
    a.e(f"v_and_b32 v31, 15, v{lane}")
    a.e("v_lshl_add_u32 v33, v31, 4, v30")
    a.e("s_lshl_b32 s34, s24, 15")
    a.e("s_lshl_b32 s35, s26, 2")
    a.e(f"s_add_u32 s35, s35, s{sW}")
    a.e("s_lshl_b32 s35, s35, 11")
    a.e("s_add_u32 s34, s34, s35")
    a.e("s_lshl_b32 s35, s25, 8")
    a.e("s_add_u32 s34, s34, s35")
    if st_: st_.stamp()
    a.e("s_waitcnt vmcnt(0) lgkmcnt(0)")
    if st_: st_.stamp()
    a.e("s_barrier")
    if st_: st_.stamp()
    AF, BF, DD, PK = 36, 52, 84, 116
    for it in range(4):
        a.e(f"ds_read_b128 v[{AF+4*it}:{AF+4*it+3}], v28 offset:{TB + it*1024}")
    for c in range(8):
        for xx in range(2):
            a.e(f"ds_read_b64_tr_b16 v[{BF+4*c+2*xx}:{BF+4*c+2*xx+1}], v32 offset:{lds_base + c*128 + xx*4*1152}")
        if c == 4:
            a.e("s_waitcnt lgkmcnt(8)")
    a.e("s_waitcnt lgkmcnt(0)")
    for it in range(4):
        for c in range(8):
            d = DD + 4 * c
            a.e(f"v_mfma_f32_16x16x32_bf16 v[{d}:{d+3}], v[{AF+4*it}:{AF+4*it+3}], v[{BF+4*c}:{BF+4*c+3}], 0")
        a.e("s_nop 7")
        for e in range(4):
            pk = PK + 4 * (e & 1)
            for x in range(4):
                a.e(f"v_cvt_pk_bf16_f32 v{pk+x}, v{DD+8*x+e}, v{DD+8*x+4+e}")
            a.e(f"s_add_u32 s35, s34, {(8*it + (e >> 1))*GBIN + (e & 1)*1024}")
            a.e(f"buffer_store_dwordx4 v[{pk}:{pk+3}], v33, s[{sG}:{sG+3}], s35 offen")
            a.e("s_nop 1")
        if st_ and it == 0: st_.stamp()
    if st_ and st_.on:
        st_.stamp()
        a.e("s_waitcnt vmcnt(0)")
        st_.stamp()
        st_.dump(wgsel, sW, 0, f"L_{name}_nodump_g{conv}")
    a.end()
    return lds_base + 16 * 1152 + 4096


def prep_kernel(name, exp=""):
    a = Asm()
    NX = 2 * M1
    NXW = NX if "noxcdmap" in exp else 8 * 84
    NG = 256
    G2 = "g2inprep" in exp
    NG2 = 256 if G2 else 0
    NS = 13
    O_S, O_G = 0, NS
    O_G2 = O_G + NG
    O_X = O_G2 + NG2
    NWG = O_X + NXW
    if "xfirst" in exp:
        O_X = NS
        O_G = O_X + NX
        O_G2 = O_G + NG
        NWG = O_G2 + NG2
    sW = 20
    a.label(name)
    a.e(f"s_cmp_ge_u32 s2, {NWG}")
    a.e(f"s_cbranch_scc1 L_{name}_done")
    if "trace" in exp and a.trace_region is None: a.trace_begin(0)
    if "dbgtime" in exp: a.trace_begin(0, dbg=True)
    st_ = Stamps(a, "stamp" in exp)
    wgsel = int(exp.split("wg=")[1].split(",")[0]) if "wg=" in exp else 0
    st_.begin()
    nst0 = st_.n
    a.e(f"v_readfirstlane_b32 s{sW}, v0")
    a.e(f"s_lshr_b32 s{sW}, s{sW}, 6")
    a.e(f"s_cmp_lt_u32 s2, {NS}")
    a.e(f"s_cbranch_scc1 L_{name}_slab")
    if "xfirst" in exp:
        a.e(f"s_cmp_ge_u32 s2, {O_G}")
        a.e(f"s_cbranch_scc1 L_{name}_g")
    else:
        a.e(f"s_cmp_lt_u32 s2, {O_X}")
        a.e(f"s_cbranch_scc1 L_{name}_g")

    sX, sO = 8, 12
    a.e("s_load_dwordx2 s[4:5], s[0:1], 0")
    a.e(f"s_load_dwordx2 s[6:7], s[0:1], {X_PTR}")
    a.e(f"s_sub_u32 s24, s2, {O_X}")
    if "noxcdmap" not in exp:
        a.e("s_and_b32 s25, s24, 7")
        a.e("s_mul_i32 s25, s25, 84")
        a.e("s_lshr_b32 s24, s24, 3")
        a.e("s_add_u32 s24, s24, s25")
        a.e(f"s_cmp_ge_u32 s24, {NX}")
        a.e(f"s_cbranch_scc1 L_{name}_done")
        a.e(f"s_mul_hi_u32 s25, s24, {(2**32 + NB1 - 1)//NB1}")
        a.e(f"s_mul_i32 s26, s25, {NB1}")
        a.e("s_sub_u32 s26, s24, s26")
        a.e("s_and_b32 s27, s25, 1")
        a.e("s_lshr_b32 s25, s25, 1")
    else:
        a.e(f"s_cmp_ge_u32 s24, {M1}")
        a.e("s_cselect_b32 s25, 1, 0")
        a.e(f"s_mul_i32 s26, s25, {M1}")
        a.e("s_sub_u32 s24, s24, s26")
        a.e("s_lshr_b32 s26, s24, 1")
        a.e("s_and_b32 s27, s24, 1")
    lane = 1
    a.e(f"v_and_b32 v{lane}, 63, v0")
    a.e(f"v_lshrrev_b32 v2, 3, v{lane}")
    a.e("s_mul_i32 s28, s26, 96")
    a.e("s_add_u32 s28, s28, s27")
    a.e("s_sub_u32 s28, s28, 15")
    a.e("v_lshlrev_b32 v3, 1, v2")
    a.e("v_add_u32 v3, s28, v3")
    a.e("v_lshlrev_b32 v3, 9, v3")
    a.e(f"s_lshl_b32 s29, s{sW}, 7")
    a.e("v_add_u32 v3, s29, v3")
    a.e("v_bfe_u32 v4, v2, 1, 1")
    a.e("v_lshlrev_b32 v4, 1, v4")
    a.e(f"v_and_b32 v5, 7, v{lane}")
    a.e("v_xor_b32 v4, v4, v5")
    a.e("v_lshl_add_u32 v3, v4, 4, v3")
    a.e("v_xor_b32 v4, 64, v3")
    a.e("s_waitcnt lgkmcnt(0)")
    a.e(f"s_mul_i32 s30, s25, {16000*512}")
    a.e(f"s_add_u32 s{sX}, s4, s30")
    a.e(f"s_addc_u32 s{sX+1}, s5, 0")
    a.e(f"s_mov_b32 s{sX+2}, {16000*512}")
    a.e(f"s_mov_b32 s{sX+3}, 0x00020000")
    a.e(f"s_lshl_b32 s31, s{sW}, 13")
    for q in range(8):
        a.e(f"s_add_u32 m0, s31, {q*1024}")
        a.e(f"v_add_u32 v5, {q*8192}, v{4 if q & 1 else 3}")
        a.e(f"buffer_load_dwordx4 v5, s[{sX}:{sX+3}], 0 offen lds")
    st_.stamp()
    a.add64(sO, 6, WS_XH1)
    a.e(f"s_mov_b32 s{sO+2}, {32*XBIN1}")
    a.e(f"s_mov_b32 s{sO+3}, 0x00020000")
    TB = 32768
    a.e(f"v_mov_b32 v8, v{lane}")
    a.e(f"s_lshl_b32 s32, s{sW}, 4")
    a.e(f"v_lshlrev_b32 v6, 4, v{lane}")
    a.e(f"s_lshl_b32 s33, s{sW}, 11")
    a.e("v_add_u32 v7, s33, v6")
    for kk in range(2):
        fwd_table_frag(a, "s32", kk, 24 + 4 * kk, 8)
        a.e(f"ds_write_b128 v7, v[{24+4*kk}:{24+4*kk+3}] offset:{TB + kk*1024}")
    a.e(f"v_bfe_u32 v8, v{lane}, 2, 2")
    a.e(f"v_lshrrev_b32 v9, 4, v{lane}")
    a.e("v_lshl_add_u32 v10, v9, 3, v8")
    a.e("v_lshlrev_b32 v10, 7, v10")
    a.e("v_lshrrev_b32 v8, 1, v8")
    a.e("v_and_b32 v11, 1, v9")
    a.e("v_lshl_add_u32 v8, v11, 1, v8")
    a.e("v_lshlrev_b32 v8, 1, v8")
    a.e(f"v_bfe_u32 v11, v{lane}, 1, 1")
    a.e("v_xor_b32 v8, v8, v11")
    a.e("v_lshl_add_u32 v10, v8, 4, v10")
    a.e(f"v_and_b32 v11, 1, v{lane}")
    a.e("v_lshl_add_u32 v10, v11, 3, v10")
    a.e("v_add_u32 v10, s31, v10")
    vTR = [12, 13, 14, 15]
    for h in range(2):
        for t in range(2):
            a.e(f"v_xor_b32 v{vTR[h*2+t]}, {h*64 + t*32}, v10")
    a.e(f"v_bfe_u32 v8, v{lane}, 1, 3")
    a.e(f"s_mov_b32 s33, {XBIN1}")
    a.e("v_mul_lo_u32 v8, v8, s33")
    a.e(f"v_and_b32 v11, 1, v{lane}")
    a.e("v_lshl_add_u32 v8, v11, 6, v8")
    a.e("v_lshl_add_u32 v16, v9, 4, v8")
    a.e(f"s_mul_i32 s34, s25, {NB1}")
    a.e("s_add_u32 s34, s34, s26")
    a.e("s_lshl_b32 s34, s34, 11")
    a.e("s_lshl_b32 s35, s27, 3")
    a.e(f"s_lshl_b32 s36, s{sW}, 1")
    a.e("s_add_u32 s35, s35, s36")
    a.e("s_lshl_b32 s35, s35, 7")
    a.e("s_add_u32 s34, s34, s35")
    st_.stamp()
    a.e("s_waitcnt lgkmcnt(0)")
    a.e("s_barrier")
    st_.stamp()
    FF, AA, DD, PK = 24, 56, 72, 104
    for jt in range(4):
        for kk in range(2):
            f = FF + (jt * 2 + kk) * 4
            a.e(f"ds_read_b128 v[{f}:{f+3}], v6 offset:{TB + (jt*2+kk)*1024}")
    a.e("s_waitcnt vmcnt(0)")
    st_.stamp()
    for h in range(2):
        for t in range(2):
            for kk in range(2):
                r_ = AA + (t * 2 + kk) * 4
                for xx in range(2):
                    a.e(f"ds_read_b64_tr_b16 v[{r_+2*xx}:{r_+2*xx+1}], v{vTR[h*2+t]} offset:{kk*4096 + xx*512}")
        a.e("s_waitcnt lgkmcnt(0)")
        for kk in range(2):
            for t in range(2):
                for jt in range(4):
                    d = DD + (t * 4 + jt) * 4
                    r_ = AA + (t * 2 + kk) * 4
                    f = FF + (jt * 2 + kk) * 4
                    c = "0" if kk == 0 else f"v[{d}:{d+3}]"
                    a.e(f"v_mfma_f32_16x16x32_bf16 v[{d}:{d+3}], v[{r_}:{r_+3}], v[{f}:{f+3}], {c}")
        a.e("s_nop 7")
        for jt in range(4):
            pk = PK + 4 * (jt & 1)
            d0, d1 = DD + jt * 4, DD + (4 + jt) * 4
            a.e(f"v_cvt_pk_bf16_f32 v{pk}, v{d0}, v{d0+1}")
            a.e(f"v_cvt_pk_bf16_f32 v{pk+1}, v{d0+2}, v{d0+3}")
            a.e(f"v_cvt_pk_bf16_f32 v{pk+2}, v{d1}, v{d1+1}")
            a.e(f"v_cvt_pk_bf16_f32 v{pk+3}, v{d1+2}, v{d1+3}")
            a.e(f"s_add_u32 s35, s34, {jt*8*XBIN1 + h*128}")
            a.e(f"buffer_store_dwordx4 v[{pk}:{pk+3}], v16, s[{sO}:{sO+3}], s35 offen")
            a.e("s_nop 1")
        st_.stamp()
    if st_.on:
        a.e("s_waitcnt vmcnt(0)")
        st_.stamp()
        st_.dump(wgsel, sW, 0, f"L_{name}_nodump_x")
    a.end()

    a.label(f"L_{name}_g")
    if G2:
        a.e(f"s_cmp_ge_u32 s2, {O_G2}")
        a.e(f"s_cbranch_scc1 L_{name}_g2")
    a.e(f"s_sub_u32 s3, s2, {O_G}")
    st_.n = nst0
    ghat_part(a, name, 1, sW, "s3", st_=st_, wgsel=wgsel)
    if G2:
        a.label(f"L_{name}_g2")
        a.e(f"s_sub_u32 s3, s2, {O_G2}")
        ghat_part(a, name, 2, sW, "s3")

    a.label(f"L_{name}_slab")
    sM, sT = 8, 12
    a.e("s_load_dwordx2 s[6:7], s[0:1], 72")
    a.e("s_cmp_eq_u32 s2, 12")
    a.e(f"s_cbranch_scc1 L_{name}_tab")
    a.e("s_lshr_b32 s24, s2, 2")
    a.e("s_and_b32 s26, s2, 3")
    a.e("s_mov_b32 s25, 40")
    a.e("s_cmp_eq_u32 s24, 1")
    a.e("s_cselect_b32 s25, 32, s25")
    a.e("s_cmp_eq_u32 s24, 2")
    a.e("s_cselect_b32 s25, 48, s25")
    a.e("s_load_dwordx2 s[4:5], s[0:1], s25")
    a.e("s_load_dwordx2 s[28:29], s[0:1], 24")
    lane = 1
    a.e(f"v_and_b32 v{lane}, 63, v0")
    a.e(f"v_lshrrev_b32 v2, 3, v{lane}")
    a.e(f"s_lshl_b32 s27, s{sW}, 6")
    a.e("v_add_u32 v2, s27, v2")
    a.e("v_lshlrev_b32 v2, 9, v2")
    a.e(f"v_and_b32 v3, 7, v{lane}")
    a.e("v_lshl_add_u32 v2, v3, 4, v2")
    a.e("s_lshl_b32 s27, s26, 7")
    a.e("v_add_u32 v2, s27, v2")
    a.e("s_waitcnt lgkmcnt(0)")
    a.srd(sM, "s4", "s5", 131072)
    a.add64(sT, 6, WS_TAB)
    a.e(f"s_mov_b32 s{sT+2}, {TAB_WO + 131072}")
    a.e(f"s_mov_b32 s{sT+3}, 0x00020000")
    a.e(f"s_lshl_b32 s31, s{sW}, 13")
    for q in range(8):
        a.e(f"s_add_u32 m0, s31, {q*1024}")
        a.e(f"s_mov_b32 s32, {q*4096}")
        a.e(f"buffer_load_dwordx4 v2, s[{sM}:{sM+3}], s32 offen lds")
    a.e("s_cmp_eq_u32 s24, 0")
    a.e(f"s_cbranch_scc1 L_{name}_ge")
    a.e(f"v_bfe_u32 v4, v{lane}, 2, 2")
    a.e(f"v_lshrrev_b32 v5, 5, v{lane}")
    a.e(f"v_bfe_u32 v6, v{lane}, 4, 1")
    a.e(f"v_and_b32 v7, 3, v{lane}")
    a.e("s_cmp_eq_u32 s24, 1")
    a.e(f"s_cbranch_scc0 L_{name}_wo")
    a.e("v_lshl_add_u32 v8, v5, 4, v4")
    a.e("v_lshlrev_b32 v8, 7, v8")
    a.e("v_lshl_add_u32 v8, v6, 5, v8")
    a.e("v_lshl_add_u32 v8, v7, 3, v8")
    a.e(f"s_lshl_b32 s33, s{sW}, 13")
    a.e("v_add_u32 v8, s33, v8")
    a.e(f"s_mov_b32 s34, {TAB_WF}")
    offs = lambda kq, xx, it: (32 * (kq >> 1) + 8 * xx + 4 * (kq & 1)) * 128 + it * 64

    def emit_frags(offs_fn, is_wo=False):
        a.e("s_lshl_b32 s35, s26, 15")
        a.e("s_add_u32 s34, s34, s35")
        a.e(f"s_lshl_b32 s35, s{sW}, 12")
        a.e("s_add_u32 s34, s34, s35")
        a.e(f"v_lshlrev_b32 v9, 4, v{lane}")
        a.e("s_waitcnt vmcnt(0)")
        a.e("s_barrier")
        for it in range(2):
            for kq in range(4):
                r_ = 16 + (it * 4 + kq) * 4
                for xx in range(2):
                    a.e(f"ds_read_b64_tr_b16 v[{r_+2*xx}:{r_+2*xx+1}], v8 offset:{offs_fn(kq, xx, it)}")
            a.e("s_waitcnt lgkmcnt(0)")
            if is_wo:
                if it == 0:
                    for x in range(4):
                        a.e(f"v_mov_b32 v{48+x}, 0x3f803f80")
                    a.e("s_nop 1")
                d = 64 + 16 * it
                for kq in range(4):
                    r_ = 16 + (it * 4 + kq) * 4
                    c = "0" if kq == 0 else f"v[{d}:{d+15}]"
                    a.e(f"v_mfma_f32_32x32x16_bf16 v[{d}:{d+15}], v[{r_}:{r_+3}], v[48:51], {c}")
                for kq in range(4):
                    r_ = 16 + (it * 4 + kq) * 4
                    for x in range(4):
                        a.e(f"v_lshlrev_b32 v52, 16, v{r_+x}")
                        a.e(f"v_and_b32 v53, 0xffff0000, v{r_+x}")
                        a.e("v_mul_f32 v52, -2.0, v52")
                        a.e("v_mul_f32 v53, -2.0, v53")
                        a.e(f"v_cvt_pk_bf16_f32 v{r_+x}, v52, v53")
            for kq in range(4):
                r_ = 16 + (it * 4 + kq) * 4
                a.e(f"s_add_u32 s35, s34, {it*16384 + kq*1024}")
                a.e(f"buffer_store_dwordx4 v[{r_}:{r_+3}], v9, s[{sT}:{sT+3}], s35 offen")
        if is_wo:
            a.e("s_nop 7")
            a.e("s_barrier")
            a.e(f"v_lshlrev_b32 v10, 6, v{lane}")
            a.e(f"s_lshl_b32 s35, s{sW}, 13")
            a.e("v_add_u32 v11, s35, v10")
            for it in range(2):
                for x in range(4):
                    a.e(f"ds_write_b128 v11, v[{64+16*it+4*x}:{64+16*it+4*x+3}] offset:{it*4096 + x*16}")
            a.e("s_waitcnt lgkmcnt(0)")
            a.e("s_barrier")
            a.e(f"s_cmp_ge_u32 s{sW}, 2")
            a.e(f"s_cbranch_scc1 L_{name}_done")
            a.e(f"s_lshl_b32 s35, s{sW}, 12")
            a.e("v_add_u32 v11, s35, v10")
            for ww in range(4):
                for x in range(4):
                    a.e(f"ds_read_b128 v[{16+16*ww+4*x}:{16+16*ww+4*x+3}], v11 offset:{ww*8192 + x*16}")
                if ww % 2 == 1:
                    a.e("s_waitcnt lgkmcnt(0)")
            for x in range(16):
                a.e(f"v_add_f32 v{16+x}, v{16+x}, v{32+x}")
                a.e(f"v_add_f32 v{48+x}, v{48+x}, v{64+x}")
            for x in range(16):
                a.e(f"v_add_f32 v{16+x}, v{16+x}, v{48+x}")
            a.e(f"v_and_b32 v10, 31, v{lane}")
            a.e("v_cmp_eq_u32 vcc, 0, v10")
            a.e(f"v_lshrrev_b32 v10, 5, v{lane}")
            a.e("v_lshlrev_b32 v10, 6, v10")
            a.e("s_lshl_b32 s35, s26, 8")
            a.e(f"s_lshl_b32 s36, s{sW}, 7")
            a.e("s_add_u32 s35, s35, s36")
            a.e(f"s_add_u32 s35, s35, {TAB_CS}")
            a.e("s_and_saveexec_b64 s[38:39], vcc")
            for x in range(4):
                a.e(f"buffer_store_dwordx4 v[{16+4*x}:{16+4*x+3}], v10, s[{sT}:{sT+3}], s35 offen offset:{x*16}")
        a.end()

    emit_frags(offs)
    a.label(f"L_{name}_wo")
    a.e("v_lshl_add_u32 v8, v5, 2, v4")
    a.e("v_lshlrev_b32 v8, 7, v8")
    a.e("v_lshl_add_u32 v8, v6, 5, v8")
    a.e("v_and_b32 v10, 1, v7")
    a.e("v_lshl_add_u32 v8, v10, 4, v8")
    a.e("v_lshrrev_b32 v10, 1, v7")
    a.e("v_lshl_add_u32 v8, v10, 3, v8")
    a.e(f"s_lshl_b32 s33, s{sW}, 13")
    a.e("v_add_u32 v8, s33, v8")
    a.e(f"s_mov_b32 s34, {TAB_WO}")
    emit_frags(lambda kq, xx, it: (16 * kq + 8 * xx) * 128 + it * 64, True)

    a.label(f"L_{name}_ge")
    sGg = 36
    a.srd(sGg, "s28", "s29", 8192)
    a.e(f"v_and_b32 v4, 15, v{lane}")
    a.e(f"v_lshrrev_b32 v5, 4, v{lane}")
    a.e("v_lshlrev_b32 v6, 9, v4")
    a.e("v_lshl_add_u32 v6, v5, 4, v6")
    BB = 16
    for ks in range(8):
        a.e(f"buffer_load_dwordx4 v[{BB+4*ks}:{BB+4*ks+3}], v6, s[{sGg}:{sGg+3}], 0 offen offset:{ks*64}")
    a.e(f"v_bfe_u32 v7, v{lane}, 2, 2")
    a.e("v_lshl_add_u32 v7, v5, 3, v7")
    a.e("v_lshlrev_b32 v7, 7, v7")
    a.e(f"v_and_b32 v8, 3, v{lane}")
    a.e("v_lshl_add_u32 v7, v8, 3, v7")
    a.e(f"s_lshl_b32 s33, s{sW}, 5")
    a.e("v_add_u32 v7, s33, v7")
    a.e("s_waitcnt vmcnt(0)")
    a.e("s_barrier")
    AA = 48
    for ks in range(8):
        for xx in range(2):
            a.e(f"ds_read_b64_tr_b16 v[{AA+4*ks+2*xx}:{AA+4*ks+2*xx+1}], v7 offset:{(32*ks + 4*xx)*128}")
        if ks == 3:
            a.e("s_waitcnt lgkmcnt(0)")
    a.e("s_waitcnt lgkmcnt(0)")
    for ks in range(8):
        c = "0" if ks == 0 else "v[80:83]"
        a.e(f"v_mfma_f32_16x16x32_bf16 v[80:83], v[{AA+4*ks}:{AA+4*ks+3}], v[{BB+4*ks}:{BB+4*ks+3}], {c}")
    a.e("s_nop 7")
    a.e("v_cvt_pk_bf16_f32 v84, v80, v81")
    a.e("v_cvt_pk_bf16_f32 v85, v82, v83")
    a.e(f"s_mov_b32 s33, 0x{f2u(LOG2E2):08x}")
    a.e("v_lshlrev_b32 v80, 16, v84")
    a.e("v_and_b32 v81, 0xffff0000, v84")
    a.e("v_lshlrev_b32 v82, 16, v85")
    a.e("v_and_b32 v83, 0xffff0000, v85")
    for x in range(4):
        a.e(f"v_mul_f32 v{80+x}, s33, v{80+x}")
    a.e("v_lshlrev_b32 v6, 10, v4")
    a.e("v_lshl_add_u32 v6, v5, 4, v6")
    a.e("s_lshl_b32 s33, s26, 8")
    a.e(f"s_lshl_b32 s34, s{sW}, 6")
    a.e("s_add_u32 s33, s33, s34")
    a.e(f"s_add_u32 s33, s33, {TAB_BP}")
    a.e(f"buffer_store_dwordx4 v[80:83], v6, s[{sT}:{sT+3}], s33 offen")
    a.end()

    a.label(f"L_{name}_tab")
    a.e(f"v_and_b32 v8, 63, v0")
    a.e("v_lshlrev_b32 v6, 4, v8")
    a.e("s_waitcnt lgkmcnt(0)")
    a.add64(sT, 6, WS_TAB)
    a.e(f"s_mov_b32 s{sT+2}, {TAB_WO + 131072}")
    a.e(f"s_mov_b32 s{sT+3}, 0x00020000")
    a.e(f"s_lshl_b32 s32, s{sW}, 4")
    a.e(f"s_lshl_b32 s33, s{sW}, 11")
    for kk in range(2):
        fwd_table_frag(a, "s32", kk, 24 + 4 * kk, 8)
        a.e(f"s_add_u32 s34, s33, {TAB_F + kk*1024}")
        a.e(f"buffer_store_dwordx4 v[{24+4*kk}:{24+4*kk+3}], v6, s[{sT}:{sT+3}], s34 offen")
    a.e(f"s_cmp_ge_u32 s{sW}, 3")
    a.e(f"s_cbranch_scc1 L_{name}_done")
    a.e("v_and_b32 v9, 15, v8")
    a.e("v_add_u32 v9, s32, v9")
    a.e("v_cvt_f32_u32 v9, v9")
    a.e("v_mul_f32 v9, 0x3c000000, v9")
    a.e("v_lshrrev_b32 v10, 4, v8")
    a.e("v_lshlrev_b32 v10, 3, v10")
    for kk in range(2):
        for x in range(8):
            a.e(f"v_add_u32 v11, {32*kk + 2*(x >> 1) + 1}, v10")
            a.e("v_cvt_f32_u32 v11, v11")
            if x & 1:
                a.e("v_fma_f32 v11, v11, v9, 0.25") if False else None
                a.e("v_mul_f32 v11, v11, v9")
                a.e("v_add_f32 v11, 0x3e800000, v11")
            else:
                a.e("v_mul_f32 v11, v11, v9")
            a.e(f"v_fract_f32 v{12+x}, v11")
        for x in range(8):
            a.e(f"v_cos_f32 v{12+x}, v{12+x}")
        a.e("s_nop 0")
        for x in range(4):
            a.e(f"v_cvt_pk_bf16_f32 v{24+x}, v{12+2*x}, v{12+2*x+1}")
        a.e(f"s_add_u32 s34, s33, {TAB_FI + kk*1024}")
        a.e(f"buffer_store_dwordx4 v[24:27], v6, s[{sT}:{sT+3}], s34 offen")
        a.e("s_nop 1")
    a.label(f"L_{name}_done")
    a.e("s_endpgm")
    return a.text(), 40960, 128, NWG
```

```python
from asmlib import Asm, Stamps
from layout import *
from prep import cos_vals


def gemm_kernel(name, conv, exp=""):
    a = Asm()
    if conv == 1:
        M, XBIN, WS_X, WS_G, WS_Y = M1, XBIN1, WS_XH1, WS_GH1, WS_YH1
        NT, S, NP = (2, 7, 2) if "twopass" in exp else (4, 5, 1)
    else:
        M, XBIN, WS_X, WS_G, WS_Y = M2, XBIN2, WS_XH2, WS_GH2, WS_YH2
        NT, S, NP = 2, 7, 1
    KST = 16
    NSTEP = KST * NP
    ROWS = 84
    G2 = conv == 1 and "g2ingemm" in exp
    ABYTES = 11264 if G2 else 12288
    CTP = 2 * NT
    BP = CTP * 2
    SLOT = ABYTES + BP * 1024
    SPW = 65536 // SLOT
    NWIN = (S + SPW - 1) // SPW
    LDS = S * SLOT
    GX = LDS
    if G2:
        LDS += 16 * 1152 + 4096
    BPW = BP // 4
    NWG = 256
    NCT = CTP * NP

    ASZ = NT * 24
    FR0 = NP * ASZ
    FSZ = NT * 8 + 24
    vAre = FR0 + 2 * FSZ
    vAim = vAre + NWIN
    vB = vAim + NWIN
    vT = vB + NWIN
    EP = (vT + 12 + 1) // 2 * 2
    NV = EP + (24 if NP > 1 else 0)
    assert NV <= 256

    def G(st, t, ri):
        return FR0 + st * FSZ + (t * 2 + ri) * 4

    def U(st, r, ri):
        return FR0 + st * FSZ + NT * 8 + (r * 2 + ri) * 4

    def accr(p, t, r):
        return p * ASZ + (t * 3 + r) * 4

    def acci(p, t, r):
        return p * ASZ + NT * 12 + (t * 3 + r) * 4

    sA, sB, sY = 8, 12, 16
    sW = 20
    sBin = 21
    sM0 = 22
    a.label(name)
    a.e(f"s_cmp_ge_u32 s2, {NWG}")
    a.e(f"s_cbranch_scc1 L_{name}_done")
    if "trace" in exp and a.trace_region is None: a.trace_begin(conv*2-1)
    st_ = Stamps(a, "stamp" in exp)
    st_.begin()
    a.e("s_load_dwordx2 s[4:5], s[0:1], 72")
    a.e(f"s_load_dwordx2 s[6:7], s[0:1], {X_PTR}")
    a.e(f"v_readfirstlane_b32 s{sW}, v0")
    a.e(f"s_lshr_b32 s{sW}, s{sW}, 6")
    a.e("s_and_b32 s24, s2, 7")
    a.e("s_lshr_b32 s25, s2, 3")
    a.e("s_lshr_b32 s26, s25, 3")
    a.e("s_lshl_b32 s24, s24, 2")
    a.e(f"s_add_u32 s{sBin}, s24, s26")
    a.e("s_and_b32 s25, s25, 7")
    if conv == 1:
        a.e("s_lshr_b32 s26, s25, 1")
        a.e("s_and_b32 s27, s25, 1")
    else:
        a.e("s_lshr_b32 s26, s25, 2")
        a.e("s_and_b32 s27, s25, 3")
    a.e(f"s_mul_i32 s{sM0}, s26, {ROWS}")
    a.e(f"s_sub_u32 s28, {M}, s{sM0}")
    a.e(f"s_min_u32 s28, s28, {ROWS}")
    a.e("s_waitcnt lgkmcnt(0)")
    a.e(f"s_mul_i32 s29, s{sBin}, {XBIN}")
    a.e(f"s_lshl_b32 s30, s{sM0}, 11")
    a.e("s_add_u32 s29, s29, s30")
    a.e(f"s_add_u32 s29, s29, {WS_X}")
    a.e(f"s_add_u32 s{sA}, s6, s29")
    a.e(f"s_addc_u32 s{sA+1}, s7, 0")
    a.e(f"s_lshl_b32 s{sA+2}, s28, 11")
    a.e(f"s_mov_b32 s{sA+3}, 0x00020000")
    a.e(f"s_mul_i32 s29, s{sBin}, {GBIN}")
    a.e(f"s_mul_i32 s30, s27, {NCT*2048}")
    a.e("s_add_u32 s29, s29, s30")
    a.e(f"s_add_u32 s29, s29, {WS_G}")
    a.e(f"s_add_u32 s{sB}, s4, s29")
    a.e(f"s_addc_u32 s{sB+1}, s5, 0")
    a.e(f"s_mov_b32 s{sB+2}, {15*32768 + NCT*2048}")
    a.e(f"s_mov_b32 s{sB+3}, 0x00020000")
    a.e(f"s_cmp_ge_u32 s{sW}, 4")
    a.e(f"s_cbranch_scc1 L_{name}_loader")

    a.e(f"s_mul_i32 s29, s{sM0}, {YROW}")
    a.e(f"s_add_u32 s29, s29, {WS_Y}")
    a.e(f"s_add_u32 s{sY}, s4, s29")
    a.e(f"s_addc_u32 s{sY+1}, s5, 0")
    a.e(f"s_mul_i32 s{sY+2}, s28, {YROW}")
    a.e(f"s_mov_b32 s{sY+3}, 0x00020000")
    a.e(f"s_lshr_b32 s29, s{sW}, 1")
    a.e(f"s_and_b32 s30, s{sW}, 1")
    a.e(f"v_and_b32 v{vT}, 15, v0")
    a.e(f"v_bfe_u32 v{vT+1}, v0, 4, 2")
    a.e(f"v_and_b32 v{vT+2}, 63, v0")
    a.e(f"s_mul_i32 s31, s29, {48*128}")
    a.e(f"v_and_b32 v{vT+3}, 7, v{vT}")
    a.e(f"v_xor_b32 v{vT+3}, v{vT+1}, v{vT+3}")
    a.e(f"v_lshlrev_b32 v{vT+3}, 4, v{vT+3}")
    a.e(f"v_lshl_add_u32 v{vT+3}, v{vT}, 7, v{vT+3}")
    a.e(f"v_add_u32 v{vT+3}, s31, v{vT+3}")
    for w in range(NWIN):
        a.e(f"v_add_u32 v{vAre+w}, {w*SPW*SLOT}, v{vT+3}")
        a.e(f"v_xor_b32 v{vAim+w}, 64, v{vAre+w}")
    a.e(f"s_mul_i32 s31, s30, {NT*2048}")
    a.e(f"s_add_u32 s31, s31, {ABYTES}")
    a.e(f"v_lshlrev_b32 v{vT+3}, 4, v{vT+2}")
    a.e(f"v_add_u32 v{vT+3}, s31, v{vT+3}")
    for w in range(NWIN):
        a.e(f"v_add_u32 v{vB+w}, {w*SPW*SLOT}, v{vT+3}")
    vY1, vY2 = vT + 5, vT + 6
    a.e(f"v_and_b32 v{vT+7}, 7, v{vT}")
    a.e(f"v_lshrrev_b32 v{vT+8}, 3, v{vT}")
    a.e(f"v_mul_u32_u24 v{vY1}, {YROW}, v{vT+7}")
    a.e(f"v_lshl_add_u32 v{vY1}, v{vT+1}, 4, v{vY1}")
    a.e(f"s_mul_i32 s31, s29, {48*YROW}")
    a.e(f"v_add_u32 v{vY1}, s31, v{vY1}")
    a.e(f"v_lshl_add_u32 v{vY1}, v{vT+8}, 6, v{vY1}")
    a.e(f"v_xor_b32 v{vT+8}, 64, v{vY1}")
    a.e(f"v_add_u32 v{vY2}, {8*YROW}, v{vT+8}")
    a.e(f"s_mul_i32 s31, s27, {NCT//2}")
    a.e(f"s_mul_i32 s29, s30, {NT//2}")
    a.e("s_add_u32 s31, s31, s29")
    a.e("s_lshl_b32 s31, s31, 12")
    a.e(f"s_lshl_b32 s29, s{sBin}, 7")
    a.e("s_add_u32 s33, s31, s29")
    a.e("s_mov_b32 s34, 0x80008000")

    if G2:
        t6, t7 = FR0, FR0 + 1
        a.e("s_load_dwordx2 s[38:39], s[0:1], 16")
        a.e("s_lshr_b32 s40, s2, 4")
        a.e("s_bfe_u32 s41, s2, 0x20002")
        a.e("s_and_b32 s42, s2, 3")
        a.e("s_lshr_b32 s43, s40, 3")
        a.e("s_and_b32 s44, s40, 7")
        a.e(f"v_lshrrev_b32 v{t6}, 3, v{vT+2}")
        a.e("s_lshl_b32 s45, s41, 3")
        a.e("s_lshl_b32 s46, s44, 5")
        a.e("s_add_u32 s45, s45, s46")
        a.e(f"v_add_u32 v{t6}, s45, v{t6}")
        a.e(f"v_lshlrev_b32 v{t6}, 9, v{t6}")
        a.e(f"v_and_b32 v{t7}, 7, v{vT+2}")
        a.e(f"s_lshr_b32 s46, s{sW}, 1")
        a.e("s_lshl_b32 s46, s46, 2")
        a.e(f"v_xor_b32 v{t7}, s46, v{t7}")
        a.e(f"v_lshl_add_u32 v{t6}, v{t7}, 4, v{t6}")
        a.e("s_lshl_b32 s46, s42, 7")
        a.e(f"v_add_u32 v{t6}, s46, v{t6}")
        a.e(f"v_xor_b32 v{t7}, 32, v{t6}")
        a.e(f"s_lshl_b32 s46, s{sW}, 3")
        a.e("s_add_u32 s46, s46, s43")
        a.e("s_lshl_b32 s46, s46, 17")
        a.e(f"s_mul_i32 s47, s{sW}, {4*1152}")
        a.e("s_waitcnt lgkmcnt(0)")
        a.srd(48, "s38", "s39", 31 * 131072)
        for jj in range(4):
            a.e(f"s_add_u32 m0, s47, {GX + jj*1152}")
            a.e(f"s_add_u32 s37, s46, {jj*2*131072}")
            a.e(f"buffer_load_dwordx4 v{t6 if jj < 2 else t7}, s[48:51], s37 offen nt lds")

    def reads(step):
        st = step & 1
        sl = step % S
        w, siw = sl // SPW, sl % SPW
        ops = []
        seq = []
        seq.append(("G", 0, 0))
        seq += [("U", r, 0) for r in range(3)]
        seq += [("G", t, 0) for t in range(1, NT)]
        seq += [("U", r, 1) for r in range(3)]
        seq += [("G", t, 1) for t in range(NT)]
        for kind, x, ri in seq:
            if kind == "G":
                r_ = G(st, x, ri)
                ops.append(f"ds_read_b128 v[{r_}:{r_+3}], v{vB+w} offset:{siw*SLOT + (x*2+ri)*1024}")
            else:
                r_ = U(st, x, ri)
                va = (vAim if ri else vAre) + w
                ops.append(f"ds_read_b128 v[{r_}:{r_+3}], v{va} offset:{siw*SLOT + x*2048}")
        return ops

    def mfma(d, ga, ub, c):
        cs = "0" if c is None else f"v[{c}:{c+3}]"
        return f"v_mfma_f32_16x16x32_bf16 v[{d}:{d+3}], v[{ga}:{ga+3}], v[{ub}:{ub+3}], {cs}"

    def epilogue(p, tmp, nsets):
        ops = []
        k = 0
        for P in range(NT // 2):
            for r in range(3):
                R = tmp + (k % nsets) * 12
                I, D2 = R + 4, R + 8
                k += 1
                for dst, acc in ((R, accr), (I, acci)):
                    a0, a1 = acc(p, 2 * P, r), acc(p, 2 * P + 1, r)
                    ops.append(f"v_cvt_pk_bf16_f32 v{dst}, v{a0}, v{a0+1}")
                    ops.append(f"v_cvt_pk_bf16_f32 v{dst+1}, v{a0+2}, v{a0+3}")
                    ops.append(f"v_cvt_pk_bf16_f32 v{dst+2}, v{a1}, v{a1+1}")
                    ops.append(f"v_cvt_pk_bf16_f32 v{dst+3}, v{a1+2}, v{a1+3}")
                for x in range(4):
                    ops.append(f"v_mov_b32 v{D2+x}, v{R+x}")
                ops.append(f"s_add_u32 s35, s33, {r*16*YROW + (P + p*CTP//2)*4096}")
                for x in range(4):
                    ops.append(f"v_mov_b32_dpp v{D2+x}, v{I+x} row_ror:8 row_mask:0xf bank_mask:0x3")
                for x in range(4):
                    ops.append(f"v_mov_b32_dpp v{R+x}, v{I+x} row_ror:8 row_mask:0xf bank_mask:0xc")
                ops.append(f"buffer_store_dwordx4 v[{R}:{R+3}], v{vY1}, s[{sY}:{sY+3}], s35 offen")
                ops.append(f"buffer_store_dwordx4 v[{D2}:{D2+3}], v{vY2}, s[{sY}:{sY+3}], s35 offen")
        return ops

    st_.stamp()
    a.e("s_barrier")
    st_.stamp()
    for op in reads(0):
        a.e(op)
    a.e("s_waitcnt lgkmcnt(0)")
    a.e("s_barrier")
    NM = NT * 12
    st_.stamp()
    pending = []
    for s in range(NSTEP):
        if s in ((1, 4, 8, 12) if NP == 1 else (4, 12, 16, 24)): st_.stamp()
        st = s & 1
        p = s // KST
        first = s % KST == 0
        if first and p > 0:
            pending = epilogue(p - 1, EP, 2)
        mf = []
        for t in range(NT):
            for r in range(3):
                mf.append(mfma(accr(p, t, r), G(st, t, 0), U(st, r, 0), None if first else accr(p, t, r)))
        for t in range(NT):
            for r in range(3):
                mf.append(mfma(acci(p, t, r), G(st, t, 0), U(st, r, 1), None if first else acci(p, t, r)))
        for t in range(NT):
            for r in range(3):
                mf.append(mfma(acci(p, t, r), G(st, t, 1), U(st, r, 0), acci(p, t, r)))
        for t in range(NT):
            for r in range(3):
                mf.append(mfma(accr(p, t, r), G(st, t, 1), U(st, r, 1), accr(p, t, r)))
        fill = [[] for _ in range(NM)]
        rd = reads(s + 1) if s + 1 < NSTEP else []
        rstep = 2 if NT == 4 else 1
        for i, op in enumerate(rd):
            fill[i * rstep].append(op)
        xs = [f"v_xor_b32 v{U(st, r, 1)+k}, s34, v{U(st, r, 1)+k}" for r in range(3) for k in range(4)]
        g3 = 2 * NT * 3
        per = 2
        for i, op in enumerate(xs):
            fill[g3 + i // per].append(op)
        assert g3 + (len(xs) - 1) // per <= 3 * NT * 3 - 1
        if pending:
            slots = [i for i in range(NM) if not (g3 <= i < g3 + 6) and (i >= 8 or not first)]
            for i in slots:
                if pending: fill[i].append(pending.pop(0))
        barpos = NM - (8 if NT == 4 else 4)
        for i in range(NM):
            if "nomfma" not in exp:
                a.e(mf[i])
            for op in fill[i]:
                a.e(op)
            if i == barpos and s + 1 < NSTEP:
                if G2 and s == 3:
                    a.e("s_waitcnt vmcnt(0)")
                a.e("s_waitcnt lgkmcnt(0)")
                if s + 1 <= NSTEP - 2:
                    a.e("s_barrier")
    assert not pending
    st_.stamp()
    a.e("s_nop 7")
    a.e("s_nop 7")
    for op in epilogue(NP - 1, FR0, 3):
        a.e(op)
    if st_.on:
        st_.stamp()
        a.e("s_waitcnt vmcnt(0)")
        st_.stamp()
        st_.dump(int(exp.split("wg=")[1].split(",")[0]) if "wg=" in exp else 0, sW, 0, f"L_{name}_nodump")
    a.end()

    a.label(f"L_{name}_loader")
    a.e(f"s_sub_u32 s{sW}, s{sW}, 4")
    vA_, vB_ = 2, 3
    a.e("v_and_b32 v1, 63, v0")
    a.e("v_lshrrev_b32 v4, 3, v1")
    a.e("v_and_b32 v5, 7, v1")
    a.e("v_xor_b32 v5, v5, v4")
    a.e("v_lshlrev_b32 v5, 4, v5")
    a.e(f"v_lshl_add_u32 v{vA_}, v4, 11, v5")
    a.e(f"v_lshlrev_b32 v{vB_}, 4, v1")
    for qi in range(3):
        a.e(f"s_add_u32 s24, s{sW}, {4*qi}")
        if G2 and qi == 2:
            a.e("s_min_u32 s24, s24, 10")
        a.e(f"s_lshl_b32 s{40+qi}, s24, 10")
        a.e(f"s_lshl_b32 s{43+qi}, s24, 14")
    a.e(f"s_mul_i32 s46, s{sW}, {BPW*1024}")
    a.e(f"s_add_u32 s47, s46, {ABYTES}")

    def issue(step):
        sl = step % S
        p, k = step // KST, step % KST
        for qi in range(3):
            a.e(f"s_add_u32 m0, s{40+qi}, {sl*SLOT}")
            a.e(f"s_add_u32 s24, s{43+qi}, {k*128}")
            a.e(f"buffer_load_dwordx4 v{vA_}, s[{sA}:{sA+3}], s24 offen lds")
            a.vm_issue(step)
        a.e(f"s_add_u32 m0, s47, {sl*SLOT}")
        a.e(f"s_add_u32 s24, s46, {k*32768 + p*CTP*2048}")
        for x in range(BPW):
            a.e(f"buffer_load_dwordx4 v{vB_}, s[{sB}:{sB+3}], s24 offen offset:{x*1024} lds")
            a.vm_issue(step)

    sWt, sG = 48, 52
    AF, BF, DD, PK = 36, 52, 84, 116

    def g2_setup():
        lane = 1
        a.e("s_lshr_b32 s58, s2, 4")
        a.e("s_bfe_u32 s59, s2, 0x20002")
        a.e("s_and_b32 s60, s2, 3")
        a.add64(sG, 4, WS_GH2)
        a.e(f"s_mov_b32 s{sG+2}, {32*GBIN}")
        a.e(f"s_mov_b32 s{sG+3}, 0x00020000")
        t = 8
        a.e(f"v_and_b32 v{t}, 15, v{lane}")
        a.e(f"v_or_b32 v{t+1}, 1, v{t}")
        a.e(f"s_lshl_b32 s66, s{sW}, 4")
        a.e(f"v_add_u32 v{t+1}, s66, v{t+1}")
        a.e(f"v_cvt_f32_u32 v{t+1}, v{t+1}")
        a.e(f"v_mul_f32 v{t+1}, 0x3c000000, v{t+1}")
        a.e(f"v_bfe_u32 v{t+2}, v{lane}, 4, 1")
        a.e(f"v_lshlrev_b32 v{t+2}, 3, v{t+2}")
        a.e(f"v_cvt_f32_u32 v{t+2}, v{t+2}")
        a.e(f"v_and_b32 v{t}, 1, v{t}")
        a.e(f"v_cvt_f32_u32 v{t}, v{t}")
        a.e(f"v_mul_f32 v{t}, 0x3f400000, v{t}")
        a.e(f"v_fma_f32 v{t+3}, v{t+1}, v{t+2}, v{t}")
        vals = t + 4
        cos_vals(a, vals, t + 3, t + 1, 8, None)
        for x in range(8):
            a.e(f"v_mul_f32 v{vals+x}, 0x3d000000, v{vals+x}")
        hi, lo = 20, 24
        for x in range(4):
            a.e(f"v_cvt_pk_bf16_f32 v{hi+x}, v{vals+2*x}, v{vals+2*x+1}")
        for x in range(4):
            a.e(f"v_lshlrev_b32 v28, 16, v{hi+x}")
            a.e(f"v_and_b32 v29, 0xffff0000, v{hi+x}")
            a.e(f"v_sub_f32 v28, v{vals+2*x}, v28")
            a.e(f"v_sub_f32 v29, v{vals+2*x+1}, v29")
            a.e(f"v_cvt_pk_bf16_f32 v{lo+x}, v28, v29")
        a.e(f"v_cmp_gt_u32 vcc, 32, v{lane}")
        a.e("s_nop 1")
        for x in range(4):
            a.e(f"v_cndmask_b32 v{hi+x}, v{lo+x}, v{hi+x}, vcc")
        TB = GX + 16 * 1152
        a.e(f"v_lshlrev_b32 v28, 4, v{lane}")
        a.e(f"v_add_u32 v28, {TB}, v28")
        a.e(f"s_lshl_b32 s66, s{sW}, 10")
        a.e(f"v_add_u32 v29, s66, v28")
        a.e(f"ds_write_b128 v29, v[{hi}:{hi+3}]")
        a.e(f"v_bfe_u32 v30, v{lane}, 2, 2")
        a.e(f"v_bfe_u32 v31, v{lane}, 4, 1")
        a.e("v_lshl_add_u32 v32, v31, 3, v30")
        a.e("v_mul_u32_u24 v32, 1152, v32")
        a.e("v_lshrrev_b32 v30, 1, v30")
        a.e("v_lshl_add_u32 v30, v31, 1, v30")
        a.e("v_lshlrev_b32 v30, 1, v30")
        a.e(f"v_bfe_u32 v31, v{lane}, 1, 1")
        a.e(f"s_lshl_b32 s66, s{sW}, 1")
        a.e("v_add_u32 v31, s66, v31")
        a.e("v_xor_b32 v30, v30, v31")
        a.e("v_lshl_add_u32 v32, v30, 4, v32")
        a.e(f"v_and_b32 v30, 1, v{lane}")
        a.e("v_lshl_add_u32 v32, v30, 3, v32")
        a.e(f"v_add_u32 v32, {GX}, v32")
        a.e(f"v_lshrrev_b32 v30, 4, v{lane}")
        a.e(f"s_mov_b32 s66, {2*GBIN}")
        a.e("v_mul_lo_u32 v30, v30, s66")
        a.e(f"v_and_b32 v31, 15, v{lane}")
        a.e("v_lshl_add_u32 v33, v31, 4, v30")
        a.e("s_lshl_b32 s67, s58, 15")
        a.e("s_lshl_b32 s66, s60, 2")
        a.e(f"s_add_u32 s66, s66, s{sW}")
        a.e("s_lshl_b32 s66, s66, 11")
        a.e("s_add_u32 s67, s67, s66")
        a.e("s_lshl_b32 s66, s59, 8")
        a.e("s_add_u32 s67, s67, s66")
        a.e("s_waitcnt lgkmcnt(0)")

    def g2_reads():
        for it in range(4):
            a.e(f"ds_read_b128 v[{AF+4*it}:{AF+4*it+3}], v28 offset:{it*1024}")
        for c in range(8):
            for xx in range(2):
                a.e(f"ds_read_b64_tr_b16 v[{BF+4*c+2*xx}:{BF+4*c+2*xx+1}], v32 offset:{c*128 + xx*4*1152}")
            if c == 4:
                a.e("s_waitcnt lgkmcnt(8)")

    def g2_mfma(it):
        if it == 0:
            a.e("s_waitcnt lgkmcnt(0)")
        for c in range(8):
            d = DD + 4 * c
            a.e(f"v_mfma_f32_16x16x32_bf16 v[{d}:{d+3}], v[{AF+4*it}:{AF+4*it+3}], v[{BF+4*c}:{BF+4*c+3}], 0")

    def g2_store(it):
        for e in range(4):
            pk = PK + 4 * (e & 1)
            for x in range(4):
                a.e(f"v_cvt_pk_bf16_f32 v{pk+x}, v{DD+8*x+e}, v{DD+8*x+4+e}")
            a.e(f"s_add_u32 s66, s67, {(8*it + (e >> 1))*GBIN + (e & 1)*1024}")
            a.e(f"buffer_store_dwordx4 v[{pk}:{pk+3}], v33, s[{sG}:{sG+3}], s66 offen")
            a.vm_issue(("GS", it))
            a.e("s_nop 1")

    g2_sched = {}
    if G2:
        g2_sched = {4: g2_reads}
        for it in range(4):
            g2_sched[5 + 2 * it] = (lambda i=it: g2_mfma(i))
            g2_sched[6 + 2 * it] = (lambda i=it: g2_store(i))

    a.vm = []
    issue(0)
    issue(1)
    if G2: g2_setup()
    a.wait(vm_tags=(0,))
    a.e("s_barrier")
    nxt = 2
    issue(nxt); nxt += 1
    for s in range(NSTEP - 1):
        a.wait(vm_tags=(s + 1,))
        a.e("s_barrier")
        cnt = 0
        while nxt <= min(s + S, NSTEP - 1) and cnt < 2:
            issue(nxt); nxt += 1; cnt += 1
        if s in g2_sched: g2_sched[s]()
    assert nxt == NSTEP
    a.label(f"L_{name}_done")
    a.e("s_endpgm")
    return a.text(), LDS, NV
```

```python
from asmlib import Asm, Stamps, f2u
from layout import *
from mid import gelu_group2, gelu_group_pk, GK0, GK1

LOG2E2 = 2.8853900817779268
ATHR = 40.0
BTHR = 84.0


def joint_kernel(name, exp=""):
    a = Asm()
    NWG = 250 if "nojmap" in exp else 256
    sW = 20
    sR = 21
    STG = 0
    JB = [0, 16384, 32768]
    CSL = 49152
    FB = 65536
    EAP = 1056
    EAT = FB + 16384
    OTP = 528
    OT = [EAT + 32 * EAP, EAT + 32 * EAP + 32 * OTP]
    LDS = OT[1] + 32 * OTP
    sY, sT, sO = 8, 12, 16
    a.label(name)
    a.e(f"s_cmp_ge_u32 s2, {NWG}")
    a.e(f"s_cbranch_scc1 L_{name}_done")
    if "trace" in exp and a.trace_region is None: a.trace_begin(4)
    st_ = Stamps(a, "stamp" in exp)
    HS = "hstamp" in exp
    st_.begin()

    def ms():
        if not HS: st_.stamp()

    def hs():
        if HS: st_.stamp()
    a.e("s_load_dwordx2 s[6:7], s[0:1], 72")
    a.e("s_load_dwordx2 s[4:5], s[0:1], 56")
    a.e(f"v_readfirstlane_b32 s{sW}, v0")
    a.e(f"s_lshr_b32 s{sW}, s{sW}, 6")
    a.e(f"s_and_b32 s{sR}, s{sW}, 3")
    if "nojmap" in exp:
        a.e("s_mov_b32 s23, s2")
    else:
        a.e("s_and_b32 s23, s2, 7")
        a.e("s_lshl_b32 s23, s23, 5")
        a.e("s_lshr_b32 s22, s2, 3")
        a.e("s_add_u32 s23, s23, s22")
        a.e("s_cmp_ge_u32 s23, 250")
        a.e(f"s_cbranch_scc1 L_{name}_done")
    a.e("s_cmp_ge_u32 s23, 125")
    a.e("s_cselect_b32 s24, 1, 0")
    a.e("s_mul_i32 s25, s24, 125")
    a.e("s_sub_u32 s25, s23, s25")
    for jt in range(2):
        a.e(f"s_lshl_b32 s26, s25, 1")
        a.e(f"s_add_u32 s26, s26, {jt}")
        a.e(f"s_mul_i32 s27, s26, 171")
        a.e(f"s_lshr_b32 s{28+jt}, s27, 9")
        a.e(f"s_mul_i32 s27, s{28+jt}, 3")
        a.e(f"s_sub_u32 s{30+jt}, s26, s27")
    lane = 1
    a.e(f"v_and_b32 v{lane}, 63, v0")
    a.e(f"v_lshlrev_b32 v5, 4, v{lane}")
    a.e("s_waitcnt lgkmcnt(0)")
    a.add64(sT, 6, WS_TAB)
    a.e(f"s_mov_b32 s{sT+2}, {TAB_WO + 131072}")
    a.e(f"s_mov_b32 s{sT+3}, 0x00020000")
    a.e("s_mul_i32 s36, s24, 4000")
    a.e("s_lshl_b32 s37, s25, 5")
    a.e("s_add_u32 s36, s36, s37")
    a.e("s_lshl_b32 s36, s36, 12")
    a.e(f"s_add_u32 s{sO}, s4, s36")
    a.e(f"s_addc_u32 s{sO+1}, s5, 0")
    a.e(f"s_mov_b32 s{sO+2}, 131072")
    a.e(f"s_mov_b32 s{sO+3}, 0x00020000")
    a.e(f"s_lshl_b32 s38, s{sR}, 15")

    def w_load(i, tab):
        kp, it = i >> 1, i & 1
        r_ = (it * 16 + kp) * 4
        a.e(f"s_add_u32 s36, s38, {tab + (it*16+kp)*1024}")
        a.e(f"buffer_load_dwordx4 a[{r_}:{r_+3}], v5, s[{sT}:{sT+3}], s36 offen")
        a.vm_issue(("W", i))

    a.e(f"s_cmp_ge_u32 s{sW}, 4")
    a.e(f"s_cbranch_scc1 L_{name}_helper")

    if "nol2pf" not in exp:
        a.e("s_lshr_b32 s36, s2, 3")
        a.e("s_and_b32 s36, s36, 31")
        a.e("s_lshl_b32 s36, s36, 13")
        a.e(f"s_add_u32 s36, s36, {TAB_WF}")
        a.e(f"v_lshlrev_b32 v6, 7, v{lane}")
        a.e(f"s_cmp_lg_u32 s{sW}, 0")
        a.e(f"s_cbranch_scc1 L_{name}_nopf")
        a.e(f"buffer_load_dword v7, v6, s[{sT}:{sT+3}], s36 offen")
        a.label(f"L_{name}_nopf")
    a.e(f"v_lshrrev_b32 v2, 2, v{lane}")
    a.e("v_lshlrev_b32 v2, 6, v2")
    a.e(f"v_lshrrev_b32 v3, 5, v{lane}")
    a.e("v_lshlrev_b32 v3, 1, v3")
    a.e(f"v_and_b32 v4, 3, v{lane}")
    a.e("v_xor_b32 v3, v3, v4")
    a.e("v_lshl_add_u32 v2, v3, 4, v2")
    a.e(f"s_lshl_b32 s34, s{sR}, 14")
    a.e(f"s_lshl_b32 s35, s{sR}, 13")
    a.e(f"s_mul_i32 s33, s24, {NB2*YROW}")
    a.e(f"s_add_u32 s33, s33, {WS_YH2}")
    a.e(f"s_add_u32 s{sY}, s6, s33")
    a.e(f"s_addc_u32 s{sY+1}, s7, 0")
    a.e(f"s_mov_b32 s{sY+2}, {NB2*YROW}")
    a.e(f"s_mov_b32 s{sY+3}, 0x00020000")

    def ydma(jt):
        a.e(f"s_mul_i32 s36, s{28+jt}, {YROW}")
        a.e("s_add_u32 s36, s36, s35")
        for ci in range(2):
            a.e(f"s_add_u32 m0, s34, {STG + (jt*2+ci)*4096}")
            a.e(f"s_add_u32 s37, s36, {ci*4096}")
            for q in range(4):
                a.e(f"buffer_load_dwordx4 v2, s[{sY}:{sY+3}], s37 offen offset:{q*1024} lds")
                if jt == 0:
                    a.vm_issue(("Y", ci))
    a.e("s_mov_b32 s46, 0")
    a.e("s_cmp_eq_u32 s28, s29")
    a.e(f"s_cbranch_scc1 L_{name}_same")
    ydma(1)
    a.e("s_mov_b32 s46, 8192")
    a.label(f"L_{name}_same")
    FI = 8
    for jt in range(2):
        a.e(f"s_lshl_b32 s36, s{30+jt}, 11")
        a.e(f"s_add_u32 s36, s36, {TAB_FI}")
        for kk in range(2):
            r_ = FI + (jt * 2 + kk) * 4
            a.e(f"buffer_load_dwordx4 v[{r_}:{r_+3}], v5, s[{sT}:{sT+3}], s36 offen offset:{kk*1024}")
            a.vm_issue("FI")
    ydma(0)
    nw_early = int(exp.split("woearly=")[1].split(",")[0]) if "woearly=" in exp else 0
    for i in range(nw_early):
        w_load(i, TAB_WO)
    rr, gg, cc = 32, 33, 34
    a.e(f"v_bfe_u32 v{rr}, v{lane}, 2, 2")
    a.e(f"v_lshrrev_b32 v{gg}, 4, v{lane}")
    a.e(f"v_and_b32 v{cc}, 3, v{lane}")
    vI = [[36, 37], [38, 39]]
    a.e(f"v_lshl_add_u32 v35, v{gg}, 3, v{rr}")
    a.e("v_lshlrev_b32 v40, 6, v35")
    a.e(f"v_and_b32 v41, 1, v{gg}")
    a.e("v_lshlrev_b32 v41, 1, v41")
    a.e(f"v_lshrrev_b32 v42, 1, v{cc}")
    a.e("v_xor_b32 v41, v41, v42")
    a.e("v_lshl_add_u32 v40, v41, 4, v40")
    a.e(f"v_and_b32 v42, 1, v{cc}")
    a.e("v_lshl_add_u32 v40, v42, 3, v40")
    a.e(f"v_add_u32 v{vI[0][0]}, s34, v40")
    a.e(f"v_xor_b32 v{vI[0][1]}, 32, v{vI[0][0]}")
    a.e(f"v_add_u32 v{vI[1][0]}, s46, v{vI[0][0]}")
    a.e(f"v_add_u32 v{vI[1][1]}, s46, v{vI[0][1]}")
    vFW = 43
    a.e(f"v_lshrrev_b32 v41, 1, v{gg}")
    a.e("v_lshlrev_b32 v41, 10, v41")
    a.e(f"v_and_b32 v42, 1, v{gg}")
    a.e("v_lshl_add_u32 v41, v42, 9, v41")
    a.e(f"v_and_b32 v42, 15, v{lane}")
    a.e("v_lshl_add_u32 v41, v42, 4, v41")
    a.e(f"s_lshl_b32 s36, s{sR}, 12")
    a.e(f"s_add_u32 s36, s36, {FB}")
    a.e(f"v_add_u32 v{vFW}, s36, v41")
    vK0 = 44
    a.e(f"s_mov_b32 s40, 0x{f2u(GK1):08x}")
    a.e(f"v_mov_b32 v{vK0}, 0x{f2u(GK0):08x}")
    a.e(f"s_mov_b32 s41, 0x{f2u(GK1):08x}")
    a.e(f"v_mov_b32 v{vK0+1}, 0x{f2u(GK0):08x}")
    ms()
    AA, DD, TT, PK = [48, 84], [64, 100], 72, [80, 108]
    units = [(jt, ci) for ci in range(2) for jt in range(2)]

    def a_reads(ui):
        jt, ci = units[ui]
        for t in range(2):
            for kk in range(2):
                r_ = AA[ui & 1] + (t * 2 + kk) * 4
                for xx in range(2):
                    a.e(f"ds_read_b64_tr_b16 v[{r_+2*xx}:{r_+2*xx+1}], v{vI[jt][t]} offset:{ci*4096 + kk*2048 + xx*256}")
                    a.lg_issue(("AR", ui))
    a.lg = []
    a.wait(vm_tags=(("Y", 0),))
    ms()
    a_reads(0)
    nwi = nw_early
    PACE = int(exp.split("pace=")[1].split(",")[0]) if "pace=" in exp else 0

    def paced(lines_start):
        nonlocal nwi
        body = a.L[lines_start:]
        del a.L[lines_start:]
        cnt = 0
        for ln in body:
            a.L.append(ln)
            cnt += 1
            if PACE and cnt % PACE == 0 and nwi < 32:
                w_load(nwi, TAB_WO); nwi += 1

    for ui, (jt, ci) in enumerate(units):
        if ui == 1:
            a.wait(vm_tags=(("Y", 1),))
        a.wait(lg_tags=(("AR", ui),))
        for kk in range(2):
            for t in range(2):
                d = DD[ui & 1] + t * 4
                r_ = AA[ui & 1] + (t * 2 + kk) * 4
                f = FI + (jt * 2 + kk) * 4
                c = "0" if kk == 0 else f"v[{d}:{d+3}]"
                a.e(f"v_mfma_f32_16x16x32_bf16 v[{d}:{d+3}], v[{r_}:{r_+3}], v[{f}:{f+3}], {c}")
        if ui + 1 < 4:
            a_reads(ui + 1)
        else:
            a.e("s_nop 7")
        xs = [DD[ui & 1] + i for i in range(8)]
        mark = len(a.L)
        if "pk" not in exp.split(","): gelu_group2(a, xs, TT, vK0, 40)
        else: gelu_group_pk(a, xs, TT, vK0, 40)
        if ui >= 1: paced(mark)
        pk = PK[ui & 1]
        for i in range(4):
            a.e(f"v_cvt_pk_bf16_f32 v{pk+i}, v{xs[2*i]}, v{xs[2*i+1]}")
        a.e(f"ds_write_b128 v{vFW}, v[{pk}:{pk+3}] offset:{ci*2048 + jt*256}")
        a.lg_issue(("FW", ui))
    ms()
    nw = nwi
    a.e("s_waitcnt lgkmcnt(0)")
    a.e("s_barrier")
    a.lg = []
    if "earlyprio" in exp:
        a.e("s_setprio 3")
    ms()
    while nw < 32:
        w_load(nw, TAB_WO); nw += 1
        if nw in (8, 16, 24) and "finestamp" in exp: ms()
    ms()
    ACC = [8, 40]
    CS = 72
    JR = 104
    NJR, PRE = 4, 3
    OP = 120
    vJR, vOW = 5, 6
    a.e(f"v_and_b32 v46, 31, v{lane}")
    a.e(f"v_mul_u32_u24 v47, {OTP}, v46")
    a.e(f"v_lshrrev_b32 v45, 5, v{lane}")
    a.e(f"v_lshl_add_u32 v47, v45, 4, v47")
    a.e(f"s_lshl_b32 s36, s{sR}, 7")
    a.e(f"s_add_u32 s36, s36, {OT[0]}")
    a.e(f"v_add_u32 v{vOW}, s36, v47")
    a.e(f"v_lshlrev_b32 v7, 6, v45")
    a.e(f"s_lshl_b32 s36, s{sR}, 8")
    a.e(f"s_add_u32 s36, s36, {TAB_CS}")
    for it in range(2):
        for x in range(4):
            a.e(f"buffer_load_dwordx4 v[{CS+16*it+4*x}:{CS+16*it+4*x+3}], v7, s[{sT}:{sT+3}], s36 offen offset:{it*128 + x*16}")
    if "noprio" not in exp:
        a.e("s_setprio 1")
    a.e("s_waitcnt vmcnt(0)")
    a.vm = []
    ms()
    a.e("s_barrier")
    ms()
    a.lg = []

    def emit(op):
        s, tag = op
        if s is not None:
            if "j_nostore" in exp and s.startswith("buffer_store"): return
        if tag and tag[0] == "wait_lg":
            a.wait(lg_tags=tag[1])
            return
        a.e(s)
        if tag:
            if tag[0] == "lg": a.lg_issue(tag[1])
            else: a.vm_issue(tag[1])

    def jread(i, k):
        r_ = JR + ((16 * i + k) % NJR) * 4
        a.e(f"ds_read_b128 v[{r_}:{r_+3}], v{vJR} offset:{JB[i % 3] + k*1024}")
        a.lg_issue(("JR", i, k))

    def out_wr(i):
        ops = []
        acc = ACC[i & 1]
        dlt = OT[i & 1] - OT[0]
        for it in range(2):
            for qp in range(2):
                r_ = OP + qp * 4
                for k in range(4):
                    s0 = acc + it * 16 + qp * 8 + 2 * k
                    ops.append((f"v_cvt_pk_bf16_f32 v{r_+k}, v{s0}, v{s0+1}", None))
                ops.append((f"ds_write_b128 v{vOW}, v[{r_}:{r_+3}] offset:{dlt + it*64 + qp*32}", ("lg", ("OW", i))))
        return ops

    for k in range(PRE): jread(0, k)
    for u in range(8):
        acc = ACC[u & 1]
        per = [[] for _ in range(32)]
        if u > 0:
            ow = out_wr(u - 1)
            for i, op in enumerate(ow):
                per[4 + (i * 20) // len(ow)].append(op)
        for k in range(16):
            a.wait(lg_tags=(("JR", u, k),))
            r_ = JR + ((16 * u + k) % NJR) * 4
            for it in range(2):
                d = acc + it * 16
                w_ = (it * 16 + k) * 4
                c = f"v[{CS+16*it}:{CS+16*it+15}]" if k == 0 else f"v[{d}:{d+15}]"
                a.e(f"v_mfma_f32_32x32x16_bf16 v[{d}:{d+15}], a[{w_}:{w_+3}], v[{r_}:{r_+3}], {c}")
                if it == 0:
                    if k + PRE < 16:
                        jread(u, k + PRE)
                    elif u + 1 < 8:
                        jread(u + 1, k + PRE - 16)
                for op in per[2 * k + it]: emit(op)
            if k == 15:
                a.wait(lg_tags=(("OW", u - 1),))
                a.e("s_barrier")
        if u == 0: ms()
    ms()
    a.e("s_nop 7")
    a.e("s_nop 7")
    for op in out_wr(7): emit(op)
    a.wait(lg_tags=(("OW", 7),))
    a.e("s_barrier")
    if st_.on and not HS:
        ms()
        st_.dump(int(exp.split("wg=")[1].split(",")[0]) if "wg=" in exp else 0, sW, 0, f"L_{name}_nodump")
    a.end()

    a.label(f"L_{name}_helper")
    a.vm = []
    a.lg = []
    nw = 0
    EBV = 96
    a.e(f"v_and_b32 v14, 7, v{lane}")
    a.e("v_lshlrev_b32 v14, 10, v14")
    a.e(f"v_lshrrev_b32 v15, 5, v{lane}")
    a.e("v_lshl_add_u32 v14, v15, 4, v14")
    a.e("s_lshl_b32 s36, s24, 13")
    a.e(f"s_lshl_b32 s37, s{sR}, 8")
    a.e("s_add_u32 s36, s36, s37")
    a.e(f"s_add_u32 s37, s36, {TAB_BP}")
    for it in range(2):
        for q in range(4):
            r_ = EBV + (it * 4 + q) * 4
            a.e(f"buffer_load_dwordx4 v[{r_}:{r_+3}], v14, s[{sT}:{sT+3}], s37 offen offset:{(32*it + 8*q)*4}")
            a.vm_issue("BP")
    NWF0 = int(exp.split("nwf0=")[1].split(",")[0]) if "nwf0=" in exp else 32
    if "finestamp" in exp: hs()
    while nw < NWF0:
        w_load(nw, TAB_WF); nw += 1
        if "finestamp" in exp and nw % 8 == 0: hs()
    a.wait(vm_tags=("BP",))
    a.e(f"v_max3_f32 v8, |v{EBV}|, |v{EBV+1}|, |v{EBV+2}|")
    for i in range(3, 31, 2):
        a.e(f"v_max3_f32 v8, v8, |v{EBV+i}|, |v{EBV+i+1}|")
    a.e(f"v_max_f32 v8, v8, |v{EBV+31}|")
    a.e(f"s_mov_b32 s41, 0x{f2u(BTHR):08x}")
    a.e("v_cmp_lt_f32 s[42:43], s41, v8")
    for i in range(32):
        a.e(f"v_exp_f32 v{EBV+i}, v{EBV+i}")
    hs()
    a.e("s_barrier")
    hs()
    ACF, BFR = 32, 64
    a.e(f"v_add_u32 v7, {FB}, v5")
    for k8 in range(8):
        a.e(f"ds_read_b128 v[{BFR+4*k8}:{BFR+4*k8+3}], v7 offset:{k8*1024}")
        a.lg_issue(("FR", k8))
    for kp in range(16):
        k8 = kp & 7
        for _ in range(2):
            if nw < 32:
                w_load(nw, TAB_WF); nw += 1
        assert nw > 2 * kp + 1
        a.wait(vm_tags=[("W", 2 * kp + 1)], lg_tags=[("FR", kp)])
        for it in range(2):
            d = ACF + it * 16
            w_ = (it * 16 + kp) * 4
            c = "0" if kp == 0 else f"v[{d}:{d+15}]"
            a.e(f"v_mfma_f32_32x32x16_bf16 v[{d}:{d+15}], a[{w_}:{w_+3}], v[{BFR+4*k8}:{BFR+4*k8+3}], {c}")
        if kp >= 1 and kp + 7 < 16:
            kn = kp + 7
            a.e(f"ds_read_b128 v[{BFR+4*(kn & 7)}:{BFR+4*(kn & 7)+3}], v7 offset:{kn*1024}")
            a.lg_issue(("FR", kn))
    hs()
    vJW, vEA, vOR, vOS, vEW = 2, 4, 6, 7, 9
    a.e(f"s_lshl_b32 s36, s{sR}, 12")
    a.e(f"v_add_u32 v{vJW}, s36, v5")
    a.e(f"v_lshrrev_b32 v10, 5, v{lane}")
    a.e(f"v_lshlrev_b32 v11, 4, v10")
    a.e(f"s_lshl_b32 s36, s{sR}, 8")
    a.e(f"s_add_u32 s36, s36, {EAT}")
    a.e(f"v_add_u32 v11, s36, v11")
    a.e(f"v_and_b32 v12, 31, v{lane}")
    a.e(f"v_mul_u32_u24 v13, {EAP}, v12")
    a.e(f"v_add_u32 v{vEW}, v11, v13")
    a.e(f"v_lshrrev_b32 v13, 3, v12")
    a.e(f"v_mul_u32_u24 v13, {EAP}, v13")
    a.e(f"v_add_u32 v{vEA}, v11, v13")
    a.e(f"s_lshl_b32 s36, s{sR}, 3")
    a.e(f"v_add_u32 v10, s36, v10")
    a.e(f"v_mul_u32_u24 v13, {OTP}, v10")
    a.e(f"v_lshl_add_u32 v13, v12, 4, v13")
    a.e(f"v_add_u32 v{vOR}, {OT[0]}, v13")
    a.e(f"v_lshlrev_b32 v13, 9, v10")
    a.e(f"v_lshl_add_u32 v{vOS}, v12, 4, v13")
    AP = 64
    a.e(f"s_mov_b32 s41, 0x{f2u(LOG2E2):08x}")
    for i in range(32):
        a.e(f"v_mul_f32 v{AP+i}, s41, v{ACF+i}")
    a.e(f"v_max3_f32 v8, |v{AP}|, |v{AP+1}|, |v{AP+2}|")
    for i in range(3, 31, 2):
        a.e(f"v_max3_f32 v8, v8, |v{AP+i}|, |v{AP+i+1}|")
    a.e(f"v_max_f32 v8, v8, |v{AP+31}|")
    a.e(f"s_mov_b32 s41, 0x{f2u(ATHR):08x}")
    a.e("v_cmp_lt_f32 vcc, s41, v8")
    a.e("s_nop 3")
    a.e("s_or_b64 s[42:43], s[42:43], vcc")
    a.e("s_cmp_lg_u64 s[42:43], 0")
    a.e("s_cselect_b32 s44, 1, 0")
    if "forceslow" in exp:
        a.e("s_mov_b32 s44, 1")
    a.e("s_cmp_lg_u32 s44, 0")
    a.e(f"s_cbranch_scc1 L_{name}_slow")
    vm2 = list(a.vm)

    def helper(slow):
        a.vm = list(vm2)
        a.lg = []
        EAV = 32
        TT = 64
        JP = 80
        if not slow:
            for i in range(32):
                a.e(f"v_exp_f32 v{ACF+i}, v{AP+i}")
            src = ACF
        else:
            for it in range(2):
                for q in range(4):
                    r_ = EBV + (it * 4 + q) * 4
                    a.e(f"buffer_load_dwordx4 v[{r_}:{r_+3}], v14, s[{sT}:{sT+3}], s37 offen offset:{(32*it + 8*q)*4}")
            a.e("s_waitcnt vmcnt(0)")
            a.vm = []
            src = AP
        for it in range(2):
            for q in range(4):
                r_ = src + (it * 4 + q) * 4
                a.e(f"ds_write_b128 v{vEW}, v[{r_}:{r_+3}] offset:{(32*it + 8*q)*4}")
        a.e("s_waitcnt lgkmcnt(0)")

        def ea_read(i, grp):
            it, qp = grp >> 1, grp & 1
            for s_ in range(2):
                q = 2 * qp + s_
                r_ = EAV + (it * 4 + q) * 4
                a.e(f"ds_read_b128 v[{r_}:{r_+3}], v{vEA} offset:{i*4*EAP + (32*it + 8*q)*4}")
                a.lg_issue(("EA", i, grp))

        def tanh(i, mid=None):
            for grp in range(4):
                t0 = TT + (grp & 1) * 8
                jp = JP + (grp & 1) * 4
                a.wait(lg_tags=(("EA", i, grp),))
                for x in range(8):
                    if slow: a.e(f"v_add_f32 v{t0+x}, v{EAV+grp*8+x}, v{EBV+grp*8+x}")
                    else: a.e(f"v_fma_f32 v{t0+x}, v{EAV+grp*8+x}, v{EBV+grp*8+x}, 1.0")
                if i + 1 < 8: ea_read(i + 1, grp)
                if slow:
                    for x in range(8): a.e(f"v_exp_f32 v{t0+x}, v{t0+x}")
                    for x in range(8): a.e(f"v_add_f32 v{t0+x}, 1.0, v{t0+x}")
                for x in range(8): a.e(f"v_rcp_f32 v{t0+x}, v{t0+x}")
                if mid and grp in mid: mid[grp]()
                else: a.e("s_nop 0")
                for k in range(4):
                    a.e(f"v_cvt_pk_bf16_f32 v{jp+k}, v{t0+2*k}, v{t0+2*k+1}")
                a.e(f"ds_write_b128 v{vJW}, v[{jp}:{jp+3}] offset:{JB[i % 3] + grp*1024}")
                a.lg_issue(("JW", i))

        def out_rd(i, ks=(0, 1, 2, 3)):
            dlt = OT[i & 1] - OT[0]
            for k in ks:
                a.e(f"ds_read_b128 a[{4*k}:{4*k+3}], v{vOR} offset:{dlt + 2*k*OTP}")
                a.lg_issue(("OR", i, k))

        def out_st(i, ks=(0, 1, 2, 3)):
            for k in ks:
                a.wait(lg_tags=(("OR", i, k),))
                if "j_nostore" in exp: continue
                a.e(f"s_mov_b32 s36, {i*16384 + k*1024}")
                a.e(f"buffer_store_dwordx4 a[{4*k}:{4*k+3}], v{vOS}, s[{sO}:{sO+3}], s36 offen")
                a.vm_issue(("O", i))

        if not slow: hs()
        for grp in range(4): ea_read(0, grp)
        tanh(0)
        tanh(1)
        a.wait(lg_tags=(("JW", 1),))
        if not slow: hs()
        a.e("s_barrier")
        if not slow: hs()
        mark = len(a.L)
        for u in range(8):
            if "j_hidle" in exp:
                a.e("s_barrier")
                continue
            if u >= 2:
                out_rd(u - 2)
            if u + 2 < 8:
                mid = {}
                if u >= 2:
                    mid = {0: (lambda uu=u: out_st(uu - 2, (0, 1))), 1: (lambda uu=u: out_st(uu - 2, (2, 3)))}
                tanh(u + 2, mid)
                a.wait(lg_tags=(("JW", u + 2),))
            elif u >= 2:
                out_st(u - 2)
            if not slow and u in (2, 3): hs()
            a.e("s_barrier")
            if not slow and u in (2, 3): hs()
        if "j_hnovalu" in exp:
            a.L[mark:] = [l for l in a.L[mark:] if not l.strip().startswith("v_")]
        if "j_hnolds" in exp:
            a.L[mark:] = [l for l in a.L[mark:] if not l.strip().startswith("ds_")]
        if "j_hnotrans" in exp:
            a.L[mark:] = [l for l in a.L[mark:] if not l.strip().startswith("v_rcp")]
        out_rd(6)
        out_st(6)
        a.e("s_barrier")
        out_rd(7)
        out_st(7)
        if st_.on and HS and not slow:
            st_.stamp()
            a.e("s_waitcnt vmcnt(0)")
            st_.stamp()
            st_.dump(0, sW, 4, f"L_{name}_nodump")
        a.end()

    helper(False)
    a.label(f"L_{name}_slow")
    helper(True)
    a.label(f"L_{name}_done")
    a.e("s_endpgm")
    return a.text(), LDS, 256, NWG
```

```python
import os
import sys
sys.path.insert(0, os.path.dirname(os.path.abspath(__file__)))
from asmlib import kd
from gemm import gemm_kernel

HEADER = """; Kernarg layout for this problem (80 bytes, ptrs only, base s[0:1]):
"""


def build(which, exp=""):
    ks = []
    for nm in which:
        if nm == "gemm1":
            code, lds, nv = gemm_kernel("gemm1_kernel", 1, exp)
            ks.append(("gemm1_kernel", 256, 512, code, lds, nv))
        elif nm == "gemm2":
            code, lds, nv = gemm_kernel("gemm2_kernel", 2, exp)
            ks.append(("gemm2_kernel", 256, 512, code, lds, nv))
        elif nm == "prep":
            from prep import prep_kernel
            code, lds, nv, grid = prep_kernel("prep_kernel", exp)
            ks.append(("prep_kernel", grid, 256, code, lds, nv))
        elif nm == "mid":
            from mid import mid_kernel
            code, lds, nv, grid = mid_kernel("mid_kernel", exp)
            ks.append(("mid_kernel", grid, 256, code, lds, nv))
        elif nm == "joint":
            from joint import joint_kernel
            code, lds, nv, grid = joint_kernel("joint_kernel", exp)
            ks.append(("joint_kernel", grid, 512, code, lds, nv))
        else:
            raise ValueError(nm)
    pol = {"st": "sc1", "sto": "sc1"}
    for tok in exp.split(","):
        for k in ("st", "sto"):
            if tok.startswith(k + "="):
                pol[k] = tok[len(k) + 1:].replace("+", " ")
    for tok in exp.split(","):
        for k in ("px", "pg", "mx", "mg", "g1", "g2"):
            if tok.startswith(k + "="):
                pol[k] = tok[len(k) + 1:].replace("+", " ")
    ks2 = []
    for nm, grid, block, code, lds, nv in ks:
        lines = []
        for ln in code.split("\n"):
            t = ln.strip()
            if t.startswith("buffer_store_dwordx4") and "s[56:59]" not in ln:
                key = "sto" if nm == "joint_kernel" else "st"
                if nm == "prep_kernel" and ", v16, " in t: key = "px"
                if nm == "prep_kernel" and ", v33, " in t: key = "pg"
                if nm == "mid_kernel" and ", v58, " in t: key = "mx"
                if nm == "mid_kernel" and ", v33, " in t: key = "mg"
                if nm == "gemm1_kernel": key = "g1"
                if nm == "gemm2_kernel": key = "g2"
                sfx = pol.get(key, pol["st"])
                ln = ln + ("" if sfx == "plain" else " " + sfx)
            if nm == "prep_kernel" and "nontld" not in exp and t.startswith("buffer_load_dwordx4") and t.endswith(" lds"):
                ln = ln[:-4] + " nt lds"
            if nm == "mid_kernel" and "nontld" not in exp and t.startswith("buffer_load_dwordx4") and t.endswith(" lds") and "s[8:11], s32" in ln:
                ln = ln[:-4] + " nt lds"
            lines.append(ln)
        ks2.append((nm, grid, block, "\n".join(lines), lds, nv))
    ks = ks2
    out = HEADER
    for nm, grid, block, code, lds, nv in ks:
        out += f"; @launch kernel={nm} grid=({grid},1,1) block=({block},1,1) lds={lds}\n"
    out += '.amdgcn_target "amdgcn-amd-amdhsa--gfx950"\n.text\n'
    for nm, grid, block, code, lds, nv in ks:
        out += f".globl {nm}\n.p2align 8\n.type {nm},@function\n" + code
    out += '.section .rodata,"a"\n'
    for nm, grid, block, code, lds, nv in ks:
        out += ".p2align 6\n" + kd(nm, vgpr=(nv + 7) // 8 * 8, accum=128 if nm == "joint_kernel" else min(256, (nv + 7) // 8 * 8))
    return out


if __name__ == "__main__":
    path = sys.argv[1]
    which = sys.argv[2].split(",") if len(sys.argv) > 2 else ["prep", "gemm1", "mid", "gemm2", "joint"]
    open(path, "w").write(build(which, os.environ.get("EXP", "")))
```

```python
from asmlib import Asm, Stamps
from layout import *
from prep import cos_vals


def gemm_kernel(name, conv, exp="", fused=False):
    a = Asm()
    if conv == 1:
        M, XBIN, WS_X, WS_G, WS_Y = M1, XBIN1, WS_XH1, WS_GH1, WS_YH1
        NT, S, NP = (2, 7, 2) if "twopass" in exp else (4, 5, 1)
    else:
        M, XBIN, WS_X, WS_G, WS_Y = M2, XBIN2, WS_XH2, WS_GH2, WS_YH2
        NT, S, NP = 2, 7, 1
    KST = 16
    NSTEP = KST * NP
    ROWS = 84
    G2 = conv == 1 and "g2ingemm" in exp
    ABYTES = 11264 if G2 else 12288
    CTP = 2 * NT
    BP = CTP * 2
    SLOT = ABYTES + BP * 1024
    SPW = 65536 // SLOT
    NWIN = (S + SPW - 1) // SPW
    LDS = S * SLOT
    GX = LDS
    if G2:
        LDS += 16 * 1152 + 4096
    BPW = BP // 4
    NWG = 256
    NCT = CTP * NP

    ASZ = NT * 24
    FR0 = 4 if fused else NP * ASZ
    AK = "a" if fused else "v"
    FSZ = NT * 8 + 24
    vAre = FR0 + 2 * FSZ
    vAim = vAre + NWIN
    vB = vAim + NWIN
    vT = vB + NWIN
    EP = (vT + 12 + 1) // 2 * 2
    NV = EP + (24 if NP > 1 else 0)
    assert NV <= (128 if fused else 256)

    def G(st, t, ri):
        return FR0 + st * FSZ + (t * 2 + ri) * 4

    def U(st, r, ri):
        return FR0 + st * FSZ + NT * 8 + (r * 2 + ri) * 4

    def accr(p, t, r):
        return p * ASZ + (t * 3 + r) * 4

    def acci(p, t, r):
        return p * ASZ + NT * 12 + (t * 3 + r) * 4

    sA, sB, sY = 8, 12, 16
    sW = 20
    sBin = 21
    sM0 = 22
    a.label(name)
    if not fused:
        a.e(f"s_cmp_ge_u32 s2, {NWG}")
        a.e(f"s_cbranch_scc1 L_{name}_done")
    if "trace" in exp and a.trace_region is None: a.trace_begin(conv*2-1)
    st_ = Stamps(a, "stamp" in exp)
    st_.begin()
    a.e("s_load_dwordx2 s[4:5], s[0:1], 72")
    a.e(f"s_load_dwordx2 s[6:7], s[0:1], {X_PTR}")
    a.e(f"v_readfirstlane_b32 s{sW}, v0")
    a.e(f"s_lshr_b32 s{sW}, s{sW}, 6")
    a.e("s_and_b32 s24, s2, 7")
    a.e("s_lshr_b32 s25, s2, 3")
    a.e("s_lshr_b32 s26, s25, 3")
    a.e("s_lshl_b32 s24, s24, 2")
    a.e(f"s_add_u32 s{sBin}, s24, s26")
    a.e("s_and_b32 s25, s25, 7")
    if conv == 1:
        a.e("s_lshr_b32 s26, s25, 1")
        a.e("s_and_b32 s27, s25, 1")
    else:
        a.e("s_lshr_b32 s26, s25, 2")
        a.e("s_and_b32 s27, s25, 3")
    a.e(f"s_mul_i32 s{sM0}, s26, {ROWS}")
    a.e(f"s_sub_u32 s28, {M}, s{sM0}")
    a.e(f"s_min_u32 s28, s28, {ROWS}")
    a.e("s_waitcnt lgkmcnt(0)")
    a.e(f"s_mul_i32 s29, s{sBin}, {XBIN}")
    a.e(f"s_lshl_b32 s30, s{sM0}, 11")
    a.e("s_add_u32 s29, s29, s30")
    a.e(f"s_add_u32 s29, s29, {WS_X}")
    a.e(f"s_add_u32 s{sA}, s6, s29")
    a.e(f"s_addc_u32 s{sA+1}, s7, 0")
    a.e(f"s_lshl_b32 s{sA+2}, s28, 11")
    a.e(f"s_mov_b32 s{sA+3}, 0x00020000")
    a.e(f"s_mul_i32 s29, s{sBin}, {GBIN}")
    a.e(f"s_mul_i32 s30, s27, {NCT*2048}")
    a.e("s_add_u32 s29, s29, s30")
    a.e(f"s_add_u32 s29, s29, {WS_G}")
    a.e(f"s_add_u32 s{sB}, s4, s29")
    a.e(f"s_addc_u32 s{sB+1}, s5, 0")
    a.e(f"s_mov_b32 s{sB+2}, {15*32768 + NCT*2048}")
    a.e(f"s_mov_b32 s{sB+3}, 0x00020000")
    a.e(f"s_cmp_ge_u32 s{sW}, 4")
    a.e(f"s_cbranch_scc1 L_{name}_loader")

    a.e(f"s_mul_i32 s29, s{sM0}, {YROW}")
    a.e(f"s_add_u32 s29, s29, {WS_Y}")
    a.e(f"s_add_u32 s{sY}, s4, s29")
    a.e(f"s_addc_u32 s{sY+1}, s5, 0")
    a.e(f"s_mul_i32 s{sY+2}, s28, {YROW}")
    a.e(f"s_mov_b32 s{sY+3}, 0x00020000")
    a.e(f"s_lshr_b32 s29, s{sW}, 1")
    a.e(f"s_and_b32 s30, s{sW}, 1")
    a.e(f"v_and_b32 v{vT}, 15, v0")
    a.e(f"v_bfe_u32 v{vT+1}, v0, 4, 2")
    a.e(f"v_and_b32 v{vT+2}, 63, v0")
    a.e(f"s_mul_i32 s31, s29, {48*128}")
    a.e(f"v_and_b32 v{vT+3}, 7, v{vT}")
    a.e(f"v_xor_b32 v{vT+3}, v{vT+1}, v{vT+3}")
    a.e(f"v_lshlrev_b32 v{vT+3}, 4, v{vT+3}")
    a.e(f"v_lshl_add_u32 v{vT+3}, v{vT}, 7, v{vT+3}")
    a.e(f"v_add_u32 v{vT+3}, s31, v{vT+3}")
    for w in range(NWIN):
        a.e(f"v_add_u32 v{vAre+w}, {w*SPW*SLOT}, v{vT+3}")
        a.e(f"v_xor_b32 v{vAim+w}, 64, v{vAre+w}")
    a.e(f"s_mul_i32 s31, s30, {NT*2048}")
    a.e(f"s_add_u32 s31, s31, {ABYTES}")
    a.e(f"v_lshlrev_b32 v{vT+3}, 4, v{vT+2}")
    a.e(f"v_add_u32 v{vT+3}, s31, v{vT+3}")
    for w in range(NWIN):
        a.e(f"v_add_u32 v{vB+w}, {w*SPW*SLOT}, v{vT+3}")
    vY1, vY2 = vT + 5, vT + 6
    a.e(f"v_and_b32 v{vT+7}, 7, v{vT}")
    a.e(f"v_lshrrev_b32 v{vT+8}, 3, v{vT}")
    a.e(f"v_mul_u32_u24 v{vY1}, {YROW}, v{vT+7}")
    a.e(f"v_lshl_add_u32 v{vY1}, v{vT+1}, 4, v{vY1}")
    a.e(f"s_mul_i32 s31, s29, {48*YROW}")
    a.e(f"v_add_u32 v{vY1}, s31, v{vY1}")
    a.e(f"v_lshl_add_u32 v{vY1}, v{vT+8}, 6, v{vY1}")
    a.e(f"v_xor_b32 v{vT+8}, 64, v{vY1}")
    a.e(f"v_add_u32 v{vY2}, {8*YROW}, v{vT+8}")
    a.e(f"s_mul_i32 s31, s27, {NCT//2}")
    a.e(f"s_mul_i32 s29, s30, {NT//2}")
    a.e("s_add_u32 s31, s31, s29")
    a.e(f"s_mul_i32 s31, s31, {Y_CG}")
    a.e(f"s_mul_i32 s29, s{sBin}, {Y_BIN}")
    a.e("s_add_u32 s33, s31, s29")
    a.e("s_mov_b32 s34, 0x80008000")

    if G2:
        t6, t7 = FR0, FR0 + 1
        a.e("s_load_dwordx2 s[38:39], s[0:1], 16")
        a.e("s_lshr_b32 s40, s2, 4")
        a.e("s_bfe_u32 s41, s2, 0x20002")
        a.e("s_and_b32 s42, s2, 3")
        a.e("s_lshr_b32 s43, s40, 3")
        a.e("s_and_b32 s44, s40, 7")
        a.e(f"v_lshrrev_b32 v{t6}, 3, v{vT+2}")
        a.e("s_lshl_b32 s45, s41, 3")
        a.e("s_lshl_b32 s46, s44, 5")
        a.e("s_add_u32 s45, s45, s46")
        a.e(f"v_add_u32 v{t6}, s45, v{t6}")
        a.e(f"v_lshlrev_b32 v{t6}, 9, v{t6}")
        a.e(f"v_and_b32 v{t7}, 7, v{vT+2}")
        a.e(f"s_lshr_b32 s46, s{sW}, 1")
        a.e("s_lshl_b32 s46, s46, 2")
        a.e(f"v_xor_b32 v{t7}, s46, v{t7}")
        a.e(f"v_lshl_add_u32 v{t6}, v{t7}, 4, v{t6}")
        a.e("s_lshl_b32 s46, s42, 7")
        a.e(f"v_add_u32 v{t6}, s46, v{t6}")
        a.e(f"v_xor_b32 v{t7}, 32, v{t6}")
        a.e(f"s_lshl_b32 s46, s{sW}, 3")
        a.e("s_add_u32 s46, s46, s43")
        a.e("s_lshl_b32 s46, s46, 17")
        a.e(f"s_mul_i32 s47, s{sW}, {4*1152}")
        a.e("s_waitcnt lgkmcnt(0)")
        a.srd(48, "s38", "s39", 31 * 131072)
        for jj in range(4):
            a.e(f"s_add_u32 m0, s47, {GX + jj*1152}")
            a.e(f"s_add_u32 s37, s46, {jj*2*131072}")
            a.e(f"buffer_load_dwordx4 v{t6 if jj < 2 else t7}, s[48:51], s37 offen nt lds")

    def reads(step):
        st = step & 1
        sl = step % S
        w, siw = sl // SPW, sl % SPW
        ops = []
        seq = []
        seq.append(("G", 0, 0))
        seq += [("U", r, 0) for r in range(3)]
        seq += [("G", t, 0) for t in range(1, NT)]
        seq += [("U", r, 1) for r in range(3)]
        seq += [("G", t, 1) for t in range(NT)]
        for kind, x, ri in seq:
            if kind == "G":
                r_ = G(st, x, ri)
                ops.append(f"ds_read_b128 v[{r_}:{r_+3}], v{vB+w} offset:{siw*SLOT + (x*2+ri)*1024}")
            else:
                r_ = U(st, x, ri)
                va = (vAim if ri else vAre) + w
                ops.append(f"ds_read_b128 v[{r_}:{r_+3}], v{va} offset:{siw*SLOT + x*2048}")
        return ops

    def mfma(d, ga, ub, c):
        cs = "0" if c is None else f"{AK}[{c}:{c+3}]"
        return f"v_mfma_f32_16x16x32_bf16 {AK}[{d}:{d+3}], v[{ga}:{ga+3}], v[{ub}:{ub+3}], {cs}"

    def epilogue(p, tmp, nsets):
        ops = []
        k = 0
        for P in range(NT // 2):
            for r in range(3):
                R = tmp + (k % nsets) * 12
                I, D2 = R + 4, R + 8
                k += 1
                for dst, acc in ((R, accr), (I, acci)):
                    a0, a1 = acc(p, 2 * P, r), acc(p, 2 * P + 1, r)
                    if fused:
                        tr = tmp + nsets * 12
                        for x in range(4):
                            ops.append(f"v_accvgpr_read_b32 v{tr+x}, a{a0+x}")
                            ops.append(f"v_accvgpr_read_b32 v{tr+4+x}, a{a1+x}")
                        a0, a1 = tr, tr + 4
                    ops.append(f"v_cvt_pk_bf16_f32 v{dst}, v{a0}, v{a0+1}")
                    ops.append(f"v_cvt_pk_bf16_f32 v{dst+1}, v{a0+2}, v{a0+3}")
                    ops.append(f"v_cvt_pk_bf16_f32 v{dst+2}, v{a1}, v{a1+1}")
                    ops.append(f"v_cvt_pk_bf16_f32 v{dst+3}, v{a1+2}, v{a1+3}")
                for x in range(4):
                    ops.append(f"v_mov_b32 v{D2+x}, v{R+x}")
                ops.append(f"s_add_u32 s35, s33, {r*16*YROW + (P + p*CTP//2)*Y_CG}")
                for x in range(4):
                    ops.append(f"v_mov_b32_dpp v{D2+x}, v{I+x} row_ror:8 row_mask:0xf bank_mask:0x3")
                for x in range(4):
                    ops.append(f"v_mov_b32_dpp v{R+x}, v{I+x} row_ror:8 row_mask:0xf bank_mask:0xc")
                ops.append(f"buffer_store_dwordx4 v[{R}:{R+3}], v{vY1}, s[{sY}:{sY+3}], s35 offen")
                ops.append(f"buffer_store_dwordx4 v[{D2}:{D2+3}], v{vY2}, s[{sY}:{sY+3}], s35 offen")
        return ops

    st_.stamp()
    a.e("s_barrier")
    st_.stamp()
    for op in reads(0):
        a.e(op)
    a.e("s_waitcnt lgkmcnt(0)")
    a.e("s_barrier")
    NM = NT * 12
    st_.stamp()
    pending = []
    for s in range(NSTEP):
        if s in ((1, 4, 8, 12) if NP == 1 else (4, 12, 16, 24)): st_.stamp()
        st = s & 1
        p = s // KST
        first = s % KST == 0
        if first and p > 0:
            pending = epilogue(p - 1, EP, 2)
        mf = []
        for t in range(NT):
            for r in range(3):
                mf.append(mfma(accr(p, t, r), G(st, t, 0), U(st, r, 0), None if first else accr(p, t, r)))
        for t in range(NT):
            for r in range(3):
                mf.append(mfma(acci(p, t, r), G(st, t, 0), U(st, r, 1), None if first else acci(p, t, r)))
        for t in range(NT):
            for r in range(3):
                mf.append(mfma(acci(p, t, r), G(st, t, 1), U(st, r, 0), acci(p, t, r)))
        for t in range(NT):
            for r in range(3):
                mf.append(mfma(accr(p, t, r), G(st, t, 1), U(st, r, 1), accr(p, t, r)))
        fill = [[] for _ in range(NM)]
        rd = reads(s + 1) if s + 1 < NSTEP else []
        rstep = 2 if NT == 4 else 1
        for i, op in enumerate(rd):
            fill[i * rstep].append(op)
        xs = [f"v_xor_b32 v{U(st, r, 1)+k}, s34, v{U(st, r, 1)+k}" for r in range(3) for k in range(4)]
        g3 = 2 * NT * 3
        per = 2
        for i, op in enumerate(xs):
            fill[g3 + i // per].append(op)
        assert g3 + (len(xs) - 1) // per <= 3 * NT * 3 - 1
        if pending:
            slots = [i for i in range(NM) if not (g3 <= i < g3 + 6) and (i >= 8 or not first)]
            for i in slots:
                if pending: fill[i].append(pending.pop(0))
        barpos = NM - (8 if NT == 4 else 4)
        for i in range(NM):
            if "nomfma" not in exp:
                a.e(mf[i])
            for op in fill[i]:
                a.e(op)
            if i == barpos and s + 1 < NSTEP:
                if G2 and s == 3:
                    a.e("s_waitcnt vmcnt(0)")
                a.e("s_waitcnt lgkmcnt(0)")
                if s + 1 <= NSTEP - 2:
                    a.e("s_barrier")
    assert not pending
    st_.stamp()
    a.e("s_nop 7")
    a.e("s_nop 7")
    LDSEP = YBM and NP == 1 and "dppep" not in exp
    if LDSEP:
        RB = NCT * 64
        OTP = RB + 16
        OTB = ((NSTEP - 1) % S + 1) * SLOT if ((NSTEP - 1) % S + 1) * SLOT + 96 * OTP <= S * SLOT else 0
        assert OTB + 96 * OTP <= S * SLOT and not (OTB <= ((NSTEP - 1) % S) * SLOT < OTB + 96 * OTP)
        vO = vT + 9
        a.e(f"s_lshr_b32 s29, s{sW}, 1")
        a.e(f"s_and_b32 s30, s{sW}, 1")
        a.e(f"s_mul_i32 s29, s29, {48*OTP}")
        a.e(f"s_mul_i32 s30, s30, {(NT//2)*128}")
        a.e("s_add_u32 s29, s29, s30")
        a.e(f"s_add_u32 s29, s29, {OTB}")
        a.e(f"v_mul_u32_u24 v{vO}, {OTP}, v{vT}")
        a.e(f"v_lshl_add_u32 v{vO}, v{vT+1}, 4, v{vO}")
        a.e(f"v_add_u32 v{vO}, s29, v{vO}")
        k = 0
        for ri in (1, 0):
            acc = acci if ri else accr
            for P in range(NT // 2):
                for r in range(3):
                    d = FR0 + (k % 6) * 4
                    k += 1
                    a0, a1 = acc(0, 2 * P, r), acc(0, 2 * P + 1, r)
                    if fused:
                        tr = FR0 + 24
                        for x in range(4):
                            a.e(f"v_accvgpr_read_b32 v{tr+x}, a{a0+x}")
                            a.e(f"v_accvgpr_read_b32 v{tr+4+x}, a{a1+x}")
                        a0, a1 = tr, tr + 4
                    a.e(f"v_cvt_pk_bf16_f32 v{d}, v{a0}, v{a0+1}")
                    a.e(f"v_cvt_pk_bf16_f32 v{d+1}, v{a0+2}, v{a0+3}")
                    a.e(f"v_cvt_pk_bf16_f32 v{d+2}, v{a1}, v{a1+1}")
                    a.e(f"v_cvt_pk_bf16_f32 v{d+3}, v{a1+2}, v{a1+3}")
                    a.e(f"ds_write_b128 v{vO}, v[{d}:{d+3}] offset:{r*16*OTP + P*128 + ri*64}")
        a.e("s_waitcnt lgkmcnt(0)")
        a.e("s_barrier")
        a.e(f"s_mov_b32 s37, s{sW}")
        a.e(f"s_branch L_{name}_drain")
    else:
        for op in epilogue(NP - 1, FR0, 3):
            a.e(op)
    if fused:
        a.e("s_waitcnt vmcnt(0)")
        a.e("s_barrier")
        a.e(f"s_cmp_lg_u32 s{sW}, 0")
        a.e(f"s_cbranch_scc1 L_{name}_noflag")
        a.add64(sA, 4, WS_TAB)
        a.e(f"s_mov_b32 s{sA+2}, {TAB_END}")
        a.e(f"s_mov_b32 s{sA+3}, 0x00020000")
        a.e("s_lshl_b32 s29, s26, 7")
        a.e(f"s_lshl_b32 s30, s{sBin}, 2")
        a.e("s_add_u32 s29, s29, s30")
        a.e("s_add_u32 s29, s29, s27")
        a.e("s_lshl_b32 s29, s29, 2")
        a.e(f"s_add_u32 s29, s29, {TAB_FLG}")
        a.e("v_mov_b32 v0, 1")
        a.e("v_mov_b32 v1, 0")
        a.e("s_mov_b64 exec, 1")
        a.e(f"buffer_store_dword v0, v1, s[{sA}:{sA+3}], s29 offen sc1")
        a.e("s_mov_b64 exec, -1")
        a.label(f"L_{name}_noflag")
    if st_.on:
        st_.stamp()
        a.e("s_waitcnt vmcnt(0)")
        st_.stamp()
        st_.dump(int(exp.split("wg=")[1].split(",")[0]) if "wg=" in exp else 0, sW, 0, f"L_{name}_nodump")
    a.end()

    a.label(f"L_{name}_loader")
    a.e(f"s_sub_u32 s{sW}, s{sW}, 4")
    vA_, vB_ = 2, 3
    a.e("v_and_b32 v1, 63, v0")
    a.e("v_lshrrev_b32 v4, 3, v1")
    a.e("v_and_b32 v5, 7, v1")
    a.e("v_xor_b32 v5, v5, v4")
    a.e("v_lshlrev_b32 v5, 4, v5")
    a.e(f"v_lshl_add_u32 v{vA_}, v4, 11, v5")
    a.e(f"v_lshlrev_b32 v{vB_}, 4, v1")
    for qi in range(3):
        a.e(f"s_add_u32 s24, s{sW}, {4*qi}")
        if G2 and qi == 2:
            a.e("s_min_u32 s24, s24, 10")
        a.e(f"s_lshl_b32 s{40+qi}, s24, 10")
        a.e(f"s_lshl_b32 s{43+qi}, s24, 14")
    a.e(f"s_mul_i32 s46, s{sW}, {BPW*1024}")
    a.e(f"s_add_u32 s47, s46, {ABYTES}")

    def issue(step):
        sl = step % S
        p, k = step // KST, step % KST
        for qi in range(3):
            a.e(f"s_add_u32 m0, s{40+qi}, {sl*SLOT}")
            a.e(f"s_add_u32 s24, s{43+qi}, {k*128}")
            a.e(f"buffer_load_dwordx4 v{vA_}, s[{sA}:{sA+3}], s24 offen lds")
            a.vm_issue(step)
        a.e(f"s_add_u32 m0, s47, {sl*SLOT}")
        a.e(f"s_add_u32 s24, s46, {k*32768 + p*CTP*2048}")
        for x in range(BPW):
            a.e(f"buffer_load_dwordx4 v{vB_}, s[{sB}:{sB+3}], s24 offen offset:{x*1024} lds")
            a.vm_issue(step)

    sWt, sG = 48, 52
    AF, BF, DD, PK = 36, 52, 84, 116

    def g2_setup():
        lane = 1
        a.e("s_lshr_b32 s58, s2, 4")
        a.e("s_bfe_u32 s59, s2, 0x20002")
        a.e("s_and_b32 s60, s2, 3")
        a.add64(sG, 4, WS_GH2)
        a.e(f"s_mov_b32 s{sG+2}, {32*GBIN}")
        a.e(f"s_mov_b32 s{sG+3}, 0x00020000")
        t = 8
        a.e(f"v_and_b32 v{t}, 15, v{lane}")
        a.e(f"v_or_b32 v{t+1}, 1, v{t}")
        a.e(f"s_lshl_b32 s66, s{sW}, 4")
        a.e(f"v_add_u32 v{t+1}, s66, v{t+1}")
        a.e(f"v_cvt_f32_u32 v{t+1}, v{t+1}")
        a.e(f"v_mul_f32 v{t+1}, 0x3c000000, v{t+1}")
        a.e(f"v_bfe_u32 v{t+2}, v{lane}, 4, 1")
        a.e(f"v_lshlrev_b32 v{t+2}, 3, v{t+2}")
        a.e(f"v_cvt_f32_u32 v{t+2}, v{t+2}")
        a.e(f"v_and_b32 v{t}, 1, v{t}")
        a.e(f"v_cvt_f32_u32 v{t}, v{t}")
        a.e(f"v_mul_f32 v{t}, 0x3f400000, v{t}")
        a.e(f"v_fma_f32 v{t+3}, v{t+1}, v{t+2}, v{t}")
        vals = t + 4
        cos_vals(a, vals, t + 3, t + 1, 8, None)
        for x in range(8):
            a.e(f"v_mul_f32 v{vals+x}, 0x3d000000, v{vals+x}")
        hi, lo = 20, 24
        for x in range(4):
            a.e(f"v_cvt_pk_bf16_f32 v{hi+x}, v{vals+2*x}, v{vals+2*x+1}")
        for x in range(4):
            a.e(f"v_lshlrev_b32 v28, 16, v{hi+x}")
            a.e(f"v_and_b32 v29, 0xffff0000, v{hi+x}")
            a.e(f"v_sub_f32 v28, v{vals+2*x}, v28")
            a.e(f"v_sub_f32 v29, v{vals+2*x+1}, v29")
            a.e(f"v_cvt_pk_bf16_f32 v{lo+x}, v28, v29")
        a.e(f"v_cmp_gt_u32 vcc, 32, v{lane}")
        a.e("s_nop 1")
        for x in range(4):
            a.e(f"v_cndmask_b32 v{hi+x}, v{lo+x}, v{hi+x}, vcc")
        TB = GX + 16 * 1152
        a.e(f"v_lshlrev_b32 v28, 4, v{lane}")
        a.e(f"v_add_u32 v28, {TB}, v28")
        a.e(f"s_lshl_b32 s66, s{sW}, 10")
        a.e(f"v_add_u32 v29, s66, v28")
        a.e(f"ds_write_b128 v29, v[{hi}:{hi+3}]")
        a.e(f"v_bfe_u32 v30, v{lane}, 2, 2")
        a.e(f"v_bfe_u32 v31, v{lane}, 4, 1")
        a.e("v_lshl_add_u32 v32, v31, 3, v30")
        a.e("v_mul_u32_u24 v32, 1152, v32")
        a.e("v_lshrrev_b32 v30, 1, v30")
        a.e("v_lshl_add_u32 v30, v31, 1, v30")
        a.e("v_lshlrev_b32 v30, 1, v30")
        a.e(f"v_bfe_u32 v31, v{lane}, 1, 1")
        a.e(f"s_lshl_b32 s66, s{sW}, 1")
        a.e("v_add_u32 v31, s66, v31")
        a.e("v_xor_b32 v30, v30, v31")
        a.e("v_lshl_add_u32 v32, v30, 4, v32")
        a.e(f"v_and_b32 v30, 1, v{lane}")
        a.e("v_lshl_add_u32 v32, v30, 3, v32")
        a.e(f"v_add_u32 v32, {GX}, v32")
        a.e(f"v_lshrrev_b32 v30, 4, v{lane}")
        a.e(f"s_mov_b32 s66, {2*GBIN}")
        a.e("v_mul_lo_u32 v30, v30, s66")
        a.e(f"v_and_b32 v31, 15, v{lane}")
        a.e("v_lshl_add_u32 v33, v31, 4, v30")
        a.e("s_lshl_b32 s67, s58, 15")
        a.e("s_lshl_b32 s66, s60, 2")
        a.e(f"s_add_u32 s66, s66, s{sW}")
        a.e("s_lshl_b32 s66, s66, 11")
        a.e("s_add_u32 s67, s67, s66")
        a.e("s_lshl_b32 s66, s59, 8")
        a.e("s_add_u32 s67, s67, s66")
        a.e("s_waitcnt lgkmcnt(0)")

    def g2_reads():
        for it in range(4):
            a.e(f"ds_read_b128 v[{AF+4*it}:{AF+4*it+3}], v28 offset:{it*1024}")
        for c in range(8):
            for xx in range(2):
                a.e(f"ds_read_b64_tr_b16 v[{BF+4*c+2*xx}:{BF+4*c+2*xx+1}], v32 offset:{c*128 + xx*4*1152}")
            if c == 4:
                a.e("s_waitcnt lgkmcnt(8)")

    def g2_mfma(it):
        if it == 0:
            a.e("s_waitcnt lgkmcnt(0)")
        for c in range(8):
            d = DD + 4 * c
            a.e(f"v_mfma_f32_16x16x32_bf16 v[{d}:{d+3}], v[{AF+4*it}:{AF+4*it+3}], v[{BF+4*c}:{BF+4*c+3}], 0")

    def g2_store(it):
        for e in range(4):
            pk = PK + 4 * (e & 1)
            for x in range(4):
                a.e(f"v_cvt_pk_bf16_f32 v{pk+x}, v{DD+8*x+e}, v{DD+8*x+4+e}")
            a.e(f"s_add_u32 s66, s67, {(8*it + (e >> 1))*GBIN + (e & 1)*1024}")
            a.e(f"buffer_store_dwordx4 v[{pk}:{pk+3}], v33, s[{sG}:{sG+3}], s66 offen")
            a.vm_issue(("GS", it))
            a.e("s_nop 1")

    g2_sched = {}
    if G2:
        g2_sched = {4: g2_reads}
        for it in range(4):
            g2_sched[5 + 2 * it] = (lambda i=it: g2_mfma(i))
            g2_sched[6 + 2 * it] = (lambda i=it: g2_store(i))

    a.vm = []
    issue(0)
    issue(1)
    if G2: g2_setup()
    a.wait(vm_tags=(0,))
    a.e("s_barrier")
    nxt = 2
    issue(nxt); nxt += 1
    for s in range(NSTEP - 1):
        a.wait(vm_tags=(s + 1,))
        a.e("s_barrier")
        cnt = 0
        while nxt <= min(s + S, NSTEP - 1) and cnt < 2:
            issue(nxt); nxt += 1; cnt += 1
        if s in g2_sched: g2_sched[s]()
        if fused and s == 9 and "nol2pf" not in exp:
            a.add64(48, 4, WS_TAB)
            a.e(f"s_mov_b32 s50, {TAB_END}")
            a.e("s_mov_b32 s51, 0x00020000")
            a.e("s_lshr_b32 s52, s2, 3")
            a.e("s_and_b32 s52, s52, 31")
            a.e("s_lshl_b32 s52, s52, 13")
            a.e(f"s_add_u32 s53, s52, {TAB_WF}")
            a.e("s_cmp_lt_u32 s52, 32768")
            a.e("s_cselect_b32 s52, s52, 0x7f000000")
            a.e(f"s_cmp_eq_u32 s{sW}, 0")
            a.e("s_cselect_b32 s52, s53, s52")
            a.e("v_lshlrev_b32 v6, 7, v1")
            a.e(f"s_cmp_ge_u32 s{sW}, 2")
            a.e(f"s_cbranch_scc1 L_{name}_nopf")
            a.e("buffer_load_dword v7, v6, s[48:51], s52 offen")
            a.label(f"L_{name}_nopf")
    assert nxt == NSTEP
    if LDSEP:
        a.e(f"s_mul_i32 s29, s{sM0}, {YROW}")
        a.e(f"s_add_u32 s29, s29, {WS_Y}")
        a.e(f"s_add_u32 s{sY}, s4, s29")
        a.e(f"s_addc_u32 s{sY+1}, s5, 0")
        a.e(f"s_mul_i32 s{sY+2}, s28, {YROW}")
        a.e(f"s_mov_b32 s{sY+3}, 0x00020000")
        a.e(f"s_add_u32 s37, s{sW}, 4")
        a.e("s_barrier")
        a.label(f"L_{name}_drain")
        LPR = RB // 16
        RPI = 64 // LPR
        NI = 96 // RPI // 8
        a.e("v_mbcnt_lo_u32_b32 v1, -1, 0")
        a.e("v_mbcnt_hi_u32_b32 v1, -1, v1")
        a.e(f"v_lshrrev_b32 v2, {LPR.bit_length()-1}, v1")
        a.e(f"v_and_b32 v3, {LPR-1}, v1")
        a.e(f"s_mul_i32 s29, s37, {NI*RPI}")
        a.e("v_add_u32 v2, s29, v2")
        a.e(f"v_mul_u32_u24 v4, {OTP}, v2")
        a.e("v_lshl_add_u32 v4, v3, 4, v4")
        a.e(f"v_add_u32 v4, {OTB}, v4")
        a.e(f"v_mul_u32_u24 v5, {YROW}, v2")
        a.e("v_lshl_add_u32 v5, v3, 4, v5")
        a.e(f"s_mul_i32 s29, s{sBin}, {Y_BIN}")
        a.e(f"s_mul_i32 s30, s27, {RB}")
        a.e("s_add_u32 s29, s29, s30")
        for i in range(NI):
            a.e(f"ds_read_b128 v[{8+4*i}:{8+4*i+3}], v4 offset:{i*RPI*OTP}")
        for i in range(NI):
            a.e(f"s_waitcnt lgkmcnt({NI-1-i})")
            a.e(f"s_add_u32 s30, s29, {i*RPI*YROW}")
            a.e(f"buffer_store_dwordx4 v[{8+4*i}:{8+4*i+3}], v5, s[{sY}:{sY+3}], s30 offen")
        if fused:
            raise NotImplementedError("fused + LDS epilogue: flag hand-off not wired")
        a.end()
    a.label(f"L_{name}_done")
    a.e("s_endpgm")
    return a.text(), LDS, NV
```

```python
from gemm import gemm_kernel
from joint import joint_kernel


def gj_kernel(name, exp=""):
    g_code, g_lds, g_nv = gemm_kernel(name + "_g", 2, exp, fused=True)
    j_code, j_lds, j_nv, j_grid = joint_kernel(name + "_j", exp, fused=True)
    head = f"""{name}:
    s_cmp_ge_u32 s2, 512
    s_cbranch_scc1 L_{name}_exit
    s_cmp_lt_u32 s2, 256
    s_cbranch_scc1 {name}_g
    s_sub_u32 s2, s2, 256
    s_branch {name}_j
L_{name}_exit:
    s_endpgm
"""
    return head + g_code + j_code, max(g_lds, j_lds), 256, 512
```

```python
from asmlib import Asm, Stamps, f2u
from layout import *
from mid import gelu_group2, gelu_group_pk, GK0, GK1

LOG2E2 = 2.8853900817779268
ATHR = 40.0
BTHR = 84.0


def joint_kernel(name, exp="", fused=False):
    a = Asm()
    NWG = 250 if "nojmap" in exp else 256
    sW = 20
    sR = 21
    STG = 0
    JB = [0, 16384, 32768]
    CSL = 49152
    FB = 65536
    EAP = 1056
    EAT = FB + 16384
    OTP = 528
    OT = [EAT + 32 * EAP, EAT + 32 * EAP + 32 * OTP]
    LDS = OT[1] + 32 * OTP
    sY, sT, sO = 8, 12, 16
    a.label(name)
    if not fused:
        a.e(f"s_cmp_ge_u32 s2, {NWG}")
        a.e(f"s_cbranch_scc1 L_{name}_done")
    if "trace" in exp and a.trace_region is None: a.trace_begin(4)
    st_ = Stamps(a, "stamp" in exp)
    HS = "hstamp" in exp
    st_.begin()

    def ms():
        if not HS: st_.stamp()

    def hs():
        if HS: st_.stamp()
    a.e("s_load_dwordx2 s[6:7], s[0:1], 72")
    a.e("s_load_dwordx2 s[4:5], s[0:1], 56")
    a.e(f"v_readfirstlane_b32 s{sW}, v0")
    a.e(f"s_lshr_b32 s{sW}, s{sW}, 6")
    a.e(f"s_and_b32 s{sR}, s{sW}, 3")
    if "nojmap" in exp:
        a.e("s_mov_b32 s23, s2")
    else:
        a.e("s_and_b32 s23, s2, 7")
        a.e("s_lshl_b32 s23, s23, 5")
        a.e("s_lshr_b32 s22, s2, 3")
        a.e("s_add_u32 s23, s23, s22")
        a.e("s_cmp_ge_u32 s23, 250")
        a.e(f"s_cbranch_scc1 L_{name}_done")
    a.e("s_cmp_ge_u32 s23, 125")
    a.e("s_cselect_b32 s24, 1, 0")
    a.e("s_mul_i32 s25, s24, 125")
    a.e("s_sub_u32 s25, s23, s25")
    for jt in range(2):
        a.e(f"s_lshl_b32 s26, s25, 1")
        a.e(f"s_add_u32 s26, s26, {jt}")
        a.e(f"s_mul_i32 s27, s26, 171")
        a.e(f"s_lshr_b32 s{28+jt}, s27, 9")
        a.e(f"s_mul_i32 s27, s{28+jt}, 3")
        a.e(f"s_sub_u32 s{30+jt}, s26, s27")
    lane = 1
    a.e(f"v_and_b32 v{lane}, 63, v0")
    a.e(f"v_lshlrev_b32 v5, 4, v{lane}")
    a.e("s_waitcnt lgkmcnt(0)")
    a.add64(sT, 6, WS_TAB)
    a.e(f"s_mov_b32 s{sT+2}, {TAB_END}")
    a.e(f"s_mov_b32 s{sT+3}, 0x00020000")
    a.e("s_mul_i32 s36, s24, 4000")
    a.e("s_lshl_b32 s37, s25, 5")
    a.e("s_add_u32 s36, s36, s37")
    a.e("s_lshl_b32 s36, s36, 12")
    a.e(f"s_add_u32 s{sO}, s4, s36")
    a.e(f"s_addc_u32 s{sO+1}, s5, 0")
    a.e(f"s_mov_b32 s{sO+2}, 131072")
    a.e(f"s_mov_b32 s{sO+3}, 0x00020000")
    a.e(f"s_lshl_b32 s38, s{sR}, 15")

    def w_load(i, tab):
        kp, it = i >> 1, i & 1
        r_ = (it * 16 + kp) * 4
        a.e(f"s_add_u32 s36, s38, {tab + (it*16+kp)*1024}")
        a.e(f"buffer_load_dwordx4 a[{r_}:{r_+3}], v5, s[{sT}:{sT+3}], s36 offen")
        a.vm_issue(("W", i))

    EBV = 96
    FI = 8
    if fused:
        for jt in range(2):
            a.e(f"s_lshl_b32 s36, s{30+jt}, 11")
            a.e(f"s_add_u32 s36, s36, {TAB_FI}")
            for kk in range(2):
                r_ = FI + (jt * 2 + kk) * 4
                a.e(f"buffer_load_dwordx4 v[{r_}:{r_+3}], v5, s[{sT}:{sT+3}], s36 offen offset:{kk*1024}")
        a.e(f"v_and_b32 v28, 7, v{lane}")
        a.e("v_lshlrev_b32 v28, 10, v28")
        a.e(f"v_lshrrev_b32 v29, 5, v{lane}")
        a.e("v_lshl_add_u32 v28, v29, 4, v28")
        a.e("s_lshl_b32 s36, s24, 13")
        a.e(f"s_lshl_b32 s37, s{sR}, 8")
        a.e("s_add_u32 s36, s36, s37")
        a.e(f"s_add_u32 s45, s36, {TAB_BP}")
        a.e(f"s_cmp_ge_u32 s{sW}, 4")
        a.e(f"s_cbranch_scc1 L_{name}_hpre")
        a.vm = []
        ms()
        for i in range(32):
            w_load(i, TAB_WO)
            if i in (7, 15, 23): ms()
        ms()
        a.e(f"s_cmp_lg_u32 s{sW}, 0")
        a.e(f"s_cbranch_scc1 L_{name}_phA")
        a.e(f"v_lshlrev_b32 v29, 3, v{lane}")
        a.e("s_lshl_b32 s36, s24, 9")
        a.e(f"s_add_u32 s36, s36, {TAB_FLG}")
        a.e("s_mov_b32 s47, 0")
        PD = [(24, 25), (26, 27), (30, 31), (6, 7)]
        for d in range(3):
            a.e(f"buffer_load_dwordx2 v[{PD[d][0]}:{PD[d][1]}], v29, s[{sT}:{sT+3}], s36 offen sc1")
            a.e("s_sleep 3")
        a.label(f"L_{name}_poll")
        for d in range(4):
            n = PD[(d + 3) % 4]
            a.e(f"buffer_load_dwordx2 v[{n[0]}:{n[1]}], v29, s[{sT}:{sT+3}], s36 offen sc1")
            a.e("s_waitcnt vmcnt(3)")
            a.e(f"v_cmp_ne_u32 vcc, 0, v{PD[d][0]}")
            a.e(f"v_cmp_ne_u32 s[42:43], 0, v{PD[d][1]}")
            a.e("s_nop 1")
            a.e("s_and_b64 s[42:43], s[42:43], vcc")
            a.e("s_cmp_eq_u64 s[42:43], -1")
            a.e(f"s_cbranch_scc1 L_{name}_phA")
            a.e("s_sleep 3")
        a.e("s_add_u32 s47, s47, 1")
        a.e("s_cmp_ge_u32 s47, 0x2000")
        a.e(f"s_cbranch_scc1 L_{name}_phA")
        a.e(f"s_branch L_{name}_poll")
        a.label(f"L_{name}_hpre")
        a.vm = []
        for it in range(2):
            for q in range(4):
                r_ = EBV + (it * 4 + q) * 4
                a.e(f"buffer_load_dwordx4 v[{r_}:{r_+3}], v28, s[{sT}:{sT+3}], s45 offen offset:{(32*it + 8*q)*4}")
                a.vm_issue("BP")
        for i in range(32):
            w_load(i, TAB_WF)
        a.wait(vm_tags=("BP",))
        a.e(f"v_max3_f32 v29, |v{EBV}|, |v{EBV+1}|, |v{EBV+2}|")
        for i in range(3, 31, 2):
            a.e(f"v_max3_f32 v29, v29, |v{EBV+i}|, |v{EBV+i+1}|")
        a.e(f"v_max_f32 v29, v29, |v{EBV+31}|")
        a.e(f"s_mov_b32 s41, 0x{f2u(BTHR):08x}")
        a.e("v_cmp_lt_f32 s[48:49], s41, v29")
        for i in range(32):
            a.e(f"v_exp_f32 v{EBV+i}, v{EBV+i}")
        hs()
        a.label(f"L_{name}_phA")
        a.e(f"v_lshrrev_b32 v2, 3, v{lane}")
        a.e(f"v_mul_u32_u24 v2, {Y_BIN}, v2")
        a.e(f"v_bfe_u32 v3, v{lane}, 2, 1")
        a.e("v_lshl_add_u32 v2, v3, 6, v2")
        a.e(f"v_lshrrev_b32 v3, 5, v{lane}")
        a.e("v_lshlrev_b32 v3, 1, v3")
        a.e(f"v_and_b32 v4, 3, v{lane}")
        a.e("v_xor_b32 v3, v3, v4")
        a.e("v_lshl_add_u32 v2, v3, 4, v2")
        a.e(f"s_lshl_b32 s34, s{sW}, 13")
        a.e(f"s_mul_i32 s35, s{sW}, {Y_CG}")
        a.e(f"s_mul_i32 s33, s24, {NB2*YROW}")
        a.e(f"s_add_u32 s33, s33, {WS_YH2}")
        a.e(f"s_add_u32 s{sY}, s6, s33")
        a.e(f"s_addc_u32 s{sY+1}, s7, 0")
        a.e(f"s_mov_b32 s{sY+2}, {NB2*YROW}")
        a.e(f"s_mov_b32 s{sY+3}, 0x00020000")
        rr, gg, cc = 32, 33, 34
        a.e(f"v_bfe_u32 v{rr}, v{lane}, 2, 2")
        a.e(f"v_lshrrev_b32 v{gg}, 4, v{lane}")
        a.e(f"v_and_b32 v{cc}, 3, v{lane}")
        vI = [[36, 37], [38, 39]]
        a.e(f"v_lshl_add_u32 v35, v{gg}, 3, v{rr}")
        a.e("v_lshlrev_b32 v40, 6, v35")
        a.e(f"v_and_b32 v41, 1, v{gg}")
        a.e("v_lshlrev_b32 v41, 1, v41")
        a.e(f"v_lshrrev_b32 v42, 1, v{cc}")
        a.e("v_xor_b32 v41, v41, v42")
        a.e("v_lshl_add_u32 v40, v41, 4, v40")
        a.e(f"v_and_b32 v42, 1, v{cc}")
        a.e("v_lshl_add_u32 v40, v42, 3, v40")
        a.e("s_cmp_eq_u32 s28, s29")
        a.e("s_cselect_b32 s46, 0, 4096")
        a.e(f"v_add_u32 v{vI[0][0]}, s34, v40")
        a.e(f"v_xor_b32 v{vI[0][1]}, 32, v{vI[0][0]}")
        a.e(f"v_add_u32 v{vI[1][0]}, s46, v{vI[0][0]}")
        a.e(f"v_add_u32 v{vI[1][1]}, s46, v{vI[0][1]}")
        vFW = 43
        a.e(f"v_lshrrev_b32 v41, 1, v{gg}")
        a.e("v_lshlrev_b32 v41, 10, v41")
        a.e(f"v_and_b32 v42, 1, v{gg}")
        a.e("v_lshl_add_u32 v41, v42, 9, v41")
        a.e(f"v_and_b32 v42, 15, v{lane}")
        a.e("v_lshl_add_u32 v41, v42, 4, v41")
        a.e(f"s_lshl_b32 s36, s{sW}, 11")
        a.e(f"s_add_u32 s36, s36, {FB}")
        a.e(f"v_add_u32 v{vFW}, s36, v41")
        vK0 = 44
        a.e(f"s_mov_b32 s40, 0x{f2u(GK1):08x}")
        a.e(f"v_mov_b32 v{vK0}, 0x{f2u(GK0):08x}")
        a.e("s_barrier")
        ms()
        for jt in (1, 0):
            if jt == 1:
                a.e("s_cmp_eq_u32 s28, s29")
                a.e(f"s_cbranch_scc1 L_{name}_same")
            a.e(f"s_mul_i32 s36, s{28+jt}, {YROW}")
            a.e("s_add_u32 s36, s36, s35")
            for q in range(4):
                a.e(f"s_add_u32 m0, s34, {STG + jt*4096 + q*1024}")
                a.e(f"s_add_u32 s37, s36, {q*8*Y_BIN}")
                a.e(f"buffer_load_dwordx4 v2, s[{sY}:{sY+3}], s37 offen lds")
            if jt == 1:
                a.label(f"L_{name}_same")
        a.e("s_waitcnt vmcnt(0)")
        ms()
        AA, DD, TT, PK = [48, 80], 64, 72, 24
        for jt in range(2):
            for t in range(2):
                for kk in range(2):
                    r_ = AA[jt] + (t * 2 + kk) * 4
                    for xx in range(2):
                        a.e(f"ds_read_b64_tr_b16 v[{r_+2*xx}:{r_+2*xx+1}], v{vI[jt][t]} offset:{kk*2048 + xx*256}")
            if jt == 0:
                a.e("s_waitcnt lgkmcnt(0)")
        for jt in range(2):
            if jt == 1:
                a.e("s_waitcnt lgkmcnt(0)")
            for kk in range(2):
                for t in range(2):
                    d = DD + t * 4
                    r_ = AA[jt] + (t * 2 + kk) * 4
                    f = FI + (jt * 2 + kk) * 4
                    c = "0" if kk == 0 else f"v[{d}:{d+3}]"
                    a.e(f"v_mfma_f32_16x16x32_bf16 v[{d}:{d+3}], v[{r_}:{r_+3}], v[{f}:{f+3}], {c}")
            a.e("s_nop 7")
            xs = [DD + i for i in range(8)]
            gelu_group2(a, xs, TT, vK0, 40)
            for i in range(4):
                a.e(f"v_cvt_pk_bf16_f32 v{PK+i}, v{xs[2*i]}, v{xs[2*i+1]}")
            a.e(f"ds_write_b128 v{vFW}, v[{PK}:{PK+3}] offset:{jt*256}")
            a.e("s_nop 1")
        ms()
        a.e(f"s_cmp_ge_u32 s{sW}, 4")
        a.e(f"s_cbranch_scc1 L_{name}_helper")
        a.vm = []
        a.lg = []
        nw = 32
    else:
        a.e(f"s_cmp_ge_u32 s{sW}, 4")
        a.e(f"s_cbranch_scc1 L_{name}_helper")

        if "nol2pf" not in exp:
            a.e("s_lshr_b32 s36, s2, 3")
            a.e("s_and_b32 s36, s36, 31")
            a.e("s_lshl_b32 s36, s36, 13")
            a.e(f"s_add_u32 s36, s36, {TAB_WF}")
            a.e(f"v_lshlrev_b32 v6, 7, v{lane}")
            a.e(f"s_cmp_lg_u32 s{sW}, 0")
            a.e(f"s_cbranch_scc1 L_{name}_nopf")
            a.e(f"buffer_load_dword v7, v6, s[{sT}:{sT+3}], s36 offen")
            a.label(f"L_{name}_nopf")
        a.e(f"v_lshrrev_b32 v2, 3, v{lane}")
        a.e(f"v_mul_u32_u24 v2, {Y_BIN}, v2")
        a.e(f"v_bfe_u32 v3, v{lane}, 2, 1")
        a.e("v_lshl_add_u32 v2, v3, 6, v2")
        a.e(f"v_lshrrev_b32 v3, 5, v{lane}")
        a.e("v_lshlrev_b32 v3, 1, v3")
        a.e(f"v_and_b32 v4, 3, v{lane}")
        a.e("v_xor_b32 v3, v3, v4")
        a.e("v_lshl_add_u32 v2, v3, 4, v2")
        a.e(f"s_lshl_b32 s34, s{sR}, 14")
        a.e(f"s_mul_i32 s35, s{sR}, {2*Y_CG}")
        a.e(f"s_mul_i32 s33, s24, {NB2*YROW}")
        a.e(f"s_add_u32 s33, s33, {WS_YH2}")
        a.e(f"s_add_u32 s{sY}, s6, s33")
        a.e(f"s_addc_u32 s{sY+1}, s7, 0")
        a.e(f"s_mov_b32 s{sY+2}, {NB2*YROW}")
        a.e(f"s_mov_b32 s{sY+3}, 0x00020000")

        def ydma(jt):
            a.e(f"s_mul_i32 s36, s{28+jt}, {YROW}")
            a.e("s_add_u32 s36, s36, s35")
            for ci in range(2):
                for q in range(4):
                    a.e(f"s_add_u32 m0, s34, {STG + (jt*2+ci)*4096 + q*1024}")
                    a.e(f"s_add_u32 s37, s36, {ci*Y_CG + q*8*Y_BIN}")
                    a.e(f"buffer_load_dwordx4 v2, s[{sY}:{sY+3}], s37 offen lds")
                    if jt == 0:
                        a.vm_issue(("Y", ci))
        a.e("s_mov_b32 s46, 0")
        a.e("s_cmp_eq_u32 s28, s29")
        a.e(f"s_cbranch_scc1 L_{name}_same")
        ydma(1)
        a.e("s_mov_b32 s46, 8192")
        a.label(f"L_{name}_same")
        FI = 8
        for jt in range(2):
            a.e(f"s_lshl_b32 s36, s{30+jt}, 11")
            a.e(f"s_add_u32 s36, s36, {TAB_FI}")
            for kk in range(2):
                r_ = FI + (jt * 2 + kk) * 4
                a.e(f"buffer_load_dwordx4 v[{r_}:{r_+3}], v5, s[{sT}:{sT+3}], s36 offen offset:{kk*1024}")
                a.vm_issue("FI")
        ydma(0)
        nw_early = int(exp.split("woearly=")[1].split(",")[0]) if "woearly=" in exp else 0
        for i in range(nw_early):
            w_load(i, TAB_WO)
        rr, gg, cc = 32, 33, 34
        a.e(f"v_bfe_u32 v{rr}, v{lane}, 2, 2")
        a.e(f"v_lshrrev_b32 v{gg}, 4, v{lane}")
        a.e(f"v_and_b32 v{cc}, 3, v{lane}")
        vI = [[36, 37], [38, 39]]
        a.e(f"v_lshl_add_u32 v35, v{gg}, 3, v{rr}")
        a.e("v_lshlrev_b32 v40, 6, v35")
        a.e(f"v_and_b32 v41, 1, v{gg}")
        a.e("v_lshlrev_b32 v41, 1, v41")
        a.e(f"v_lshrrev_b32 v42, 1, v{cc}")
        a.e("v_xor_b32 v41, v41, v42")
        a.e("v_lshl_add_u32 v40, v41, 4, v40")
        a.e(f"v_and_b32 v42, 1, v{cc}")
        a.e("v_lshl_add_u32 v40, v42, 3, v40")
        a.e(f"v_add_u32 v{vI[0][0]}, s34, v40")
        a.e(f"v_xor_b32 v{vI[0][1]}, 32, v{vI[0][0]}")
        a.e(f"v_add_u32 v{vI[1][0]}, s46, v{vI[0][0]}")
        a.e(f"v_add_u32 v{vI[1][1]}, s46, v{vI[0][1]}")
        vFW = 43
        a.e(f"v_lshrrev_b32 v41, 1, v{gg}")
        a.e("v_lshlrev_b32 v41, 10, v41")
        a.e(f"v_and_b32 v42, 1, v{gg}")
        a.e("v_lshl_add_u32 v41, v42, 9, v41")
        a.e(f"v_and_b32 v42, 15, v{lane}")
        a.e("v_lshl_add_u32 v41, v42, 4, v41")
        a.e(f"s_lshl_b32 s36, s{sR}, 12")
        a.e(f"s_add_u32 s36, s36, {FB}")
        a.e(f"v_add_u32 v{vFW}, s36, v41")
        vK0 = 44
        a.e(f"s_mov_b32 s40, 0x{f2u(GK1):08x}")
        a.e(f"v_mov_b32 v{vK0}, 0x{f2u(GK0):08x}")
        a.e(f"s_mov_b32 s41, 0x{f2u(GK1):08x}")
        a.e(f"v_mov_b32 v{vK0+1}, 0x{f2u(GK0):08x}")
        ms()
        AA, DD, TT, PK = [48, 84], [64, 100], 72, [80, 108]
        units = [(jt, ci) for ci in range(2) for jt in range(2)]

        def a_reads(ui):
            jt, ci = units[ui]
            for t in range(2):
                for kk in range(2):
                    r_ = AA[ui & 1] + (t * 2 + kk) * 4
                    for xx in range(2):
                        a.e(f"ds_read_b64_tr_b16 v[{r_+2*xx}:{r_+2*xx+1}], v{vI[jt][t]} offset:{ci*4096 + kk*2048 + xx*256}")
                        a.lg_issue(("AR", ui))
        a.lg = []
        a.wait(vm_tags=(("Y", 0),))
        ms()
        a_reads(0)
        nwi = nw_early
        PACE = int(exp.split("pace=")[1].split(",")[0]) if "pace=" in exp else 0

        def paced(lines_start):
            nonlocal nwi
            body = a.L[lines_start:]
            del a.L[lines_start:]
            cnt = 0
            for ln in body:
                a.L.append(ln)
                cnt += 1
                if PACE and cnt % PACE == 0 and nwi < 32:
                    w_load(nwi, TAB_WO); nwi += 1

        for ui, (jt, ci) in enumerate(units):
            if ui == 1:
                a.wait(vm_tags=(("Y", 1),))
            a.wait(lg_tags=(("AR", ui),))
            for kk in range(2):
                for t in range(2):
                    d = DD[ui & 1] + t * 4
                    r_ = AA[ui & 1] + (t * 2 + kk) * 4
                    f = FI + (jt * 2 + kk) * 4
                    c = "0" if kk == 0 else f"v[{d}:{d+3}]"
                    a.e(f"v_mfma_f32_16x16x32_bf16 v[{d}:{d+3}], v[{r_}:{r_+3}], v[{f}:{f+3}], {c}")
            if ui + 1 < 4:
                a_reads(ui + 1)
            else:
                a.e("s_nop 7")
            xs = [DD[ui & 1] + i for i in range(8)]
            mark = len(a.L)
            if "pk" not in exp.split(","): gelu_group2(a, xs, TT, vK0, 40)
            else: gelu_group_pk(a, xs, TT, vK0, 40)
            if ui >= 1: paced(mark)
            pk = PK[ui & 1]
            for i in range(4):
                a.e(f"v_cvt_pk_bf16_f32 v{pk+i}, v{xs[2*i]}, v{xs[2*i+1]}")
            a.e(f"ds_write_b128 v{vFW}, v[{pk}:{pk+3}] offset:{ci*2048 + jt*256}")
            a.lg_issue(("FW", ui))
        ms()
        nw = nwi
    a.e("s_waitcnt lgkmcnt(0)")
    a.e("s_barrier")
    a.lg = []
    if "earlyprio" in exp:
        a.e("s_setprio 3")
    ms()
    NWO0 = 32 if (fused or "wofull" in exp) else (int(exp.split("nwo0=")[1].split(",")[0]) if "nwo0=" in exp else 32)
    ACC = [8, 40]
    CS = 72
    JR = 104
    NJR, PRE = 4, 3
    OP = 120
    vJR, vOW = 5, 6
    a.e(f"v_and_b32 v46, 31, v{lane}")
    a.e(f"v_mul_u32_u24 v47, {OTP}, v46")
    a.e(f"v_lshrrev_b32 v45, 5, v{lane}")
    a.e(f"v_lshl_add_u32 v47, v45, 4, v47")
    a.e(f"s_lshl_b32 s36, s{sR}, 7")
    a.e(f"s_add_u32 s36, s36, {OT[0]}")
    a.e(f"v_add_u32 v{vOW}, s36, v47")
    a.e(f"v_lshlrev_b32 v7, 6, v45")
    a.e(f"s_lshl_b32 s36, s{sR}, 8")
    a.e(f"s_add_u32 s36, s36, {TAB_CS}")
    for it in range(2):
        for x in range(4):
            a.e(f"buffer_load_dwordx4 v[{CS+16*it+4*x}:{CS+16*it+4*x+3}], v7, s[{sT}:{sT+3}], s36 offen offset:{it*128 + x*16}")
            a.vm_issue("CS")
    while nw < NWO0:
        w_load(nw, TAB_WO); nw += 1
    if "noprio" not in exp:
        a.e("s_setprio 1")
    ms()
    a.e("s_barrier")
    ms()
    a.lg = []

    def emit(op):
        s, tag = op
        if s == "WLOAD":
            w_load(tag, TAB_WO)
            return
        if s is not None:
            if "j_nostore" in exp and s.startswith("buffer_store"): return
        if tag and tag[0] == "wait_lg":
            a.wait(lg_tags=tag[1])
            return
        a.e(s)
        if tag:
            if tag[0] == "lg": a.lg_issue(tag[1])
            else: a.vm_issue(tag[1])

    def jread(i, k):
        r_ = JR + ((16 * i + k) % NJR) * 4
        a.e(f"ds_read_b128 v[{r_}:{r_+3}], v{vJR} offset:{JB[i % 3] + k*1024}")
        a.lg_issue(("JR", i, k))

    def out_wr(i):
        ops = []
        acc = ACC[i & 1]
        dlt = OT[i & 1] - OT[0]
        for it in range(2):
            for qp in range(2):
                r_ = OP + qp * 4
                for k in range(4):
                    s0 = acc + it * 16 + qp * 8 + 2 * k
                    ops.append((f"v_cvt_pk_bf16_f32 v{r_+k}, v{s0}, v{s0+1}", None))
                ops.append((f"ds_write_b128 v{vOW}, v[{r_}:{r_+3}] offset:{dlt + it*64 + qp*32}", ("lg", ("OW", i))))
        return ops

    for k in range(PRE): jread(0, k)
    for u in range(8):
        acc = ACC[u & 1]
        per = [[] for _ in range(32)]
        if u > 0:
            ow = out_wr(u - 1)
            for i, op in enumerate(ow):
                per[4 + (i * 20) // len(ow)].append(op)
        if u == 0:
            for i, wi in enumerate(range(nw, 32)):
                per[i].append(("WLOAD", wi))
        for k in range(16):
            a.wait(lg_tags=(("JR", u, k),))
            if u == 0:
                a.wait(vm_tags=(("W", 2 * k + 1), "CS"))
            r_ = JR + ((16 * u + k) % NJR) * 4
            for it in range(2):
                d = acc + it * 16
                w_ = (it * 16 + k) * 4
                c = f"v[{CS+16*it}:{CS+16*it+15}]" if k == 0 else f"v[{d}:{d+15}]"
                a.e(f"v_mfma_f32_32x32x16_bf16 v[{d}:{d+15}], a[{w_}:{w_+3}], v[{r_}:{r_+3}], {c}")
                if it == 0:
                    if k + PRE < 16:
                        jread(u, k + PRE)
                    elif u + 1 < 8:
                        jread(u + 1, k + PRE - 16)
                for op in per[2 * k + it]: emit(op)
            if k == 15:
                a.wait(lg_tags=(("OW", u - 1),))
                a.e("s_barrier")
        if u == 0: ms()
    ms()
    a.e("s_nop 7")
    a.e("s_nop 7")
    for op in out_wr(7): emit(op)
    a.wait(lg_tags=(("OW", 7),))
    a.e("s_barrier")
    if st_.on and not HS:
        ms()
        st_.dump(int(exp.split("wg=")[1].split(",")[0]) if "wg=" in exp else 0, sW, 0, f"L_{name}_nodump")
    a.end()

    def b_check_ops():
        ops = [f"v_max3_f32 v8, |v{EBV}|, |v{EBV+1}|, |v{EBV+2}|"]
        for i in range(3, 31, 2):
            ops.append(f"v_max3_f32 v8, v8, |v{EBV+i}|, |v{EBV+i+1}|")
        ops.append(f"v_max_f32 v8, v8, |v{EBV+31}|")
        ops.append(f"s_mov_b32 s41, 0x{f2u(BTHR):08x}")
        ops.append("v_cmp_lt_f32 s[42:43], s41, v8")
        for i in range(32):
            ops.append(f"v_exp_f32 v{EBV+i}, v{EBV+i}")
        return ops

    a.label(f"L_{name}_helper")
    late_check = []
    if fused:
        a.vm = []
        a.lg = []
        nw = 32
        vBP, sBP = 28, 45
        a.e("s_mov_b64 s[42:43], s[48:49]")
        a.e("s_waitcnt lgkmcnt(0)")
    else:
        vBP, sBP = 14, 37
        a.vm = []
        a.lg = []
        nw = 0
        EBV = 96
        a.e(f"v_and_b32 v14, 7, v{lane}")
        a.e("v_lshlrev_b32 v14, 10, v14")
        a.e(f"v_lshrrev_b32 v15, 5, v{lane}")
        a.e("v_lshl_add_u32 v14, v15, 4, v14")
        a.e("s_lshl_b32 s36, s24, 13")
        a.e(f"s_lshl_b32 s37, s{sR}, 8")
        a.e("s_add_u32 s36, s36, s37")
        a.e(f"s_add_u32 s37, s36, {TAB_BP}")
        BPLAST = "bpfirst" not in exp

        def bp_loads():
            for it in range(2):
                for q in range(4):
                    r_ = EBV + (it * 4 + q) * 4
                    a.e(f"buffer_load_dwordx4 v[{r_}:{r_+3}], v14, s[{sT}:{sT+3}], s37 offen offset:{(32*it + 8*q)*4}")
                    a.vm_issue("BP")
        if not BPLAST: bp_loads()
        NWF0 = int(exp.split("nwf0=")[1].split(",")[0]) if "nwf0=" in exp else 32
        if "finestamp" in exp: hs()
        while nw < NWF0:
            w_load(nw, TAB_WF); nw += 1
            if "finestamp" in exp and nw % 8 == 0: hs()
        if BPLAST:
            bp_loads()
            late_check = b_check_ops()
        else:
            a.wait(vm_tags=("BP",))
            for op in b_check_ops(): a.e(op)
    hs()
    a.e("s_barrier")
    hs()
    ACF, BFR = 32, 64
    a.e(f"v_add_u32 v7, {FB}, v5")
    for k8 in range(8):
        a.e(f"ds_read_b128 v[{BFR+4*k8}:{BFR+4*k8+3}], v7 offset:{k8*1024}")
        a.lg_issue(("FR", k8))
    for kp in range(16):
        k8 = kp & 7
        for _ in range(2):
            if nw < 32:
                w_load(nw, TAB_WF); nw += 1
        assert nw > 2 * kp + 1
        a.wait(vm_tags=[("W", 2 * kp + 1)], lg_tags=[("FR", kp)])
        for it in range(2):
            d = ACF + it * 16
            w_ = (it * 16 + kp) * 4
            c = "0" if kp == 0 else f"v[{d}:{d+15}]"
            a.e(f"v_mfma_f32_32x32x16_bf16 v[{d}:{d+15}], a[{w_}:{w_+3}], v[{BFR+4*k8}:{BFR+4*k8+3}], {c}")
        if kp >= 1 and kp + 7 < 16:
            kn = kp + 7
            a.e(f"ds_read_b128 v[{BFR+4*(kn & 7)}:{BFR+4*(kn & 7)+3}], v7 offset:{kn*1024}")
            a.lg_issue(("FR", kn))
        if late_check and kp >= 9:
            if kp == 9: a.wait(vm_tags=("BP",))
            for _ in range(8):
                if late_check: a.e(late_check.pop(0))
    for op in late_check: a.e(op)
    hs()
    vJW, vEA, vOR, vOS, vEW = 2, 4, 6, 7, 9
    a.e(f"s_lshl_b32 s36, s{sR}, 12")
    a.e(f"v_add_u32 v{vJW}, s36, v5")
    a.e(f"v_lshrrev_b32 v10, 5, v{lane}")
    a.e(f"v_lshlrev_b32 v11, 4, v10")
    a.e(f"s_lshl_b32 s36, s{sR}, 8")
    a.e(f"s_add_u32 s36, s36, {EAT}")
    a.e(f"v_add_u32 v11, s36, v11")
    a.e(f"v_and_b32 v12, 31, v{lane}")
    a.e(f"v_mul_u32_u24 v13, {EAP}, v12")
    a.e(f"v_add_u32 v{vEW}, v11, v13")
    a.e(f"v_lshrrev_b32 v13, 3, v12")
    a.e(f"v_mul_u32_u24 v13, {EAP}, v13")
    a.e(f"v_add_u32 v{vEA}, v11, v13")
    a.e(f"s_lshl_b32 s36, s{sR}, 3")
    a.e(f"v_add_u32 v10, s36, v10")
    a.e(f"v_mul_u32_u24 v13, {OTP}, v10")
    a.e(f"v_lshl_add_u32 v13, v12, 4, v13")
    a.e(f"v_add_u32 v{vOR}, {OT[0]}, v13")
    a.e(f"v_lshlrev_b32 v13, 9, v10")
    a.e(f"v_lshl_add_u32 v{vOS}, v12, 4, v13")
    AP = 64
    a.e(f"s_mov_b32 s41, 0x{f2u(LOG2E2):08x}")
    for i in range(32):
        a.e(f"v_mul_f32 v{AP+i}, s41, v{ACF+i}")
    a.e(f"v_max3_f32 v8, |v{AP}|, |v{AP+1}|, |v{AP+2}|")
    for i in range(3, 31, 2):
        a.e(f"v_max3_f32 v8, v8, |v{AP+i}|, |v{AP+i+1}|")
    a.e(f"v_max_f32 v8, v8, |v{AP+31}|")
    a.e(f"s_mov_b32 s41, 0x{f2u(ATHR):08x}")
    a.e("v_cmp_lt_f32 vcc, s41, v8")
    a.e("s_nop 3")
    a.e("s_or_b64 s[42:43], s[42:43], vcc")
    a.e("s_cmp_lg_u64 s[42:43], 0")
    a.e("s_cselect_b32 s44, 1, 0")
    if "forceslow" in exp:
        a.e("s_mov_b32 s44, 1")
    a.e("s_cmp_lg_u32 s44, 0")
    a.e(f"s_cbranch_scc1 L_{name}_slow")
    vm2 = list(a.vm)

    def helper(slow):
        a.vm = list(vm2)
        a.lg = []
        EAV = 32
        TT = 64
        JP = 80
        if not slow:
            for i in range(32):
                a.e(f"v_exp_f32 v{ACF+i}, v{AP+i}")
            src = ACF
        else:
            for it in range(2):
                for q in range(4):
                    r_ = EBV + (it * 4 + q) * 4
                    a.e(f"buffer_load_dwordx4 v[{r_}:{r_+3}], v{vBP}, s[{sT}:{sT+3}], s{sBP} offen offset:{(32*it + 8*q)*4}")
            a.e("s_waitcnt vmcnt(0)")
            a.vm = []
            src = AP
        for it in range(2):
            for q in range(4):
                r_ = src + (it * 4 + q) * 4
                a.e(f"ds_write_b128 v{vEW}, v[{r_}:{r_+3}] offset:{(32*it + 8*q)*4}")
        a.e("s_waitcnt lgkmcnt(0)")

        def ea_read(i, grp):
            it, qp = grp >> 1, grp & 1
            for s_ in range(2):
                q = 2 * qp + s_
                r_ = EAV + (it * 4 + q) * 4
                a.e(f"ds_read_b128 v[{r_}:{r_+3}], v{vEA} offset:{i*4*EAP + (32*it + 8*q)*4}")
                a.lg_issue(("EA", i, grp))

        def tanh(i, mid=None):
            for grp in range(4):
                t0 = TT + (grp & 1) * 8
                jp = JP + (grp & 1) * 4
                a.wait(lg_tags=(("EA", i, grp),))
                for x in range(8):
                    if slow: a.e(f"v_add_f32 v{t0+x}, v{EAV+grp*8+x}, v{EBV+grp*8+x}")
                    else: a.e(f"v_fma_f32 v{t0+x}, v{EAV+grp*8+x}, v{EBV+grp*8+x}, 1.0")
                if i + 1 < 8: ea_read(i + 1, grp)
                if slow:
                    for x in range(8): a.e(f"v_exp_f32 v{t0+x}, v{t0+x}")
                    for x in range(8): a.e(f"v_add_f32 v{t0+x}, 1.0, v{t0+x}")
                for x in range(8): a.e(f"v_rcp_f32 v{t0+x}, v{t0+x}")
                if mid and grp in mid: mid[grp]()
                else: a.e("s_nop 0")
                for k in range(4):
                    a.e(f"v_cvt_pk_bf16_f32 v{jp+k}, v{t0+2*k}, v{t0+2*k+1}")
                a.e(f"ds_write_b128 v{vJW}, v[{jp}:{jp+3}] offset:{JB[i % 3] + grp*1024}")
                a.lg_issue(("JW", i))

        def out_rd(i, ks=(0, 1, 2, 3)):
            dlt = OT[i & 1] - OT[0]
            for k in ks:
                a.e(f"ds_read_b128 a[{4*k}:{4*k+3}], v{vOR} offset:{dlt + 2*k*OTP}")
                a.lg_issue(("OR", i, k))

        def out_st(i, ks=(0, 1, 2, 3)):
            for k in ks:
                a.wait(lg_tags=(("OR", i, k),))
                if "j_nostore" in exp: continue
                a.e(f"s_mov_b32 s36, {i*16384 + k*1024}")
                a.e(f"buffer_store_dwordx4 a[{4*k}:{4*k+3}], v{vOS}, s[{sO}:{sO+3}], s36 offen")
                a.vm_issue(("O", i))

        if not slow: hs()
        for grp in range(4): ea_read(0, grp)
        tanh(0)
        tanh(1)
        a.wait(lg_tags=(("JW", 1),))
        if not slow: hs()
        a.e("s_barrier")
        if not slow: hs()
        mark = len(a.L)
        for u in range(8):
            if "j_hidle" in exp:
                a.e("s_barrier")
                continue
            if u >= 2:
                out_rd(u - 2)
            if u + 2 < 8:
                mid = {}
                if u >= 2:
                    mid = {0: (lambda uu=u: out_st(uu - 2, (0, 1))), 1: (lambda uu=u: out_st(uu - 2, (2, 3)))}
                tanh(u + 2, mid)
                a.wait(lg_tags=(("JW", u + 2),))
            elif u >= 2:
                out_st(u - 2)
            if not slow and u in (2, 3): hs()
            a.e("s_barrier")
            if not slow and u in (2, 3): hs()
        if "j_hnovalu" in exp:
            a.L[mark:] = [l for l in a.L[mark:] if not l.strip().startswith("v_")]
        if "j_hnolds" in exp:
            a.L[mark:] = [l for l in a.L[mark:] if not l.strip().startswith("ds_")]
        if "j_hnotrans" in exp:
            a.L[mark:] = [l for l in a.L[mark:] if not l.strip().startswith("v_rcp")]
        out_rd(6)
        out_st(6)
        a.e("s_barrier")
        out_rd(7)
        out_st(7)
        if st_.on and HS and not slow:
            st_.stamp()
            a.e("s_waitcnt vmcnt(0)")
            st_.stamp()
            st_.dump(0, sW, 4, f"L_{name}_nodump")
        a.end()

    helper(False)
    a.label(f"L_{name}_slow")
    helper(True)
    a.label(f"L_{name}_done")
    a.e("s_endpgm")
    return a.text(), LDS, 256, NWG
```

```python
import os as _os
NFFT = 64
V = 48
NBINS = 32
NB1 = 167
NB2 = 84
M1 = 2 * NB1
M2 = 2 * NB2
XROW = 2048
XBIN1 = M1 * XROW
XBIN2 = M2 * XROW
YBM = int(_os.environ.get('YBM', '1'))
Y_CG = 128 if YBM else 4096
Y_BIN = 1024 if YBM else 128
GBIN = 524288 + 4352
YROW = int(_os.environ.get('YROW', '37120'))


def al(x, a=4096):
    return (x + a - 1) // a * a


WS_XH1 = int(_os.environ.get('WSB', '0')) << 20
WS_GH1 = al(WS_XH1 + NBINS * XBIN1 + 65536)
WS_YH1 = al(WS_GH1 + NBINS * GBIN)
WS_XH2 = al(WS_YH1 + M1 * YROW)
WS_GH2 = al(WS_XH2 + NBINS * XBIN2 + 65536)
WS_YH2 = al(WS_GH2 + NBINS * GBIN)
WS_TAB = al(WS_YH2 + M2 * YROW)
import os
REUSE = int(os.environ.get("REUSE", "0"))
X_PTR = 72
if REUSE in (1, 2):
    WS_XH2, WS_GH2, WS_YH2 = WS_XH1, WS_GH1, WS_YH1
if REUSE in (2, 3):
    X_PTR = 56
    WS_XH1 = WS_XH2 = 0
TAB_F = 0
TAB_FI = 8192
TAB_BP = 16384
TAB_CS = 14336
TAB_WF = 32768
TAB_WO = TAB_WF + 131072
TAB_FLG = TAB_WO + 131072
TAB_END = TAB_FLG + 1024
WS_END = al(WS_TAB + TAB_END)


def pi(q):
    g, t, e = q >> 3, (q >> 2) & 1, q & 3
    return 16 * t + 4 * g + e


if __name__ == "__main__":
    for k in ("WS_XH1", "WS_GH1", "WS_YH1", "WS_XH2", "WS_GH2", "WS_YH2", "WS_TAB", "WS_END"):
        print(k, hex(globals()[k]), globals()[k] / 1e6)
```

```python
from asmlib import Asm, Stamps, f2u
from layout import *
from prep import ghat_part

GK0 = -2.302208198144325
GK1 = GK0 * 0.044715


def gelu_group(a, xs, tmp, s0):
    n = len(xs)
    for i, x in enumerate(xs):
        a.e(f"v_mul_f32 v{tmp+i}, v{x}, v{x}")
    for i, x in enumerate(xs):
        a.e(f"v_fma_f32 v{tmp+i}, v{tmp+i}, s{s0}, v{x}") if False else None
    for i, x in enumerate(xs):
        a.e(f"v_mul_f32 v{tmp+i}, s{s0}, v{tmp+i}")
    for i, x in enumerate(xs):
        a.e(f"v_add_f32 v{tmp+i}, s{s0+1}, v{tmp+i}")
    for i, x in enumerate(xs):
        a.e(f"v_mul_f32 v{tmp+i}, v{tmp+i}, v{x}")
    for i, x in enumerate(xs):
        a.e(f"v_exp_f32 v{tmp+i}, v{tmp+i}")
    for i, x in enumerate(xs):
        a.e(f"v_add_f32 v{tmp+i}, 1.0, v{tmp+i}")
    for i, x in enumerate(xs):
        a.e(f"v_rcp_f32 v{tmp+i}, v{tmp+i}")
    for i, x in enumerate(xs):
        a.e(f"v_mul_f32 v{x}, v{x}, v{tmp+i}")


def gelu_group2(a, xs, tmp, vk1, s0):
    for i, x in enumerate(xs):
        a.e(f"v_mul_f32 v{tmp+i}, v{x}, v{x}")
    for i, x in enumerate(xs):
        a.e(f"v_fma_f32 v{tmp+i}, v{tmp+i}, s{s0}, v{vk1}")
    for i, x in enumerate(xs):
        a.e(f"v_mul_f32 v{tmp+i}, v{tmp+i}, v{x}")
    for i, x in enumerate(xs):
        a.e(f"v_exp_f32 v{tmp+i}, v{tmp+i}")
    for i, x in enumerate(xs):
        a.e(f"v_add_f32 v{tmp+i}, 1.0, v{tmp+i}")
    for i, x in enumerate(xs):
        a.e(f"v_rcp_f32 v{tmp+i}, v{tmp+i}")
    for i, x in enumerate(xs):
        a.e(f"v_mul_f32 v{x}, v{x}, v{tmp+i}")


def gelu_group_pk(a, xs, tmp, vk0, sk1):
    n = len(xs)
    x0 = xs[0]
    assert x0 % 2 == 0 and tmp % 2 == 0 and vk0 % 2 == 0 and sk1 % 2 == 0 and xs == list(range(x0, x0 + n))
    P = range(0, n, 2)
    for i in P:
        a.e(f"v_pk_mul_f32 v[{tmp+i}:{tmp+i+1}], v[{x0+i}:{x0+i+1}], v[{x0+i}:{x0+i+1}]")
    for i in P:
        a.e(f"v_pk_fma_f32 v[{tmp+i}:{tmp+i+1}], v[{tmp+i}:{tmp+i+1}], s[{sk1}:{sk1+1}], v[{vk0}:{vk0+1}]")
    for i in P:
        a.e(f"v_pk_mul_f32 v[{tmp+i}:{tmp+i+1}], v[{tmp+i}:{tmp+i+1}], v[{x0+i}:{x0+i+1}]")
    for i in range(n):
        a.e(f"v_exp_f32 v{tmp+i}, v{tmp+i}")
    for i in P:
        a.e(f"v_pk_add_f32 v[{tmp+i}:{tmp+i+1}], v[{tmp+i}:{tmp+i+1}], 1.0 op_sel_hi:[1,0]")
    for i in range(n):
        a.e(f"v_rcp_f32 v{tmp+i}, v{tmp+i}")
    for i in P:
        a.e(f"v_pk_mul_f32 v[{x0+i}:{x0+i+1}], v[{x0+i}:{x0+i+1}], v[{tmp+i}:{tmp+i+1}]")


def mid_kernel(name, exp=""):
    a = Asm()
    NMAIN = 2 * 28 * 8
    G2 = "g2inprep" not in exp and "g2ingemm" not in exp
    NWG = NMAIN + (256 if G2 else 0)
    sW = 20
    STG = 0
    HT = 32768
    PL = 160 * 64
    LDS = HT + 2 * PL
    SH0, SH1 = 17 * 64, 16 * 64
    sY, sT, sO = 8, 12, 16
    a.label(name)
    a.e(f"s_cmp_ge_u32 s2, {NWG}")
    a.e(f"s_cbranch_scc1 L_{name}_done")
    if "trace" in exp and a.trace_region is None: a.trace_begin(2)
    if "dbgtime" in exp: a.trace_begin(2, dbg=True)
    st_ = Stamps(a, "stamp" in exp)
    st_.begin()
    a.e(f"v_readfirstlane_b32 s{sW}, v0")
    a.e(f"s_lshr_b32 s{sW}, s{sW}, 6")
    GFIRST = G2 and "gfirst" in exp
    if G2 and not GFIRST:
        a.e(f"s_cmp_ge_u32 s2, {NMAIN}")
        a.e(f"s_cbranch_scc1 L_{name}_g")
    if GFIRST:
        a.e("s_cmp_lt_u32 s2, 256")
        a.e(f"s_cbranch_scc1 L_{name}_g")
        a.e("s_sub_u32 s3, s2, 256")
    else:
        a.e("s_mov_b32 s3, s2")
    a.e("s_load_dwordx2 s[6:7], s[0:1], 72")
    a.e(f"s_load_dwordx2 s[4:5], s[0:1], {X_PTR}")
    a.e("s_cmp_ge_u32 s3, 224")
    a.e("s_cselect_b32 s24, 1, 0")
    a.e("s_mul_i32 s25, s24, 224")
    a.e("s_sub_u32 s25, s3, s25")
    a.e("s_lshr_b32 s26, s25, 3")
    a.e("s_and_b32 s27, s25, 7")
    lane = 1
    a.e(f"v_and_b32 v{lane}, 63, v0")
    a.e(f"v_lshrrev_b32 v2, 3, v{lane}")
    a.e(f"v_mul_u32_u24 v2, {Y_BIN}, v2")
    a.e(f"v_bfe_u32 v3, v{lane}, 2, 1")
    a.e("v_lshl_add_u32 v2, v3, 6, v2")
    a.e(f"v_lshrrev_b32 v3, 5, v{lane}")
    a.e("v_lshlrev_b32 v3, 1, v3")
    a.e(f"v_and_b32 v4, 3, v{lane}")
    a.e("v_xor_b32 v3, v3, v4")
    a.e("v_lshl_add_u32 v2, v3, 4, v2")
    a.e("s_mul_i32 s28, s26, 6")
    a.e(f"s_lshl_b32 s29, s{sW}, 1")
    a.e("s_add_u32 s28, s28, s29")
    a.e("s_sub_u32 s28, s28, 1")
    a.e(f"s_mul_i32 s30, s27, {Y_CG}")
    for bb in range(2):
        a.e(f"s_add_u32 s31, s28, {bb}")
        a.e(f"s_mul_i32 s32, s31, {YROW}")
        a.e("s_add_u32 s32, s32, s30")
        a.e("s_cmp_lt_i32 s31, 0")
        a.e("s_cselect_b32 s32, 0x7f000000, s32")
        a.e(f"v_add_u32 v{3+bb}, s32, v2")
    a.e("s_waitcnt lgkmcnt(0)")
    a.e(f"s_mul_i32 s33, s24, {NB1*YROW}")
    a.e(f"s_add_u32 s33, s33, {WS_YH1}")
    a.e(f"s_add_u32 s{sY}, s6, s33")
    a.e(f"s_addc_u32 s{sY+1}, s7, 0")
    a.e(f"s_mov_b32 s{sY+2}, {NB1*YROW}")
    a.e(f"s_mov_b32 s{sY+3}, 0x00020000")
    a.add64(sT, 6, WS_TAB)
    a.e(f"s_mov_b32 s{sT+2}, 16384")
    a.e(f"s_mov_b32 s{sT+3}, 0x00020000")
    if "fuse" in exp.split(","):
        a.e(f"s_or_b32 s35, s2, s{sW}")
        a.e("s_cmp_lg_u32 s35, 0")
        a.e(f"s_cbranch_scc1 L_{name}_nozero")
        a.add64(44, 6, WS_TAB)
        a.e(f"s_mov_b32 s46, {TAB_END}")
        a.e("s_mov_b32 s47, 0x00020000")
        a.e(f"s_mov_b32 s35, {TAB_FLG}")
        for x in range(4):
            a.e(f"v_mov_b32 v{8+x}, 0")
        a.e(f"v_lshlrev_b32 v5, 4, v{lane}")
        a.e("buffer_store_dwordx4 v[8:11], v5, s[44:47], s35 offen")
        a.e("s_nop 1")
        a.label(f"L_{name}_nozero")
    a.e(f"s_lshl_b32 s34, s{sW}, 13")
    for bb in range(2):
        for q in range(4):
            a.e(f"s_add_u32 m0, s34, {STG + bb*4096 + q*1024}")
            a.e(f"s_mov_b32 s35, {q*8*Y_BIN}")
            a.e(f"buffer_load_dwordx4 v{3+bb}, s[{sY}:{sY+3}], s35 offen lds")
            a.vm_issue(("Y", bb))
    FI, FF = 8, 32
    a.e(f"v_lshlrev_b32 v5, 4, v{lane}")
    for jt in range(3):
        for kk in range(2):
            r_ = FI + (jt * 2 + kk) * 4
            a.e(f"s_mov_b32 s35, {TAB_FI + (jt*2+kk)*1024}")
            a.e(f"buffer_load_dwordx4 v[{r_}:{r_+3}], v5, s[{sT}:{sT+3}], s35 offen")
            a.vm_issue("FI")
    a.e(f"s_lshl_b32 s35, s{sW}, 11")
    for kk in range(2):
        a.e(f"buffer_load_dwordx4 v[{FF+4*kk}:{FF+4*kk+3}], v5, s[{sT}:{sT+3}], s35 offen offset:{TAB_F + kk*1024}")
        a.vm_issue("F")
    rr, gg, cc = 40, 41, 42
    a.e(f"v_bfe_u32 v{rr}, v{lane}, 2, 2")
    a.e(f"v_lshrrev_b32 v{gg}, 4, v{lane}")
    a.e(f"v_and_b32 v{cc}, 3, v{lane}")
    vI = [44, 45]
    a.e(f"v_lshl_add_u32 v43, v{gg}, 3, v{rr}")
    a.e(f"v_lshlrev_b32 v46, 6, v43")
    a.e(f"v_and_b32 v47, 1, v{gg}")
    a.e("v_lshlrev_b32 v47, 1, v47")
    a.e(f"v_lshrrev_b32 v48, 1, v{cc}")
    a.e("v_xor_b32 v47, v47, v48")
    a.e("v_lshl_add_u32 v46, v47, 4, v46")
    a.e(f"v_and_b32 v48, 1, v{cc}")
    a.e("v_lshl_add_u32 v46, v48, 3, v46")
    a.e(f"v_add_u32 v{vI[0]}, s34, v46")
    a.e(f"v_xor_b32 v{vI[1]}, 32, v{vI[0]}")
    vF0 = [49, 50]
    a.e(f"v_add_u32 v{vF0[0]}, {HT + PL + 16*64 - SH1}, v46")
    a.e(f"v_xor_b32 v{vF0[1]}, 32, v{vF0[0]}")
    vF1 = [[51, 52], [53, 54]]
    for xx in range(2):
        a.e(f"v_add_u32 v47, {1 + 4*xx}, v43")
        a.e("v_bfe_u32 v48, v47, 3, 1")
        a.e("v_lshlrev_b32 v48, 1, v48")
        a.e(f"v_lshrrev_b32 v55, 1, v{cc}")
        a.e("v_xor_b32 v48, v48, v55")
        a.e(f"v_lshlrev_b32 v47, 6, v47")
        a.e("v_lshl_add_u32 v47, v48, 4, v47")
        a.e(f"v_and_b32 v48, 1, v{cc}")
        a.e("v_lshl_add_u32 v47, v48, 3, v47")
        a.e(f"v_add_u32 v{vF1[xx][0]}, {HT + 16*64 - SH0}, v47")
        a.e(f"v_xor_b32 v{vF1[xx][1]}, 32, v{vF1[xx][0]}")
    vH = [56, 57]
    vRho = 62 + 60
    a.e(f"v_and_b32 v47, 1, v{lane}")
    a.e(f"v_mul_u32_u24 v55, {PL - SH1 + SH0}, v47")
    a.e(f"v_bfe_u32 v48, v{lane}, 1, 3")
    a.e("v_lshl_add_u32 v55, v48, 6, v55")
    a.e(f"v_lshl_add_u32 v55, v{gg}, 4, v55")
    a.e(f"s_mul_i32 s35, s{sW}, {48*64}")
    a.e(f"s_add_u32 s35, s35, {HT - SH0}")
    a.e(f"v_add_u32 v{vH[0]}, s35, v55")
    a.e(f"v_xor_b32 v{vH[1]}, 32, v{vH[0]}")
    a.e(f"s_mul_i32 s35, s{sW}, 48")
    a.e(f"s_sub_u32 s35, s35, 17")
    a.e(f"v_add_u32 v{vRho}, v48, v47")
    a.e(f"v_add_u32 v{vRho}, s35, v{vRho}")
    vS = 58
    a.e(f"s_mov_b32 s35, {XBIN2}")
    a.e(f"v_mul_lo_u32 v{vS}, v48, s35")
    a.e(f"v_and_b32 v47, 1, v{lane}")
    a.e(f"v_lshl_add_u32 v{vS}, v47, 6, v{vS}")
    a.e(f"v_lshl_add_u32 v{vS}, v{gg}, 4, v{vS}")
    vK0 = 59
    a.e(f"s_mov_b32 s36, 0x{f2u(GK1):08x}")
    a.e(f"v_mov_b32 v{vK0}, 0x{f2u(GK0):08x}")
    a.e(f"s_mov_b32 s42, 0x{f2u(GK1):08x}")
    a.e(f"s_mov_b32 s43, 0x{f2u(GK1):08x}")
    a.e(f"v_mov_b32 v120, 0x{f2u(GK0):08x}")
    a.e(f"v_mov_b32 v121, 0x{f2u(GK0):08x}")
    a.add64(sO, 4, WS_XH2)
    a.e(f"s_mov_b32 s{sO+2}, {32*XBIN2}")
    a.e(f"s_mov_b32 s{sO+3}, 0x00020000")
    a.e(f"s_mul_i32 s37, s{sW}, {8*XBIN2}")
    a.e(f"s_mul_i32 s38, s24, {NB2}")
    a.e("s_mul_i32 s39, s26, 3")
    a.e("s_add_u32 s38, s38, s39")
    a.e("s_lshl_b32 s38, s38, 11")
    a.e("s_add_u32 s37, s37, s38")
    a.e("s_lshl_b32 s38, s27, 7")
    a.e("s_add_u32 s37, s37, s38")
    AA, DD, TT, PK = 60, 76, 100, 108
    st_.stamp()
    for bb in range(2):
        a.wait(vm_tags=(("Y", bb),) if bb == 1 else (("Y", 0), "FI"))
        if bb == 0:
            st_.stamp()
        for t in range(2):
            for kk in range(2):
                r_ = AA + (t * 2 + kk) * 4
                for xx in range(2):
                    a.e(f"ds_read_b64_tr_b16 v[{r_+2*xx}:{r_+2*xx+1}], v{vI[t]} offset:{bb*4096 + kk*2048 + xx*256}")
        a.e("s_waitcnt lgkmcnt(0)")
        for kk in range(2):
            for jt in range(3):
                for t in range(2):
                    d = DD + (jt * 2 + t) * 4
                    r_ = AA + (t * 2 + kk) * 4
                    f = FI + (jt * 2 + kk) * 4
                    c = "0" if kk == 0 else f"v[{d}:{d+3}]"
                    a.e(f"v_mfma_f32_16x16x32_bf16 v[{d}:{d+3}], v[{r_}:{r_+3}], v[{f}:{f+3}], {c}")
        a.e(f"s_add_u32 s31, s28, {bb}")
        a.e(f"s_cmp_eq_u32 s31, {NB1-1}")
        a.e("s_cselect_b32 s39, 0, -1")
        a.e("s_nop 4")
        for jt in range(3):
            xs = [DD + jt * 8 + i for i in range(8)]
            if "pk" not in exp.split(","): gelu_group2(a, xs, TT, vK0, 36)
            else: gelu_group_pk(a, xs, TT, 120, 42)
            pk = PK + jt * 4
            for i in range(4):
                a.e(f"v_cvt_pk_bf16_f32 v{pk+i}, v{xs[2*i]}, v{xs[2*i+1]}")
            if jt == 2:
                for i in range(4):
                    a.e(f"v_and_b32 v{pk+i}, s39, v{pk+i}")
            a.e(f"v_add_u32 v{vRho+1}, {24*bb + 8*jt}, v{vRho}")
            a.e(f"v_cmp_gt_u32 vcc, 160, v{vRho+1}")
            a.e("s_nop 0")
            a.e("s_and_saveexec_b64 s[40:41], vcc")
            a.e(f"ds_write_b128 v{vH[(bb + jt) & 1]}, v[{pk}:{pk+3}] offset:{(24*bb + 8*jt)*64}")
            a.e("s_mov_b64 exec, s[40:41]")
    st_.stamp()
    a.wait(vm_tags=("F",))
    a.e("s_waitcnt lgkmcnt(0)")
    a.e("s_barrier")
    st_.stamp()
    units = [(aa, p) for aa in range(3) for p in range(2)]
    A2 = [60, 76]
    D2 = [92, 100]
    PK2 = [108, 112]

    def fwd_reads(u):
        aa, p = units[u]
        base = A2[u & 1]
        for t in range(2):
            for kk in range(2):
                r_ = base + (t * 2 + kk) * 4
                for xx in range(2):
                    if p == 0:
                        va, off = vF0[t], (48 * aa + 32 * kk + 4 * xx) * 64
                    else:
                        va, off = vF1[xx][t], (48 * aa + 32 * kk) * 64
                    a.e(f"ds_read_b64_tr_b16 v[{r_+2*xx}:{r_+2*xx+1}], v{va} offset:{off}")
                    a.lg_issue(("A2", u))

    a.lg = []
    fwd_reads(0)
    for u, (aa, p) in enumerate(units):
        a.wait(lg_tags=(("A2", u),))
        if u + 1 < len(units):
            pass
        base = A2[u & 1]
        dd = D2[u & 1]
        for kk in range(2):
            for t in range(2):
                d = dd + t * 4
                r_ = base + (t * 2 + kk) * 4
                c = "0" if kk == 0 else f"v[{d}:{d+3}]"
                a.e(f"v_mfma_f32_16x16x32_bf16 v[{d}:{d+3}], v[{r_}:{r_+3}], v[{FF+4*kk}:{FF+4*kk+3}], {c}")
        if u + 1 < len(units):
            fwd_reads(u + 1)
        else:
            a.e("s_nop 7")
        pk = PK2[u & 1]
        a.e(f"v_cvt_pk_bf16_f32 v{pk}, v{dd}, v{dd+1}")
        a.e(f"v_cvt_pk_bf16_f32 v{pk+1}, v{dd+2}, v{dd+3}")
        a.e(f"v_cvt_pk_bf16_f32 v{pk+2}, v{dd+4}, v{dd+5}")
        a.e(f"v_cvt_pk_bf16_f32 v{pk+3}, v{dd+6}, v{dd+7}")
        a.e(f"s_add_u32 s38, s37, {aa*2048 + p*8*128}")
        a.e(f"buffer_store_dwordx4 v[{pk}:{pk+3}], v{vS}, s[{sO}:{sO+3}], s38 offen")
    if st_.on:
        st_.stamp()
        a.e("s_waitcnt vmcnt(0)")
        st_.stamp()
        st_.dump(int(exp.split("wg=")[1].split(",")[0]) if "wg=" in exp else 0, sW, 0, f"L_{name}_nodump")
    a.end()
    if G2:
        a.label(f"L_{name}_g")
        if GFIRST: a.e("s_mov_b32 s3, s2")
        else: a.e(f"s_sub_u32 s3, s2, {NMAIN}")
        ghat_part(a, name, 2, sW, "s3")
    a.label(f"L_{name}_done")
    a.e("s_endpgm")
    return a.text(), LDS, 128, NWG
```

```python
import os
import sys
sys.path.insert(0, os.path.dirname(os.path.abspath(__file__)))
from asmlib import kd
from gemm import gemm_kernel

HEADER = """; Kernarg layout for this problem (80 bytes, ptrs only, base s[0:1]):
"""


def build(which, exp=""):
    ks = []
    for nm in which:
        if nm == "gemm1":
            code, lds, nv = gemm_kernel("gemm1_kernel", 1, exp)
            ks.append(("gemm1_kernel", 256, 512, code, lds, nv))
        elif nm == "gemm2":
            code, lds, nv = gemm_kernel("gemm2_kernel", 2, exp)
            ks.append(("gemm2_kernel", 256, 512, code, lds, nv))
        elif nm == "prep":
            from prep import prep_kernel
            code, lds, nv, grid = prep_kernel("prep_kernel", exp)
            ks.append(("prep_kernel", grid, 256, code, lds, nv))
        elif nm == "mid":
            from mid import mid_kernel
            code, lds, nv, grid = mid_kernel("mid_kernel", exp)
            ks.append(("mid_kernel", grid, 256, code, lds, nv))
        elif nm == "joint":
            from joint import joint_kernel
            code, lds, nv, grid = joint_kernel("joint_kernel", exp)
            ks.append(("joint_kernel", grid, 512, code, lds, nv))
        elif nm == "gj":
            from gj import gj_kernel
            code, lds, nv, grid = gj_kernel("gj_kernel", exp)
            ks.append(("gj_kernel", grid, 512, code, lds, nv))
        else:
            raise ValueError(nm)
    pol = {"st": "sc1", "sto": "sc1"}
    for tok in exp.split(","):
        for k in ("st", "sto"):
            if tok.startswith(k + "="):
                pol[k] = tok[len(k) + 1:].replace("+", " ")
    for tok in exp.split(","):
        for k in ("px", "pg", "mx", "mg", "g1", "g2"):
            if tok.startswith(k + "="):
                pol[k] = tok[len(k) + 1:].replace("+", " ")
    ks2 = []
    for nm, grid, block, code, lds, nv in ks:
        lines = []
        for ln in code.split("\n"):
            t = ln.strip()
            if t.startswith("buffer_store_dwordx4") and "s[56:59]" not in ln:
                key = "sto" if nm == "joint_kernel" else "st"
                if nm == "gj_kernel" and ", s[16:19], s36 " in t: key = "sto"
                if nm == "prep_kernel" and ", v16, " in t: key = "px"
                if nm == "prep_kernel" and ", v33, " in t: key = "pg"
                if nm == "mid_kernel" and ", v58, " in t: key = "mx"
                if nm == "mid_kernel" and ", v33, " in t: key = "mg"
                if nm == "gemm1_kernel": key = "g1"
                if nm == "gemm2_kernel": key = "g2"
                sfx = pol.get(key, pol["st"])
                ln = ln + ("" if sfx == "plain" else " " + sfx)
            if nm == "prep_kernel" and "nontld" not in exp and t.startswith("buffer_load_dwordx4") and t.endswith(" lds"):
                ln = ln[:-4] + " nt lds"
            if nm == "mid_kernel" and "nontld" not in exp and "w2pf" not in exp.split(",") and t.startswith("buffer_load_dwordx4") and t.endswith(" lds") and "s[8:11], s32" in ln:
                ln = ln[:-4] + " nt lds"
            lines.append(ln)
        ks2.append((nm, grid, block, "\n".join(lines), lds, nv))
    ks = ks2
    out = HEADER
    for nm, grid, block, code, lds, nv in ks:
        out += f"; @launch kernel={nm} grid=({grid},1,1) block=({block},1,1) lds={lds}\n"
    out += '.amdgcn_target "amdgcn-amd-amdhsa--gfx950"\n.text\n'
    for nm, grid, block, code, lds, nv in ks:
        out += f".globl {nm}\n.p2align 8\n.type {nm},@function\n" + code
    out += '.section .rodata,"a"\n'
    for nm, grid, block, code, lds, nv in ks:
        out += ".p2align 6\n" + kd(nm, vgpr=(nv + 7) // 8 * 8, accum=128 if nm in ("joint_kernel", "gj_kernel") else min(256, (nv + 7) // 8 * 8))
    return out


if __name__ == "__main__":
    path = sys.argv[1]
    which = sys.argv[2].split(",") if len(sys.argv) > 2 else (["prep", "gemm1", "mid", "gj"] if "fuse" in os.environ.get("EXP", "").split(",") else ["prep", "gemm1", "mid", "gemm2", "joint"])
    open(path, "w").write(build(which, os.environ.get("EXP", "")))
```

```python
from asmlib import Asm, Stamps
from layout import *
from prep import cos_vals


def gemm_kernel(name, conv, exp="", fused=False):
    a = Asm()
    if conv == 1:
        M, XBIN, WS_X, WS_G, WS_Y = M1, XBIN1, WS_XH1, WS_GH1, WS_YH1
        NT, S, NP = (2, 7, 2) if "twopass" in exp else (4, 5, 1)
    else:
        M, XBIN, WS_X, WS_G, WS_Y = M2, XBIN2, WS_XH2, WS_GH2, WS_YH2
        NT, S, NP = 2, 7, 1
    KST = 16
    NSTEP = KST * NP
    ROWS = 84
    G2 = conv == 1 and "g2ingemm" in exp
    ABYTES = 11264 if G2 else 12288
    CTP = 2 * NT
    BP = CTP * 2
    SLOT = ABYTES + BP * 1024
    SPW = 65536 // SLOT
    NWIN = (S + SPW - 1) // SPW
    LDS = S * SLOT
    GX = LDS
    if G2:
        LDS += 16 * 1152 + 4096
    BPW = BP // 4
    NWG = 256
    NCT = CTP * NP

    ASZ = NT * 24
    FR0 = 4 if fused else NP * ASZ
    AK = "a" if fused else "v"
    FSZ = NT * 8 + 24
    vAre = FR0 + 2 * FSZ
    vAim = vAre + NWIN
    vB = vAim + NWIN
    vT = vB + NWIN
    EP = (vT + 12 + 1) // 2 * 2
    NV = EP + (24 if NP > 1 else 0)
    assert NV <= (128 if fused else 256)

    def G(st, t, ri):
        return FR0 + st * FSZ + (t * 2 + ri) * 4

    def U(st, r, ri):
        return FR0 + st * FSZ + NT * 8 + (r * 2 + ri) * 4

    def accr(p, t, r):
        return p * ASZ + (t * 3 + r) * 4

    def acci(p, t, r):
        return p * ASZ + NT * 12 + (t * 3 + r) * 4

    sA, sB, sY = 8, 12, 16
    sW = 20
    sBin = 21
    sM0 = 22
    a.label(name)
    if not fused:
        a.e(f"s_cmp_ge_u32 s2, {NWG}")
        a.e(f"s_cbranch_scc1 L_{name}_done")
    if "trace" in exp and a.trace_region is None: a.trace_begin(conv*2-1)
    st_ = Stamps(a, "stamp" in exp)
    st_.begin()
    a.e("s_load_dwordx2 s[4:5], s[0:1], 72")
    a.e(f"s_load_dwordx2 s[6:7], s[0:1], {X_PTR}")
    a.e(f"v_readfirstlane_b32 s{sW}, v0")
    a.e(f"s_lshr_b32 s{sW}, s{sW}, 6")
    a.e("s_and_b32 s24, s2, 7")
    a.e("s_lshr_b32 s25, s2, 3")
    a.e("s_lshr_b32 s26, s25, 3")
    a.e("s_lshl_b32 s24, s24, 2")
    a.e(f"s_add_u32 s{sBin}, s24, s26")
    a.e("s_and_b32 s25, s25, 7")
    if conv == 1:
        a.e("s_lshr_b32 s26, s25, 1")
        a.e("s_and_b32 s27, s25, 1")
    else:
        a.e("s_lshr_b32 s26, s25, 2")
        a.e("s_and_b32 s27, s25, 3")
    a.e(f"s_mul_i32 s{sM0}, s26, {ROWS}")
    a.e(f"s_sub_u32 s28, {M}, s{sM0}")
    a.e(f"s_min_u32 s28, s28, {ROWS}")
    a.e("s_waitcnt lgkmcnt(0)")
    a.e(f"s_mul_i32 s29, s{sBin}, {XBIN}")
    a.e(f"s_lshl_b32 s30, s{sM0}, 11")
    a.e("s_add_u32 s29, s29, s30")
    a.e(f"s_add_u32 s29, s29, {WS_X}")
    a.e(f"s_add_u32 s{sA}, s6, s29")
    a.e(f"s_addc_u32 s{sA+1}, s7, 0")
    a.e(f"s_lshl_b32 s{sA+2}, s28, 11")
    a.e(f"s_mov_b32 s{sA+3}, 0x00020000")
    a.e(f"s_mul_i32 s29, s{sBin}, {GBIN}")
    a.e(f"s_mul_i32 s30, s27, {NCT*2048}")
    a.e("s_add_u32 s29, s29, s30")
    a.e(f"s_add_u32 s29, s29, {WS_G}")
    a.e(f"s_add_u32 s{sB}, s4, s29")
    a.e(f"s_addc_u32 s{sB+1}, s5, 0")
    a.e(f"s_mov_b32 s{sB+2}, {15*32768 + NCT*2048}")
    a.e(f"s_mov_b32 s{sB+3}, 0x00020000")
    a.e(f"s_cmp_ge_u32 s{sW}, 4")
    a.e(f"s_cbranch_scc1 L_{name}_loader")
    i_cons = len(a.L)

    a.e(f"s_mul_i32 s29, s{sM0}, {YROW}")
    a.e(f"s_add_u32 s29, s29, {WS_Y}")
    a.e(f"s_add_u32 s{sY}, s4, s29")
    a.e(f"s_addc_u32 s{sY+1}, s5, 0")
    a.e(f"s_mul_i32 s{sY+2}, s28, {YROW}")
    a.e(f"s_mov_b32 s{sY+3}, 0x00020000")
    a.e(f"s_lshr_b32 s29, s{sW}, 1")
    a.e(f"s_and_b32 s30, s{sW}, 1")
    a.e(f"v_and_b32 v{vT}, 15, v0")
    a.e(f"v_bfe_u32 v{vT+1}, v0, 4, 2")
    a.e(f"v_and_b32 v{vT+2}, 63, v0")
    a.e(f"s_mul_i32 s31, s29, {48*128}")
    a.e(f"v_and_b32 v{vT+3}, 7, v{vT}")
    a.e(f"v_xor_b32 v{vT+3}, v{vT+1}, v{vT+3}")
    a.e(f"v_lshlrev_b32 v{vT+3}, 4, v{vT+3}")
    a.e(f"v_lshl_add_u32 v{vT+3}, v{vT}, 7, v{vT+3}")
    a.e(f"v_add_u32 v{vT+3}, s31, v{vT+3}")
    for w in range(NWIN):
        a.e(f"v_add_u32 v{vAre+w}, {w*SPW*SLOT}, v{vT+3}")
        a.e(f"v_xor_b32 v{vAim+w}, 64, v{vAre+w}")
    a.e(f"s_mul_i32 s31, s30, {NT*2048}")
    a.e(f"s_add_u32 s31, s31, {ABYTES}")
    a.e(f"v_lshlrev_b32 v{vT+3}, 4, v{vT+2}")
    a.e(f"v_add_u32 v{vT+3}, s31, v{vT+3}")
    for w in range(NWIN):
        a.e(f"v_add_u32 v{vB+w}, {w*SPW*SLOT}, v{vT+3}")
    vY1, vY2 = vT + 5, vT + 6
    a.e(f"v_and_b32 v{vT+7}, 7, v{vT}")
    a.e(f"v_lshrrev_b32 v{vT+8}, 3, v{vT}")
    a.e(f"v_mul_u32_u24 v{vY1}, {YROW}, v{vT+7}")
    a.e(f"v_lshl_add_u32 v{vY1}, v{vT+1}, 4, v{vY1}")
    a.e(f"s_mul_i32 s31, s29, {48*YROW}")
    a.e(f"v_add_u32 v{vY1}, s31, v{vY1}")
    a.e(f"v_lshl_add_u32 v{vY1}, v{vT+8}, 6, v{vY1}")
    a.e(f"v_xor_b32 v{vT+8}, 64, v{vY1}")
    a.e(f"v_add_u32 v{vY2}, {8*YROW}, v{vT+8}")
    a.e(f"s_mul_i32 s31, s27, {NCT//2}")
    a.e(f"s_mul_i32 s29, s30, {NT//2}")
    a.e("s_add_u32 s31, s31, s29")
    a.e(f"s_mul_i32 s31, s31, {Y_CG}")
    a.e(f"s_mul_i32 s29, s{sBin}, {Y_BIN}")
    a.e("s_add_u32 s33, s31, s29")
    a.e("s_mov_b32 s34, 0x80008000")

    if G2:
        t6, t7 = FR0, FR0 + 1
        a.e("s_load_dwordx2 s[38:39], s[0:1], 16")
        a.e("s_lshr_b32 s40, s2, 4")
        a.e("s_bfe_u32 s41, s2, 0x20002")
        a.e("s_and_b32 s42, s2, 3")
        a.e("s_lshr_b32 s43, s40, 3")
        a.e("s_and_b32 s44, s40, 7")
        a.e(f"v_lshrrev_b32 v{t6}, 3, v{vT+2}")
        a.e("s_lshl_b32 s45, s41, 3")
        a.e("s_lshl_b32 s46, s44, 5")
        a.e("s_add_u32 s45, s45, s46")
        a.e(f"v_add_u32 v{t6}, s45, v{t6}")
        a.e(f"v_lshlrev_b32 v{t6}, 9, v{t6}")
        a.e(f"v_and_b32 v{t7}, 7, v{vT+2}")
        a.e(f"s_lshr_b32 s46, s{sW}, 1")
        a.e("s_lshl_b32 s46, s46, 2")
        a.e(f"v_xor_b32 v{t7}, s46, v{t7}")
        a.e(f"v_lshl_add_u32 v{t6}, v{t7}, 4, v{t6}")
        a.e("s_lshl_b32 s46, s42, 7")
        a.e(f"v_add_u32 v{t6}, s46, v{t6}")
        a.e(f"v_xor_b32 v{t7}, 32, v{t6}")
        a.e(f"s_lshl_b32 s46, s{sW}, 3")
        a.e("s_add_u32 s46, s46, s43")
        a.e("s_lshl_b32 s46, s46, 17")
        a.e(f"s_mul_i32 s47, s{sW}, {4*1152}")
        a.e("s_waitcnt lgkmcnt(0)")
        a.srd(48, "s38", "s39", 31 * 131072)
        for jj in range(4):
            a.e(f"s_add_u32 m0, s47, {GX + jj*1152}")
            a.e(f"s_add_u32 s37, s46, {jj*2*131072}")
            a.e(f"buffer_load_dwordx4 v{t6 if jj < 2 else t7}, s[48:51], s37 offen nt lds")

    def reads(step):
        st = step & 1
        sl = step % S
        w, siw = sl // SPW, sl % SPW
        ops = []
        seq = []
        seq.append(("G", 0, 0))
        seq += [("U", r, 0) for r in range(3)]
        seq += [("G", t, 0) for t in range(1, NT)]
        seq += [("U", r, 1) for r in range(3)]
        seq += [("G", t, 1) for t in range(NT)]
        for kind, x, ri in seq:
            if kind == "G":
                r_ = G(st, x, ri)
                ops.append(f"ds_read_b128 v[{r_}:{r_+3}], v{vB+w} offset:{siw*SLOT + (x*2+ri)*1024}")
            else:
                r_ = U(st, x, ri)
                va = (vAim if ri else vAre) + w
                ops.append(f"ds_read_b128 v[{r_}:{r_+3}], v{va} offset:{siw*SLOT + x*2048}")
        return ops

    def mfma(d, ga, ub, c):
        cs = "0" if c is None else f"{AK}[{c}:{c+3}]"
        return f"v_mfma_f32_16x16x32_bf16 {AK}[{d}:{d+3}], v[{ga}:{ga+3}], v[{ub}:{ub+3}], {cs}"

    def epilogue(p, tmp, nsets):
        ops = []
        k = 0
        for P in range(NT // 2):
            for r in range(3):
                R = tmp + (k % nsets) * 12
                I, D2 = R + 4, R + 8
                k += 1
                for dst, acc in ((R, accr), (I, acci)):
                    a0, a1 = acc(p, 2 * P, r), acc(p, 2 * P + 1, r)
                    if fused:
                        tr = tmp + nsets * 12
                        for x in range(4):
                            ops.append(f"v_accvgpr_read_b32 v{tr+x}, a{a0+x}")
                            ops.append(f"v_accvgpr_read_b32 v{tr+4+x}, a{a1+x}")
                        a0, a1 = tr, tr + 4
                    ops.append(f"v_cvt_pk_bf16_f32 v{dst}, v{a0}, v{a0+1}")
                    ops.append(f"v_cvt_pk_bf16_f32 v{dst+1}, v{a0+2}, v{a0+3}")
                    ops.append(f"v_cvt_pk_bf16_f32 v{dst+2}, v{a1}, v{a1+1}")
                    ops.append(f"v_cvt_pk_bf16_f32 v{dst+3}, v{a1+2}, v{a1+3}")
                for x in range(4):
                    ops.append(f"v_mov_b32 v{D2+x}, v{R+x}")
                ops.append(f"s_add_u32 s35, s33, {r*16*YROW + (P + p*CTP//2)*Y_CG}")
                for x in range(4):
                    ops.append(f"v_mov_b32_dpp v{D2+x}, v{I+x} row_ror:8 row_mask:0xf bank_mask:0x3")
                for x in range(4):
                    ops.append(f"v_mov_b32_dpp v{R+x}, v{I+x} row_ror:8 row_mask:0xf bank_mask:0xc")
                ops.append(f"buffer_store_dwordx4 v[{R}:{R+3}], v{vY1}, s[{sY}:{sY+3}], s35 offen")
                ops.append(f"buffer_store_dwordx4 v[{D2}:{D2+3}], v{vY2}, s[{sY}:{sY+3}], s35 offen")
        return ops

    st_.stamp()
    a.e("s_barrier")
    st_.stamp()
    for op in reads(0):
        a.e(op)
    a.e("s_waitcnt lgkmcnt(0)")
    a.e("s_barrier")
    NM = NT * 12
    st_.stamp()
    pending = []
    for s in range(NSTEP):
        if s in ((1, 4, 8, 12) if NP == 1 else (4, 12, 16, 24)): st_.stamp()
        st = s & 1
        p = s // KST
        first = s % KST == 0
        if first and p > 0:
            pending = epilogue(p - 1, EP, 2)
        mf = []
        for t in range(NT):
            for r in range(3):
                mf.append(mfma(accr(p, t, r), G(st, t, 0), U(st, r, 0), None if first else accr(p, t, r)))
        for t in range(NT):
            for r in range(3):
                mf.append(mfma(acci(p, t, r), G(st, t, 0), U(st, r, 1), None if first else acci(p, t, r)))
        for t in range(NT):
            for r in range(3):
                mf.append(mfma(acci(p, t, r), G(st, t, 1), U(st, r, 0), acci(p, t, r)))
        for t in range(NT):
            for r in range(3):
                mf.append(mfma(accr(p, t, r), G(st, t, 1), U(st, r, 1), accr(p, t, r)))
        fill = [[] for _ in range(NM)]
        rd = reads(s + 1) if s + 1 < NSTEP else []
        rstep = 2 if NT == 4 else 1
        for i, op in enumerate(rd):
            fill[i * rstep].append(op)
        xs = [f"v_xor_b32 v{U(st, r, 1)+k}, s34, v{U(st, r, 1)+k}" for r in range(3) for k in range(4)]
        g3 = 2 * NT * 3
        per = 2
        for i, op in enumerate(xs):
            fill[g3 + i // per].append(op)
        assert g3 + (len(xs) - 1) // per <= 3 * NT * 3 - 1
        if pending:
            slots = [i for i in range(NM) if not (g3 <= i < g3 + 6) and (i >= 8 or not first)]
            for i in slots:
                if pending: fill[i].append(pending.pop(0))
        barpos = NM - (8 if NT == 4 else 4)
        for i in range(NM):
            if "nomfma" not in exp:
                a.e(mf[i])
            for op in fill[i]:
                a.e(op)
            if i == barpos and s + 1 < NSTEP:
                if G2 and s == 3:
                    a.e("s_waitcnt vmcnt(0)")
                a.e("s_waitcnt lgkmcnt(0)")
                if s + 1 <= NSTEP - 2:
                    a.e("s_barrier")
    assert not pending
    st_.stamp()
    a.e("s_nop 7")
    a.e("s_nop 7")
    LDSEP = YBM and NP == 1 and "ldsep" in exp.split(",")
    if LDSEP:
        RB = NCT * 64
        OTP = RB + 16
        OTB = ((NSTEP - 1) % S + 1) * SLOT if ((NSTEP - 1) % S + 1) * SLOT + 96 * OTP <= S * SLOT else 0
        assert OTB + 96 * OTP <= S * SLOT and not (OTB <= ((NSTEP - 1) % S) * SLOT < OTB + 96 * OTP)
        vO = vT + 9
        a.e(f"s_lshr_b32 s29, s{sW}, 1")
        a.e(f"s_and_b32 s30, s{sW}, 1")
        a.e(f"s_mul_i32 s29, s29, {48*OTP}")
        a.e(f"s_mul_i32 s30, s30, {(NT//2)*128}")
        a.e("s_add_u32 s29, s29, s30")
        a.e(f"s_add_u32 s29, s29, {OTB}")
        a.e(f"v_mul_u32_u24 v{vO}, {OTP}, v{vT}")
        a.e(f"v_lshl_add_u32 v{vO}, v{vT+1}, 4, v{vO}")
        a.e(f"v_add_u32 v{vO}, s29, v{vO}")
        k = 0
        for ri in (1, 0):
            acc = acci if ri else accr
            for P in range(NT // 2):
                for r in range(3):
                    d = FR0 + (k % 6) * 4
                    k += 1
                    a0, a1 = acc(0, 2 * P, r), acc(0, 2 * P + 1, r)
                    if fused:
                        tr = FR0 + 24
                        for x in range(4):
                            a.e(f"v_accvgpr_read_b32 v{tr+x}, a{a0+x}")
                            a.e(f"v_accvgpr_read_b32 v{tr+4+x}, a{a1+x}")
                        a0, a1 = tr, tr + 4
                    a.e(f"v_cvt_pk_bf16_f32 v{d}, v{a0}, v{a0+1}")
                    a.e(f"v_cvt_pk_bf16_f32 v{d+1}, v{a0+2}, v{a0+3}")
                    a.e(f"v_cvt_pk_bf16_f32 v{d+2}, v{a1}, v{a1+1}")
                    a.e(f"v_cvt_pk_bf16_f32 v{d+3}, v{a1+2}, v{a1+3}")
                    a.e(f"ds_write_b128 v{vO}, v[{d}:{d+3}] offset:{r*16*OTP + P*128 + ri*64}")
        a.e("s_waitcnt lgkmcnt(0)")
        a.e("s_barrier")
        a.e(f"s_mov_b32 s37, s{sW}")
        a.e(f"s_branch L_{name}_drain")
    else:
        for op in epilogue(NP - 1, FR0, 3):
            a.e(op)
    if fused:
        a.e("s_waitcnt vmcnt(0)")
        a.e("s_barrier")
        a.e(f"s_cmp_lg_u32 s{sW}, 0")
        a.e(f"s_cbranch_scc1 L_{name}_noflag")
        a.add64(sA, 4, WS_TAB)
        a.e(f"s_mov_b32 s{sA+2}, {TAB_END}")
        a.e(f"s_mov_b32 s{sA+3}, 0x00020000")
        a.e("s_lshl_b32 s29, s26, 7")
        a.e(f"s_lshl_b32 s30, s{sBin}, 2")
        a.e("s_add_u32 s29, s29, s30")
        a.e("s_add_u32 s29, s29, s27")
        a.e("s_lshl_b32 s29, s29, 2")
        a.e(f"s_add_u32 s29, s29, {TAB_FLG}")
        a.e("v_mov_b32 v0, 1")
        a.e("v_mov_b32 v1, 0")
        a.e("s_mov_b64 exec, 1")
        a.e(f"buffer_store_dword v0, v1, s[{sA}:{sA+3}], s29 offen sc1")
        a.e("s_mov_b64 exec, -1")
        a.label(f"L_{name}_noflag")
    if st_.on:
        st_.stamp()
        a.e("s_waitcnt vmcnt(0)")
        st_.stamp()
        st_.dump(int(exp.split("wg=")[1].split(",")[0]) if "wg=" in exp else 0, sW, 0, f"L_{name}_nodump")
    a.end()

    a.label(f"L_{name}_loader")
    a.e(f"s_sub_u32 s{sW}, s{sW}, 4")
    vA_, vB_ = 2, 3
    a.e("v_and_b32 v1, 63, v0")
    a.e("v_lshrrev_b32 v4, 3, v1")
    a.e("v_and_b32 v5, 7, v1")
    a.e("v_xor_b32 v5, v5, v4")
    a.e("v_lshlrev_b32 v5, 4, v5")
    a.e(f"v_lshl_add_u32 v{vA_}, v4, 11, v5")
    a.e(f"v_lshlrev_b32 v{vB_}, 4, v1")
    for qi in range(3):
        a.e(f"s_add_u32 s24, s{sW}, {4*qi}")
        if G2 and qi == 2:
            a.e("s_min_u32 s24, s24, 10")
        a.e(f"s_lshl_b32 s{40+qi}, s24, 10")
        a.e(f"s_lshl_b32 s{43+qi}, s24, 14")
    a.e(f"s_mul_i32 s46, s{sW}, {BPW*1024}")
    a.e(f"s_add_u32 s47, s46, {ABYTES}")

    def issue(step):
        sl = step % S
        p, k = step // KST, step % KST
        for qi in range(3):
            a.e(f"s_add_u32 m0, s{40+qi}, {sl*SLOT}")
            a.e(f"s_add_u32 s24, s{43+qi}, {k*128}")
            a.e(f"buffer_load_dwordx4 v{vA_}, s[{sA}:{sA+3}], s24 offen lds")
            a.vm_issue(step)
        a.e(f"s_add_u32 m0, s47, {sl*SLOT}")
        a.e(f"s_add_u32 s24, s46, {k*32768 + p*CTP*2048}")
        for x in range(BPW):
            a.e(f"buffer_load_dwordx4 v{vB_}, s[{sB}:{sB+3}], s24 offen offset:{x*1024} lds")
            a.vm_issue(step)

    sWt, sG = 48, 52
    AF, BF, DD, PK = 36, 52, 84, 116

    def g2_setup():
        lane = 1
        a.e("s_lshr_b32 s58, s2, 4")
        a.e("s_bfe_u32 s59, s2, 0x20002")
        a.e("s_and_b32 s60, s2, 3")
        a.add64(sG, 4, WS_GH2)
        a.e(f"s_mov_b32 s{sG+2}, {32*GBIN}")
        a.e(f"s_mov_b32 s{sG+3}, 0x00020000")
        t = 8
        a.e(f"v_and_b32 v{t}, 15, v{lane}")
        a.e(f"v_or_b32 v{t+1}, 1, v{t}")
        a.e(f"s_lshl_b32 s66, s{sW}, 4")
        a.e(f"v_add_u32 v{t+1}, s66, v{t+1}")
        a.e(f"v_cvt_f32_u32 v{t+1}, v{t+1}")
        a.e(f"v_mul_f32 v{t+1}, 0x3c000000, v{t+1}")
        a.e(f"v_bfe_u32 v{t+2}, v{lane}, 4, 1")
        a.e(f"v_lshlrev_b32 v{t+2}, 3, v{t+2}")
        a.e(f"v_cvt_f32_u32 v{t+2}, v{t+2}")
        a.e(f"v_and_b32 v{t}, 1, v{t}")
        a.e(f"v_cvt_f32_u32 v{t}, v{t}")
        a.e(f"v_mul_f32 v{t}, 0x3f400000, v{t}")
        a.e(f"v_fma_f32 v{t+3}, v{t+1}, v{t+2}, v{t}")
        vals = t + 4
        cos_vals(a, vals, t + 3, t + 1, 8, None)
        for x in range(8):
            a.e(f"v_mul_f32 v{vals+x}, 0x3d000000, v{vals+x}")
        hi, lo = 20, 24
        for x in range(4):
            a.e(f"v_cvt_pk_bf16_f32 v{hi+x}, v{vals+2*x}, v{vals+2*x+1}")
        for x in range(4):
            a.e(f"v_lshlrev_b32 v28, 16, v{hi+x}")
            a.e(f"v_and_b32 v29, 0xffff0000, v{hi+x}")
            a.e(f"v_sub_f32 v28, v{vals+2*x}, v28")
            a.e(f"v_sub_f32 v29, v{vals+2*x+1}, v29")
            a.e(f"v_cvt_pk_bf16_f32 v{lo+x}, v28, v29")
        a.e(f"v_cmp_gt_u32 vcc, 32, v{lane}")
        a.e("s_nop 1")
        for x in range(4):
            a.e(f"v_cndmask_b32 v{hi+x}, v{lo+x}, v{hi+x}, vcc")
        TB = GX + 16 * 1152
        a.e(f"v_lshlrev_b32 v28, 4, v{lane}")
        a.e(f"v_add_u32 v28, {TB}, v28")
        a.e(f"s_lshl_b32 s66, s{sW}, 10")
        a.e(f"v_add_u32 v29, s66, v28")
        a.e(f"ds_write_b128 v29, v[{hi}:{hi+3}]")
        a.e(f"v_bfe_u32 v30, v{lane}, 2, 2")
        a.e(f"v_bfe_u32 v31, v{lane}, 4, 1")
        a.e("v_lshl_add_u32 v32, v31, 3, v30")
        a.e("v_mul_u32_u24 v32, 1152, v32")
        a.e("v_lshrrev_b32 v30, 1, v30")
        a.e("v_lshl_add_u32 v30, v31, 1, v30")
        a.e("v_lshlrev_b32 v30, 1, v30")
        a.e(f"v_bfe_u32 v31, v{lane}, 1, 1")
        a.e(f"s_lshl_b32 s66, s{sW}, 1")
        a.e("v_add_u32 v31, s66, v31")
        a.e("v_xor_b32 v30, v30, v31")
        a.e("v_lshl_add_u32 v32, v30, 4, v32")
        a.e(f"v_and_b32 v30, 1, v{lane}")
        a.e("v_lshl_add_u32 v32, v30, 3, v32")
        a.e(f"v_add_u32 v32, {GX}, v32")
        a.e(f"v_lshrrev_b32 v30, 4, v{lane}")
        a.e(f"s_mov_b32 s66, {2*GBIN}")
        a.e("v_mul_lo_u32 v30, v30, s66")
        a.e(f"v_and_b32 v31, 15, v{lane}")
        a.e("v_lshl_add_u32 v33, v31, 4, v30")
        a.e("s_lshl_b32 s67, s58, 15")
        a.e("s_lshl_b32 s66, s60, 2")
        a.e(f"s_add_u32 s66, s66, s{sW}")
        a.e("s_lshl_b32 s66, s66, 11")
        a.e("s_add_u32 s67, s67, s66")
        a.e("s_lshl_b32 s66, s59, 8")
        a.e("s_add_u32 s67, s67, s66")
        a.e("s_waitcnt lgkmcnt(0)")

    def g2_reads():
        for it in range(4):
            a.e(f"ds_read_b128 v[{AF+4*it}:{AF+4*it+3}], v28 offset:{it*1024}")
        for c in range(8):
            for xx in range(2):
                a.e(f"ds_read_b64_tr_b16 v[{BF+4*c+2*xx}:{BF+4*c+2*xx+1}], v32 offset:{c*128 + xx*4*1152}")
            if c == 4:
                a.e("s_waitcnt lgkmcnt(8)")

    def g2_mfma(it):
        if it == 0:
            a.e("s_waitcnt lgkmcnt(0)")
        for c in range(8):
            d = DD + 4 * c
            a.e(f"v_mfma_f32_16x16x32_bf16 v[{d}:{d+3}], v[{AF+4*it}:{AF+4*it+3}], v[{BF+4*c}:{BF+4*c+3}], 0")

    def g2_store(it):
        for e in range(4):
            pk = PK + 4 * (e & 1)
            for x in range(4):
                a.e(f"v_cvt_pk_bf16_f32 v{pk+x}, v{DD+8*x+e}, v{DD+8*x+4+e}")
            a.e(f"s_add_u32 s66, s67, {(8*it + (e >> 1))*GBIN + (e & 1)*1024}")
            a.e(f"buffer_store_dwordx4 v[{pk}:{pk+3}], v33, s[{sG}:{sG+3}], s66 offen")
            a.vm_issue(("GS", it))
            a.e("s_nop 1")

    g2_sched = {}
    if G2:
        g2_sched = {4: g2_reads}
        for it in range(4):
            g2_sched[5 + 2 * it] = (lambda i=it: g2_mfma(i))
            g2_sched[6 + 2 * it] = (lambda i=it: g2_store(i))

    a.vm = []
    issue(0)
    issue(1)
    if G2: g2_setup()
    a.wait(vm_tags=(0,))
    a.e("s_barrier")
    nxt = 2
    issue(nxt); nxt += 1
    for s in range(NSTEP - 1):
        a.wait(vm_tags=(s + 1,))
        a.e("s_barrier")
        cnt = 0
        while nxt <= min(s + S, NSTEP - 1) and cnt < 2:
            issue(nxt); nxt += 1; cnt += 1
        if s in g2_sched: g2_sched[s]()
        if fused and s == 9 and "nol2pf" not in exp:
            a.add64(48, 4, WS_TAB)
            a.e(f"s_mov_b32 s50, {TAB_END}")
            a.e("s_mov_b32 s51, 0x00020000")
            a.e("s_lshr_b32 s52, s2, 3")
            a.e("s_and_b32 s52, s52, 31")
            a.e("s_lshl_b32 s52, s52, 13")
            a.e(f"s_add_u32 s53, s52, {TAB_WF}")
            a.e("s_cmp_lt_u32 s52, 32768")
            a.e("s_cselect_b32 s52, s52, 0x7f000000")
            a.e(f"s_cmp_eq_u32 s{sW}, 0")
            a.e("s_cselect_b32 s52, s53, s52")
            a.e("v_lshlrev_b32 v6, 7, v1")
            a.e(f"s_cmp_ge_u32 s{sW}, 2")
            a.e(f"s_cbranch_scc1 L_{name}_nopf")
            a.e("buffer_load_dword v7, v6, s[48:51], s52 offen")
            a.label(f"L_{name}_nopf")
    assert nxt == NSTEP
    if LDSEP:
        a.e(f"s_mul_i32 s29, s{sM0}, {YROW}")
        a.e(f"s_add_u32 s29, s29, {WS_Y}")
        a.e(f"s_add_u32 s{sY}, s4, s29")
        a.e(f"s_addc_u32 s{sY+1}, s5, 0")
        a.e(f"s_mul_i32 s{sY+2}, s28, {YROW}")
        a.e(f"s_mov_b32 s{sY+3}, 0x00020000")
        a.e(f"s_add_u32 s37, s{sW}, 4")
        a.e("s_barrier")
        a.label(f"L_{name}_drain")
        LPR = RB // 16
        RPI = 64 // LPR
        NI = 96 // RPI // 8
        a.e("v_mbcnt_lo_u32_b32 v1, -1, 0")
        a.e("v_mbcnt_hi_u32_b32 v1, -1, v1")
        a.e(f"v_lshrrev_b32 v2, {LPR.bit_length()-1}, v1")
        a.e(f"v_and_b32 v3, {LPR-1}, v1")
        a.e(f"s_mul_i32 s29, s37, {NI*RPI}")
        a.e("v_add_u32 v2, s29, v2")
        a.e(f"v_mul_u32_u24 v4, {OTP}, v2")
        a.e("v_lshl_add_u32 v4, v3, 4, v4")
        a.e(f"v_add_u32 v4, {OTB}, v4")
        a.e(f"v_mul_u32_u24 v5, {YROW}, v2")
        a.e("v_lshl_add_u32 v5, v3, 4, v5")
        a.e(f"s_mul_i32 s29, s{sBin}, {Y_BIN}")
        a.e(f"s_mul_i32 s30, s27, {RB}")
        a.e("s_add_u32 s29, s29, s30")
        for i in range(NI):
            a.e(f"ds_read_b128 v[{8+4*i}:{8+4*i+3}], v4 offset:{i*RPI*OTP}")
        for i in range(NI):
            a.e(f"s_waitcnt lgkmcnt({NI-1-i})")
            a.e(f"s_add_u32 s30, s29, {i*RPI*YROW}")
            a.e(f"buffer_store_dwordx4 v[{8+4*i}:{8+4*i+3}], v5, s[{sY}:{sY+3}], s30 offen")
        if fused:
            raise NotImplementedError("fused + LDS epilogue: flag hand-off not wired")
        a.end()
    a.label(f"L_{name}_done")
    a.e("s_endpgm")
    if "consfirst" not in exp.split(","):
        i_load = a.L.index(f"L_{name}_loader:")
        cons, load = a.L[i_cons:i_load], a.L[i_load + 1:]
        head = a.L[:i_cons - 2] + [f"    s_cmp_lt_u32 s{sW}, 4", f"    s_cbranch_scc1 L_{name}_consumer"]
        a.L = head + load + [f"L_{name}_consumer:"] + cons
    return a.text(), LDS, NV
```

```python
from asmlib import Asm, Stamps, f2u
from layout import *
from mid import gelu_group2, gelu_group_pk, GK0, GK1

LOG2E2 = 2.8853900817779268
ATHR = 40.0
BTHR = 84.0


def joint_kernel(name, exp="", fused=False):
    a = Asm()
    NWG = 250 if "nojmap" in exp else 256
    sW = 20
    sR = 21
    STG = 0
    JB = [0, 16384, 32768]
    CSL = 49152
    FB = 65536
    EAP = 1056
    EAT = FB + 16384
    OTP = 528
    OT = [EAT + 32 * EAP, EAT + 32 * EAP + 32 * OTP]
    LDS = OT[1] + 32 * OTP
    sY, sT, sO = 8, 12, 16
    a.label(name)
    if not fused:
        a.e(f"s_cmp_ge_u32 s2, {NWG}")
        a.e(f"s_cbranch_scc1 L_{name}_done")
    if "trace" in exp and a.trace_region is None: a.trace_begin(4)
    st_ = Stamps(a, "stamp" in exp)
    HS = "hstamp" in exp
    st_.begin()

    def ms():
        if not HS: st_.stamp()

    def hs():
        if HS: st_.stamp()
    a.e("s_load_dwordx2 s[6:7], s[0:1], 72")
    a.e("s_load_dwordx2 s[4:5], s[0:1], 56")
    a.e(f"v_readfirstlane_b32 s{sW}, v0")
    a.e(f"s_lshr_b32 s{sW}, s{sW}, 6")
    a.e(f"s_and_b32 s{sR}, s{sW}, 3")
    if "nojmap" in exp:
        a.e("s_mov_b32 s23, s2")
    else:
        a.e("s_and_b32 s23, s2, 7")
        a.e("s_lshl_b32 s23, s23, 5")
        a.e("s_lshr_b32 s22, s2, 3")
        a.e("s_add_u32 s23, s23, s22")
        a.e("s_cmp_ge_u32 s23, 250")
        a.e(f"s_cbranch_scc1 L_{name}_done")
    a.e("s_cmp_ge_u32 s23, 125")
    a.e("s_cselect_b32 s24, 1, 0")
    a.e("s_mul_i32 s25, s24, 125")
    a.e("s_sub_u32 s25, s23, s25")
    for jt in range(2):
        a.e(f"s_lshl_b32 s26, s25, 1")
        a.e(f"s_add_u32 s26, s26, {jt}")
        a.e(f"s_mul_i32 s27, s26, 171")
        a.e(f"s_lshr_b32 s{28+jt}, s27, 9")
        a.e(f"s_mul_i32 s27, s{28+jt}, 3")
        a.e(f"s_sub_u32 s{30+jt}, s26, s27")
    lane = 1
    a.e(f"v_and_b32 v{lane}, 63, v0")
    a.e(f"v_lshlrev_b32 v5, 4, v{lane}")
    a.e("s_waitcnt lgkmcnt(0)")
    a.add64(sT, 6, WS_TAB)
    a.e(f"s_mov_b32 s{sT+2}, {TAB_END}")
    a.e(f"s_mov_b32 s{sT+3}, 0x00020000")
    a.e("s_mul_i32 s36, s24, 4000")
    a.e("s_lshl_b32 s37, s25, 5")
    a.e("s_add_u32 s36, s36, s37")
    a.e("s_lshl_b32 s36, s36, 12")
    a.e(f"s_add_u32 s{sO}, s4, s36")
    a.e(f"s_addc_u32 s{sO+1}, s5, 0")
    a.e(f"s_mov_b32 s{sO+2}, 131072")
    a.e(f"s_mov_b32 s{sO+3}, 0x00020000")
    a.e(f"s_lshl_b32 s38, s{sR}, 15")

    def w_load(i, tab):
        kp, it = i >> 1, i & 1
        r_ = (it * 16 + kp) * 4
        a.e(f"s_add_u32 s36, s38, {tab + (it*16+kp)*1024}")
        a.e(f"buffer_load_dwordx4 a[{r_}:{r_+3}], v5, s[{sT}:{sT+3}], s36 offen")
        a.vm_issue(("W", i))

    EBV = 96
    FI = 8
    if fused:
        for jt in range(2):
            a.e(f"s_lshl_b32 s36, s{30+jt}, 11")
            a.e(f"s_add_u32 s36, s36, {TAB_FI}")
            for kk in range(2):
                r_ = FI + (jt * 2 + kk) * 4
                a.e(f"buffer_load_dwordx4 v[{r_}:{r_+3}], v5, s[{sT}:{sT+3}], s36 offen offset:{kk*1024}")
        a.e(f"v_and_b32 v28, 7, v{lane}")
        a.e("v_lshlrev_b32 v28, 10, v28")
        a.e(f"v_lshrrev_b32 v29, 5, v{lane}")
        a.e("v_lshl_add_u32 v28, v29, 4, v28")
        a.e("s_lshl_b32 s36, s24, 13")
        a.e(f"s_lshl_b32 s37, s{sR}, 8")
        a.e("s_add_u32 s36, s36, s37")
        a.e(f"s_add_u32 s45, s36, {TAB_BP}")
        a.e(f"s_cmp_ge_u32 s{sW}, 4")
        a.e(f"s_cbranch_scc1 L_{name}_hpre")
        a.vm = []
        ms()
        for i in range(32):
            w_load(i, TAB_WO)
            if i in (7, 15, 23): ms()
        ms()
        a.e(f"s_cmp_lg_u32 s{sW}, 0")
        a.e(f"s_cbranch_scc1 L_{name}_phA")
        a.e(f"v_lshlrev_b32 v29, 3, v{lane}")
        a.e("s_lshl_b32 s36, s24, 9")
        a.e(f"s_add_u32 s36, s36, {TAB_FLG}")
        a.e("s_mov_b32 s47, 0")
        PD = [(24, 25), (26, 27), (30, 31), (6, 7)]
        for d in range(3):
            a.e(f"buffer_load_dwordx2 v[{PD[d][0]}:{PD[d][1]}], v29, s[{sT}:{sT+3}], s36 offen sc1")
            a.e("s_sleep 3")
        a.label(f"L_{name}_poll")
        for d in range(4):
            n = PD[(d + 3) % 4]
            a.e(f"buffer_load_dwordx2 v[{n[0]}:{n[1]}], v29, s[{sT}:{sT+3}], s36 offen sc1")
            a.e("s_waitcnt vmcnt(3)")
            a.e(f"v_cmp_ne_u32 vcc, 0, v{PD[d][0]}")
            a.e(f"v_cmp_ne_u32 s[42:43], 0, v{PD[d][1]}")
            a.e("s_nop 1")
            a.e("s_and_b64 s[42:43], s[42:43], vcc")
            a.e("s_cmp_eq_u64 s[42:43], -1")
            a.e(f"s_cbranch_scc1 L_{name}_phA")
            a.e("s_sleep 3")
        a.e("s_add_u32 s47, s47, 1")
        a.e("s_cmp_ge_u32 s47, 0x2000")
        a.e(f"s_cbranch_scc1 L_{name}_phA")
        a.e(f"s_branch L_{name}_poll")
        a.label(f"L_{name}_hpre")
        a.vm = []
        for it in range(2):
            for q in range(4):
                r_ = EBV + (it * 4 + q) * 4
                a.e(f"buffer_load_dwordx4 v[{r_}:{r_+3}], v28, s[{sT}:{sT+3}], s45 offen offset:{(32*it + 8*q)*4}")
                a.vm_issue("BP")
        for i in range(32):
            w_load(i, TAB_WF)
        a.wait(vm_tags=("BP",))
        a.e(f"v_max3_f32 v29, |v{EBV}|, |v{EBV+1}|, |v{EBV+2}|")
        for i in range(3, 31, 2):
            a.e(f"v_max3_f32 v29, v29, |v{EBV+i}|, |v{EBV+i+1}|")
        a.e(f"v_max_f32 v29, v29, |v{EBV+31}|")
        a.e(f"s_mov_b32 s41, 0x{f2u(BTHR):08x}")
        a.e("v_cmp_lt_f32 s[48:49], s41, v29")
        for i in range(32):
            a.e(f"v_exp_f32 v{EBV+i}, v{EBV+i}")
        hs()
        a.label(f"L_{name}_phA")
        a.e(f"v_lshrrev_b32 v2, 3, v{lane}")
        a.e(f"v_mul_u32_u24 v2, {Y_BIN}, v2")
        a.e(f"v_bfe_u32 v3, v{lane}, 2, 1")
        a.e("v_lshl_add_u32 v2, v3, 6, v2")
        a.e(f"v_lshrrev_b32 v3, 5, v{lane}")
        a.e("v_lshlrev_b32 v3, 1, v3")
        a.e(f"v_and_b32 v4, 3, v{lane}")
        a.e("v_xor_b32 v3, v3, v4")
        a.e("v_lshl_add_u32 v2, v3, 4, v2")
        a.e(f"s_lshl_b32 s34, s{sW}, 13")
        a.e(f"s_mul_i32 s35, s{sW}, {Y_CG}")
        a.e(f"s_mul_i32 s33, s24, {NB2*YROW}")
        a.e(f"s_add_u32 s33, s33, {WS_YH2}")
        a.e(f"s_add_u32 s{sY}, s6, s33")
        a.e(f"s_addc_u32 s{sY+1}, s7, 0")
        a.e(f"s_mov_b32 s{sY+2}, {NB2*YROW}")
        a.e(f"s_mov_b32 s{sY+3}, 0x00020000")
        rr, gg, cc = 32, 33, 34
        a.e(f"v_bfe_u32 v{rr}, v{lane}, 2, 2")
        a.e(f"v_lshrrev_b32 v{gg}, 4, v{lane}")
        a.e(f"v_and_b32 v{cc}, 3, v{lane}")
        vI = [[36, 37], [38, 39]]
        a.e(f"v_lshl_add_u32 v35, v{gg}, 3, v{rr}")
        a.e("v_lshlrev_b32 v40, 6, v35")
        a.e(f"v_and_b32 v41, 1, v{gg}")
        a.e("v_lshlrev_b32 v41, 1, v41")
        a.e(f"v_lshrrev_b32 v42, 1, v{cc}")
        a.e("v_xor_b32 v41, v41, v42")
        a.e("v_lshl_add_u32 v40, v41, 4, v40")
        a.e(f"v_and_b32 v42, 1, v{cc}")
        a.e("v_lshl_add_u32 v40, v42, 3, v40")
        a.e("s_cmp_eq_u32 s28, s29")
        a.e("s_cselect_b32 s46, 0, 4096")
        a.e(f"v_add_u32 v{vI[0][0]}, s34, v40")
        a.e(f"v_xor_b32 v{vI[0][1]}, 32, v{vI[0][0]}")
        a.e(f"v_add_u32 v{vI[1][0]}, s46, v{vI[0][0]}")
        a.e(f"v_add_u32 v{vI[1][1]}, s46, v{vI[0][1]}")
        vFW = 43
        a.e(f"v_lshrrev_b32 v41, 1, v{gg}")
        a.e("v_lshlrev_b32 v41, 10, v41")
        a.e(f"v_and_b32 v42, 1, v{gg}")
        a.e("v_lshl_add_u32 v41, v42, 9, v41")
        a.e(f"v_and_b32 v42, 15, v{lane}")
        a.e("v_lshl_add_u32 v41, v42, 4, v41")
        a.e(f"s_lshl_b32 s36, s{sW}, 11")
        a.e(f"s_add_u32 s36, s36, {FB}")
        a.e(f"v_add_u32 v{vFW}, s36, v41")
        vK0 = 44
        a.e(f"s_mov_b32 s40, 0x{f2u(GK1):08x}")
        a.e(f"v_mov_b32 v{vK0}, 0x{f2u(GK0):08x}")
        a.e("s_barrier")
        ms()
        for jt in (1, 0):
            if jt == 1:
                a.e("s_cmp_eq_u32 s28, s29")
                a.e(f"s_cbranch_scc1 L_{name}_same")
            a.e(f"s_mul_i32 s36, s{28+jt}, {YROW}")
            a.e("s_add_u32 s36, s36, s35")
            for q in range(4):
                a.e(f"s_add_u32 m0, s34, {STG + jt*4096 + q*1024}")
                a.e(f"s_add_u32 s37, s36, {q*8*Y_BIN}")
                a.e(f"buffer_load_dwordx4 v2, s[{sY}:{sY+3}], s37 offen lds")
            if jt == 1:
                a.label(f"L_{name}_same")
        a.e("s_waitcnt vmcnt(0)")
        ms()
        AA, DD, TT, PK = [48, 80], 64, 72, 24
        for jt in range(2):
            for t in range(2):
                for kk in range(2):
                    r_ = AA[jt] + (t * 2 + kk) * 4
                    for xx in range(2):
                        a.e(f"ds_read_b64_tr_b16 v[{r_+2*xx}:{r_+2*xx+1}], v{vI[jt][t]} offset:{kk*2048 + xx*256}")
            if jt == 0:
                a.e("s_waitcnt lgkmcnt(0)")
        for jt in range(2):
            if jt == 1:
                a.e("s_waitcnt lgkmcnt(0)")
            for kk in range(2):
                for t in range(2):
                    d = DD + t * 4
                    r_ = AA[jt] + (t * 2 + kk) * 4
                    f = FI + (jt * 2 + kk) * 4
                    c = "0" if kk == 0 else f"v[{d}:{d+3}]"
                    a.e(f"v_mfma_f32_16x16x32_bf16 v[{d}:{d+3}], v[{r_}:{r_+3}], v[{f}:{f+3}], {c}")
            a.e("s_nop 7")
            xs = [DD + i for i in range(8)]
            gelu_group2(a, xs, TT, vK0, 40)
            for i in range(4):
                a.e(f"v_cvt_pk_bf16_f32 v{PK+i}, v{xs[2*i]}, v{xs[2*i+1]}")
            a.e(f"ds_write_b128 v{vFW}, v[{PK}:{PK+3}] offset:{jt*256}")
            a.e("s_nop 1")
        ms()
        a.e(f"s_cmp_ge_u32 s{sW}, 4")
        a.e(f"s_cbranch_scc1 L_{name}_helper")
        a.vm = []
        a.lg = []
        nw = 32
    else:
        a.e(f"s_cmp_ge_u32 s{sW}, 4")
        a.e(f"s_cbranch_scc1 L_{name}_helper")
        i_mstart = len(a.L)

        if "nol2pf" not in exp:
            a.e("s_lshr_b32 s36, s2, 3")
            a.e("s_and_b32 s36, s36, 31")
            a.e("s_lshl_b32 s36, s36, 13")
            a.e(f"s_add_u32 s36, s36, {TAB_WF}")
            a.e(f"v_lshlrev_b32 v6, 7, v{lane}")
            a.e(f"s_cmp_lg_u32 s{sW}, 0")
            a.e(f"s_cbranch_scc1 L_{name}_nopf")
            a.e(f"buffer_load_dword v7, v6, s[{sT}:{sT+3}], s36 offen")
            a.label(f"L_{name}_nopf")
        a.e(f"v_lshrrev_b32 v2, 3, v{lane}")
        a.e(f"v_mul_u32_u24 v2, {Y_BIN}, v2")
        a.e(f"v_bfe_u32 v3, v{lane}, 2, 1")
        a.e("v_lshl_add_u32 v2, v3, 6, v2")
        a.e(f"v_lshrrev_b32 v3, 5, v{lane}")
        a.e("v_lshlrev_b32 v3, 1, v3")
        a.e(f"v_and_b32 v4, 3, v{lane}")
        a.e("v_xor_b32 v3, v3, v4")
        a.e("v_lshl_add_u32 v2, v3, 4, v2")
        a.e(f"s_lshl_b32 s34, s{sR}, 14")
        a.e(f"s_mul_i32 s35, s{sR}, {2*Y_CG}")
        a.e(f"s_mul_i32 s33, s24, {NB2*YROW}")
        a.e(f"s_add_u32 s33, s33, {WS_YH2}")
        a.e(f"s_add_u32 s{sY}, s6, s33")
        a.e(f"s_addc_u32 s{sY+1}, s7, 0")
        a.e(f"s_mov_b32 s{sY+2}, {NB2*YROW}")
        a.e(f"s_mov_b32 s{sY+3}, 0x00020000")

        def ydma(jt):
            a.e(f"s_mul_i32 s36, s{28+jt}, {YROW}")
            a.e("s_add_u32 s36, s36, s35")
            for ci in range(2):
                for q in range(4):
                    a.e(f"s_add_u32 m0, s34, {STG + (jt*2+ci)*4096 + q*1024}")
                    a.e(f"s_add_u32 s37, s36, {ci*Y_CG + q*8*Y_BIN}")
                    a.e(f"buffer_load_dwordx4 v2, s[{sY}:{sY+3}], s37 offen lds")
                    if jt == 0:
                        a.vm_issue(("Y", ci))
        a.e("s_mov_b32 s46, 0")
        a.e("s_cmp_eq_u32 s28, s29")
        a.e(f"s_cbranch_scc1 L_{name}_same")
        ydma(1)
        a.e("s_mov_b32 s46, 8192")
        a.label(f"L_{name}_same")
        FI = 8
        for jt in range(2):
            a.e(f"s_lshl_b32 s36, s{30+jt}, 11")
            a.e(f"s_add_u32 s36, s36, {TAB_FI}")
            for kk in range(2):
                r_ = FI + (jt * 2 + kk) * 4
                a.e(f"buffer_load_dwordx4 v[{r_}:{r_+3}], v5, s[{sT}:{sT+3}], s36 offen offset:{kk*1024}")
                a.vm_issue("FI")
        ydma(0)
        nw_early = int(exp.split("woearly=")[1].split(",")[0]) if "woearly=" in exp else 0
        for i in range(nw_early):
            w_load(i, TAB_WO)
        rr, gg, cc = 32, 33, 34
        a.e(f"v_bfe_u32 v{rr}, v{lane}, 2, 2")
        a.e(f"v_lshrrev_b32 v{gg}, 4, v{lane}")
        a.e(f"v_and_b32 v{cc}, 3, v{lane}")
        vI = [[36, 37], [38, 39]]
        a.e(f"v_lshl_add_u32 v35, v{gg}, 3, v{rr}")
        a.e("v_lshlrev_b32 v40, 6, v35")
        a.e(f"v_and_b32 v41, 1, v{gg}")
        a.e("v_lshlrev_b32 v41, 1, v41")
        a.e(f"v_lshrrev_b32 v42, 1, v{cc}")
        a.e("v_xor_b32 v41, v41, v42")
        a.e("v_lshl_add_u32 v40, v41, 4, v40")
        a.e(f"v_and_b32 v42, 1, v{cc}")
        a.e("v_lshl_add_u32 v40, v42, 3, v40")
        a.e(f"v_add_u32 v{vI[0][0]}, s34, v40")
        a.e(f"v_xor_b32 v{vI[0][1]}, 32, v{vI[0][0]}")
        a.e(f"v_add_u32 v{vI[1][0]}, s46, v{vI[0][0]}")
        a.e(f"v_add_u32 v{vI[1][1]}, s46, v{vI[0][1]}")
        vFW = 43
        a.e(f"v_lshrrev_b32 v41, 1, v{gg}")
        a.e("v_lshlrev_b32 v41, 10, v41")
        a.e(f"v_and_b32 v42, 1, v{gg}")
        a.e("v_lshl_add_u32 v41, v42, 9, v41")
        a.e(f"v_and_b32 v42, 15, v{lane}")
        a.e("v_lshl_add_u32 v41, v42, 4, v41")
        a.e(f"s_lshl_b32 s36, s{sR}, 12")
        a.e(f"s_add_u32 s36, s36, {FB}")
        a.e(f"v_add_u32 v{vFW}, s36, v41")
        vK0 = 44
        a.e(f"s_mov_b32 s40, 0x{f2u(GK1):08x}")
        a.e(f"v_mov_b32 v{vK0}, 0x{f2u(GK0):08x}")
        a.e(f"s_mov_b32 s41, 0x{f2u(GK1):08x}")
        a.e(f"v_mov_b32 v{vK0+1}, 0x{f2u(GK0):08x}")
        ms()
        AA, DD, TT, PK = [48, 84], [64, 100], 72, [80, 108]
        units = [(jt, ci) for ci in range(2) for jt in range(2)]

        def a_reads(ui):
            jt, ci = units[ui]
            for t in range(2):
                for kk in range(2):
                    r_ = AA[ui & 1] + (t * 2 + kk) * 4
                    for xx in range(2):
                        a.e(f"ds_read_b64_tr_b16 v[{r_+2*xx}:{r_+2*xx+1}], v{vI[jt][t]} offset:{ci*4096 + kk*2048 + xx*256}")
                        a.lg_issue(("AR", ui))
        a.lg = []
        a.wait(vm_tags=(("Y", 0),))
        ms()
        a_reads(0)
        nwi = nw_early
        PACE = int(exp.split("pace=")[1].split(",")[0]) if "pace=" in exp else 0

        def paced(lines_start):
            nonlocal nwi
            body = a.L[lines_start:]
            del a.L[lines_start:]
            cnt = 0
            for ln in body:
                a.L.append(ln)
                cnt += 1
                if PACE and cnt % PACE == 0 and nwi < 32:
                    w_load(nwi, TAB_WO); nwi += 1

        for ui, (jt, ci) in enumerate(units):
            if ui == 1:
                a.wait(vm_tags=(("Y", 1),))
            a.wait(lg_tags=(("AR", ui),))
            for kk in range(2):
                for t in range(2):
                    d = DD[ui & 1] + t * 4
                    r_ = AA[ui & 1] + (t * 2 + kk) * 4
                    f = FI + (jt * 2 + kk) * 4
                    c = "0" if kk == 0 else f"v[{d}:{d+3}]"
                    a.e(f"v_mfma_f32_16x16x32_bf16 v[{d}:{d+3}], v[{r_}:{r_+3}], v[{f}:{f+3}], {c}")
            if ui + 1 < 4:
                a_reads(ui + 1)
            else:
                a.e("s_nop 7")
            xs = [DD[ui & 1] + i for i in range(8)]
            mark = len(a.L)
            if "pk" not in exp.split(","): gelu_group2(a, xs, TT, vK0, 40)
            else: gelu_group_pk(a, xs, TT, vK0, 40)
            if ui >= 1: paced(mark)
            pk = PK[ui & 1]
            for i in range(4):
                a.e(f"v_cvt_pk_bf16_f32 v{pk+i}, v{xs[2*i]}, v{xs[2*i+1]}")
            a.e(f"ds_write_b128 v{vFW}, v[{pk}:{pk+3}] offset:{ci*2048 + jt*256}")
            a.lg_issue(("FW", ui))
        ms()
        nw = nwi
    a.e("s_waitcnt lgkmcnt(0)")
    a.e("s_barrier")
    a.lg = []
    if "earlyprio" in exp:
        a.e("s_setprio 3")
    ms()
    NWO0 = 32 if (fused or "wofull" in exp) else (int(exp.split("nwo0=")[1].split(",")[0]) if "nwo0=" in exp else 32)
    ACC = [8, 40]
    CS = 72
    JR = 104
    NJR, PRE = 4, 3
    OP = 120
    vJR, vOW = 5, 6
    a.e(f"v_and_b32 v46, 31, v{lane}")
    a.e(f"v_mul_u32_u24 v47, {OTP}, v46")
    a.e(f"v_lshrrev_b32 v45, 5, v{lane}")
    a.e(f"v_lshl_add_u32 v47, v45, 4, v47")
    a.e(f"s_lshl_b32 s36, s{sR}, 7")
    a.e(f"s_add_u32 s36, s36, {OT[0]}")
    a.e(f"v_add_u32 v{vOW}, s36, v47")
    a.e(f"v_lshlrev_b32 v7, 6, v45")
    a.e(f"s_lshl_b32 s36, s{sR}, 8")
    a.e(f"s_add_u32 s36, s36, {TAB_CS}")
    for it in range(2):
        for x in range(4):
            a.e(f"buffer_load_dwordx4 v[{CS+16*it+4*x}:{CS+16*it+4*x+3}], v7, s[{sT}:{sT+3}], s36 offen offset:{it*128 + x*16}")
            a.vm_issue("CS")
    while nw < NWO0:
        w_load(nw, TAB_WO); nw += 1
    if "noprio" not in exp:
        a.e("s_setprio 1")
    ms()
    a.e("s_barrier")
    ms()
    a.lg = []

    def emit(op):
        s, tag = op
        if s == "WLOAD":
            w_load(tag, TAB_WO)
            return
        if s is not None:
            if "j_nostore" in exp and s.startswith("buffer_store"): return
        if tag and tag[0] == "wait_lg":
            a.wait(lg_tags=tag[1])
            return
        a.e(s)
        if tag:
            if tag[0] == "lg": a.lg_issue(tag[1])
            else: a.vm_issue(tag[1])

    def jread(i, k):
        r_ = JR + ((16 * i + k) % NJR) * 4
        a.e(f"ds_read_b128 v[{r_}:{r_+3}], v{vJR} offset:{JB[i % 3] + k*1024}")
        a.lg_issue(("JR", i, k))

    def out_wr(i):
        ops = []
        acc = ACC[i & 1]
        dlt = OT[i & 1] - OT[0]
        for it in range(2):
            for qp in range(2):
                r_ = OP + qp * 4
                for k in range(4):
                    s0 = acc + it * 16 + qp * 8 + 2 * k
                    ops.append((f"v_cvt_pk_bf16_f32 v{r_+k}, v{s0}, v{s0+1}", None))
                ops.append((f"ds_write_b128 v{vOW}, v[{r_}:{r_+3}] offset:{dlt + it*64 + qp*32}", ("lg", ("OW", i))))
        return ops

    for k in range(PRE): jread(0, k)
    for u in range(8):
        acc = ACC[u & 1]
        per = [[] for _ in range(32)]
        if u > 0:
            ow = out_wr(u - 1)
            for i, op in enumerate(ow):
                per[4 + (i * 20) // len(ow)].append(op)
        if u == 0:
            for i, wi in enumerate(range(nw, 32)):
                per[i].append(("WLOAD", wi))
        for k in range(16):
            a.wait(lg_tags=(("JR", u, k),))
            if u == 0:
                a.wait(vm_tags=(("W", 2 * k + 1), "CS"))
            r_ = JR + ((16 * u + k) % NJR) * 4
            for it in range(2):
                d = acc + it * 16
                w_ = (it * 16 + k) * 4
                c = f"v[{CS+16*it}:{CS+16*it+15}]" if k == 0 else f"v[{d}:{d+15}]"
                a.e(f"v_mfma_f32_32x32x16_bf16 v[{d}:{d+15}], a[{w_}:{w_+3}], v[{r_}:{r_+3}], {c}")
                if it == 0:
                    if k + PRE < 16:
                        jread(u, k + PRE)
                    elif u + 1 < 8:
                        jread(u + 1, k + PRE - 16)
                for op in per[2 * k + it]: emit(op)
            if k == 15:
                a.wait(lg_tags=(("OW", u - 1),))
                a.e("s_barrier")
        if u == 0: ms()
    ms()
    a.e("s_nop 7")
    a.e("s_nop 7")
    for op in out_wr(7): emit(op)
    a.wait(lg_tags=(("OW", 7),))
    a.e("s_barrier")
    if st_.on and not HS:
        ms()
        st_.dump(int(exp.split("wg=")[1].split(",")[0]) if "wg=" in exp else 0, sW, 0, f"L_{name}_nodump")
    a.end()

    def b_check_ops():
        ops = [f"v_max3_f32 v8, |v{EBV}|, |v{EBV+1}|, |v{EBV+2}|"]
        for i in range(3, 31, 2):
            ops.append(f"v_max3_f32 v8, v8, |v{EBV+i}|, |v{EBV+i+1}|")
        ops.append(f"v_max_f32 v8, v8, |v{EBV+31}|")
        ops.append(f"s_mov_b32 s41, 0x{f2u(BTHR):08x}")
        ops.append("v_cmp_lt_f32 s[42:43], s41, v8")
        for i in range(32):
            ops.append(f"v_exp_f32 v{EBV+i}, v{EBV+i}")
        return ops

    a.label(f"L_{name}_helper")
    late_check = []
    if fused:
        a.vm = []
        a.lg = []
        nw = 32
        vBP, sBP = 28, 45
        a.e("s_mov_b64 s[42:43], s[48:49]")
        a.e("s_waitcnt lgkmcnt(0)")
    else:
        vBP, sBP = 14, 37
        a.vm = []
        a.lg = []
        nw = 0
        EBV = 96
        a.e(f"v_and_b32 v14, 7, v{lane}")
        a.e("v_lshlrev_b32 v14, 10, v14")
        a.e(f"v_lshrrev_b32 v15, 5, v{lane}")
        a.e("v_lshl_add_u32 v14, v15, 4, v14")
        a.e("s_lshl_b32 s36, s24, 13")
        a.e(f"s_lshl_b32 s37, s{sR}, 8")
        a.e("s_add_u32 s36, s36, s37")
        a.e(f"s_add_u32 s37, s36, {TAB_BP}")
        BPLAST = "bpfirst" not in exp

        def bp_loads():
            for it in range(2):
                for q in range(4):
                    r_ = EBV + (it * 4 + q) * 4
                    a.e(f"buffer_load_dwordx4 v[{r_}:{r_+3}], v14, s[{sT}:{sT+3}], s37 offen offset:{(32*it + 8*q)*4}")
                    a.vm_issue("BP")
        if not BPLAST: bp_loads()
        NWF0 = int(exp.split("nwf0=")[1].split(",")[0]) if "nwf0=" in exp else 32
        if "finestamp" in exp: hs()
        while nw < NWF0:
            w_load(nw, TAB_WF); nw += 1
            if "finestamp" in exp and nw % 8 == 0: hs()
        if BPLAST:
            bp_loads()
            late_check = b_check_ops()
        else:
            a.wait(vm_tags=("BP",))
            for op in b_check_ops(): a.e(op)
    i_hba = len(a.L)
    hs()
    a.e("s_barrier")
    hs()
    ACF, BFR = 32, 64
    a.e(f"v_add_u32 v7, {FB}, v5")
    for k8 in range(8):
        a.e(f"ds_read_b128 v[{BFR+4*k8}:{BFR+4*k8+3}], v7 offset:{k8*1024}")
        a.lg_issue(("FR", k8))
    for kp in range(16):
        k8 = kp & 7
        for _ in range(2):
            if nw < 32:
                w_load(nw, TAB_WF); nw += 1
        assert nw > 2 * kp + 1
        a.wait(vm_tags=[("W", 2 * kp + 1)], lg_tags=[("FR", kp)])
        for it in range(2):
            d = ACF + it * 16
            w_ = (it * 16 + kp) * 4
            c = "0" if kp == 0 else f"v[{d}:{d+15}]"
            a.e(f"v_mfma_f32_32x32x16_bf16 v[{d}:{d+15}], a[{w_}:{w_+3}], v[{BFR+4*k8}:{BFR+4*k8+3}], {c}")
        if kp >= 1 and kp + 7 < 16:
            kn = kp + 7
            a.e(f"ds_read_b128 v[{BFR+4*(kn & 7)}:{BFR+4*(kn & 7)+3}], v7 offset:{kn*1024}")
            a.lg_issue(("FR", kn))
        if late_check and kp >= 9:
            if kp == 9: a.wait(vm_tags=("BP",))
            for _ in range(8):
                if late_check: a.e(late_check.pop(0))
    for op in late_check: a.e(op)
    hs()
    vJW, vEA, vOR, vOS, vEW = 2, 4, 6, 7, 9
    a.e(f"s_lshl_b32 s36, s{sR}, 12")
    a.e(f"v_add_u32 v{vJW}, s36, v5")
    a.e(f"v_lshrrev_b32 v10, 5, v{lane}")
    a.e(f"v_lshlrev_b32 v11, 4, v10")
    a.e(f"s_lshl_b32 s36, s{sR}, 8")
    a.e(f"s_add_u32 s36, s36, {EAT}")
    a.e(f"v_add_u32 v11, s36, v11")
    a.e(f"v_and_b32 v12, 31, v{lane}")
    a.e(f"v_mul_u32_u24 v13, {EAP}, v12")
    a.e(f"v_add_u32 v{vEW}, v11, v13")
    a.e(f"v_lshrrev_b32 v13, 3, v12")
    a.e(f"v_mul_u32_u24 v13, {EAP}, v13")
    a.e(f"v_add_u32 v{vEA}, v11, v13")
    a.e(f"s_lshl_b32 s36, s{sR}, 3")
    a.e(f"v_add_u32 v10, s36, v10")
    a.e(f"v_mul_u32_u24 v13, {OTP}, v10")
    a.e(f"v_lshl_add_u32 v13, v12, 4, v13")
    a.e(f"v_add_u32 v{vOR}, {OT[0]}, v13")
    a.e(f"v_lshlrev_b32 v13, 9, v10")
    a.e(f"v_lshl_add_u32 v{vOS}, v12, 4, v13")
    AP = 64
    a.e(f"s_mov_b32 s41, 0x{f2u(LOG2E2):08x}")
    for i in range(32):
        a.e(f"v_mul_f32 v{AP+i}, s41, v{ACF+i}")
    a.e(f"v_max3_f32 v8, |v{AP}|, |v{AP+1}|, |v{AP+2}|")
    for i in range(3, 31, 2):
        a.e(f"v_max3_f32 v8, v8, |v{AP+i}|, |v{AP+i+1}|")
    a.e(f"v_max_f32 v8, v8, |v{AP+31}|")
    a.e(f"s_mov_b32 s41, 0x{f2u(ATHR):08x}")
    a.e("v_cmp_lt_f32 vcc, s41, v8")
    a.e("s_nop 3")
    a.e("s_or_b64 s[42:43], s[42:43], vcc")
    a.e("s_cmp_lg_u64 s[42:43], 0")
    a.e("s_cselect_b32 s44, 1, 0")
    if "forceslow" in exp:
        a.e("s_mov_b32 s44, 1")
    a.e("s_cmp_lg_u32 s44, 0")
    a.e(f"s_cbranch_scc1 L_{name}_slow")
    vm2 = list(a.vm)

    def helper(slow):
        a.vm = list(vm2)
        a.lg = []
        EAV = 32
        TT = 64
        JP = 80
        if not slow:
            for i in range(32):
                a.e(f"v_exp_f32 v{ACF+i}, v{AP+i}")
            src = ACF
        else:
            for it in range(2):
                for q in range(4):
                    r_ = EBV + (it * 4 + q) * 4
                    a.e(f"buffer_load_dwordx4 v[{r_}:{r_+3}], v{vBP}, s[{sT}:{sT+3}], s{sBP} offen offset:{(32*it + 8*q)*4}")
            a.e("s_waitcnt vmcnt(0)")
            a.vm = []
            src = AP
        for it in range(2):
            for q in range(4):
                r_ = src + (it * 4 + q) * 4
                a.e(f"ds_write_b128 v{vEW}, v[{r_}:{r_+3}] offset:{(32*it + 8*q)*4}")
        a.e("s_waitcnt lgkmcnt(0)")

        def ea_read(i, grp):
            it, qp = grp >> 1, grp & 1
            for s_ in range(2):
                q = 2 * qp + s_
                r_ = EAV + (it * 4 + q) * 4
                a.e(f"ds_read_b128 v[{r_}:{r_+3}], v{vEA} offset:{i*4*EAP + (32*it + 8*q)*4}")
                a.lg_issue(("EA", i, grp))

        def tanh(i, mid=None):
            for grp in range(4):
                t0 = TT + (grp & 1) * 8
                jp = JP + (grp & 1) * 4
                a.wait(lg_tags=(("EA", i, grp),))
                for x in range(8):
                    if slow: a.e(f"v_add_f32 v{t0+x}, v{EAV+grp*8+x}, v{EBV+grp*8+x}")
                    else: a.e(f"v_fma_f32 v{t0+x}, v{EAV+grp*8+x}, v{EBV+grp*8+x}, 1.0")
                if i + 1 < 8: ea_read(i + 1, grp)
                if slow:
                    for x in range(8): a.e(f"v_exp_f32 v{t0+x}, v{t0+x}")
                    for x in range(8): a.e(f"v_add_f32 v{t0+x}, 1.0, v{t0+x}")
                for x in range(8): a.e(f"v_rcp_f32 v{t0+x}, v{t0+x}")
                if mid and grp in mid: mid[grp]()
                else: a.e("s_nop 0")
                for k in range(4):
                    a.e(f"v_cvt_pk_bf16_f32 v{jp+k}, v{t0+2*k}, v{t0+2*k+1}")
                a.e(f"ds_write_b128 v{vJW}, v[{jp}:{jp+3}] offset:{JB[i % 3] + grp*1024}")
                a.lg_issue(("JW", i))

        def out_rd(i, ks=(0, 1, 2, 3)):
            dlt = OT[i & 1] - OT[0]
            for k in ks:
                a.e(f"ds_read_b128 a[{4*k}:{4*k+3}], v{vOR} offset:{dlt + 2*k*OTP}")
                a.lg_issue(("OR", i, k))

        def out_st(i, ks=(0, 1, 2, 3)):
            for k in ks:
                a.wait(lg_tags=(("OR", i, k),))
                if "j_nostore" in exp: continue
                a.e(f"s_mov_b32 s36, {i*16384 + k*1024}")
                a.e(f"buffer_store_dwordx4 a[{4*k}:{4*k+3}], v{vOS}, s[{sO}:{sO+3}], s36 offen")
                a.vm_issue(("O", i))

        if not slow: hs()
        for grp in range(4): ea_read(0, grp)
        tanh(0)
        tanh(1)
        a.wait(lg_tags=(("JW", 1),))
        if not slow: hs()
        a.e("s_barrier")
        if not slow: hs()
        mark = len(a.L)
        for u in range(8):
            if "j_hidle" in exp:
                a.e("s_barrier")
                continue
            if u >= 2:
                out_rd(u - 2)
            if u + 2 < 8:
                mid = {}
                if u >= 2:
                    mid = {0: (lambda uu=u: out_st(uu - 2, (0, 1))), 1: (lambda uu=u: out_st(uu - 2, (2, 3)))}
                tanh(u + 2, mid)
                a.wait(lg_tags=(("JW", u + 2),))
            elif u >= 2:
                out_st(u - 2)
            if not slow and u in (2, 3): hs()
            a.e("s_barrier")
            if not slow and u in (2, 3): hs()
        if "j_hnovalu" in exp:
            a.L[mark:] = [l for l in a.L[mark:] if not l.strip().startswith("v_")]
        if "j_hnolds" in exp:
            a.L[mark:] = [l for l in a.L[mark:] if not l.strip().startswith("ds_")]
        if "j_hnotrans" in exp:
            a.L[mark:] = [l for l in a.L[mark:] if not l.strip().startswith("v_rcp")]
        out_rd(6)
        out_st(6)
        a.e("s_barrier")
        out_rd(7)
        out_st(7)
        if st_.on and HS and not slow:
            st_.stamp()
            a.e("s_waitcnt vmcnt(0)")
            st_.stamp()
            st_.dump(0, sW, 4, f"L_{name}_nodump")
        a.end()

    helper(False)
    a.label(f"L_{name}_slow")
    helper(True)
    a.label(f"L_{name}_done")
    a.e("s_endpgm")
    if not fused and "hfar" not in exp.split(","):
        i_h = a.L.index(f"L_{name}_helper:")
        hpre = a.L[i_h + 1:i_hba]
        head = a.L[:i_mstart - 2] + [f"    s_cmp_lt_u32 s{sW}, 4", f"    s_cbranch_scc1 L_{name}_mpath"]
        a.L = head + hpre + [f"    s_branch L_{name}_helper", f"L_{name}_mpath:"] + a.L[i_mstart:i_h + 1] + a.L[i_hba:]
    return a.text(), LDS, 256, NWG
```

```python
from asmlib import Asm, Stamps
from layout import *
from prep import cos_vals


def gemm_kernel(name, conv, exp="", fused=False):
    a = Asm()
    if conv == 1:
        M, XBIN, WS_X, WS_G, WS_Y = M1, XBIN1, WS_XH1, WS_GH1, WS_YH1
        NT, S, NP = (2, 7, 2) if "twopass" in exp else (4, 5, 1)
    else:
        M, XBIN, WS_X, WS_G, WS_Y = M2, XBIN2, WS_XH2, WS_GH2, WS_YH2
        NT, S, NP = 2, 7, 1
    KST = 16
    NSTEP = KST * NP
    ROWS = 84
    G2 = conv == 1 and "g2ingemm" in exp
    ABYTES = 11264 if G2 else 12288
    CTP = 2 * NT
    BP = CTP * 2
    SLOT = ABYTES + BP * 1024
    SPW = 65536 // SLOT
    NWIN = (S + SPW - 1) // SPW
    LDS = S * SLOT
    GX = LDS
    if G2:
        LDS += 16 * 1152 + 4096
    BPW = BP // 4
    NWG = 256
    NCT = CTP * NP

    ASZ = NT * 24
    FR0 = 4 if fused else NP * ASZ
    AK = "a" if fused else "v"
    FSZ = NT * 8 + 24
    vAre = FR0 + 2 * FSZ
    vAim = vAre + NWIN
    vB = vAim + NWIN
    vT = vB + NWIN
    EP = (vT + 12 + 1) // 2 * 2
    NV = EP + (24 if NP > 1 else 0)
    assert NV <= (128 if fused else 256)

    def G(st, t, ri):
        return FR0 + st * FSZ + (t * 2 + ri) * 4

    def U(st, r, ri):
        return FR0 + st * FSZ + NT * 8 + (r * 2 + ri) * 4

    def accr(p, t, r):
        return p * ASZ + (t * 3 + r) * 4

    def acci(p, t, r):
        return p * ASZ + NT * 12 + (t * 3 + r) * 4

    sA, sB, sY = 8, 12, 16
    sW = 20
    sBin = 21
    sM0 = 22
    a.label(name)
    if not fused:
        a.e(f"s_cmp_ge_u32 s2, {NWG}")
        a.e(f"s_cbranch_scc1 L_{name}_done")
    if "trace" in exp and a.trace_region is None: a.trace_begin(conv*2-1)
    st_ = Stamps(a, "stamp" in exp)
    st_.begin()
    a.e("s_load_dwordx2 s[4:5], s[0:1], 72")
    a.e(f"s_load_dwordx2 s[6:7], s[0:1], {X_PTR}")
    a.e(f"v_readfirstlane_b32 s{sW}, v0")
    a.e(f"s_lshr_b32 s{sW}, s{sW}, 6")
    a.e("s_and_b32 s24, s2, 7")
    a.e("s_lshr_b32 s25, s2, 3")
    a.e("s_lshr_b32 s26, s25, 3")
    a.e("s_lshl_b32 s24, s24, 2")
    a.e(f"s_add_u32 s{sBin}, s24, s26")
    a.e("s_and_b32 s25, s25, 7")
    if conv == 1:
        a.e("s_lshr_b32 s26, s25, 1")
        a.e("s_and_b32 s27, s25, 1")
    else:
        a.e("s_lshr_b32 s26, s25, 2")
        a.e("s_and_b32 s27, s25, 3")
    a.e(f"s_mul_i32 s{sM0}, s26, {ROWS}")
    a.e(f"s_sub_u32 s28, {M}, s{sM0}")
    a.e(f"s_min_u32 s28, s28, {ROWS}")
    a.e("s_waitcnt lgkmcnt(0)")
    a.e(f"s_mul_i32 s29, s{sBin}, {XBIN}")
    a.e(f"s_lshl_b32 s30, s{sM0}, 11")
    a.e("s_add_u32 s29, s29, s30")
    a.e(f"s_add_u32 s29, s29, {WS_X}")
    a.e(f"s_add_u32 s{sA}, s6, s29")
    a.e(f"s_addc_u32 s{sA+1}, s7, 0")
    a.e(f"s_lshl_b32 s{sA+2}, s28, 11")
    a.e(f"s_mov_b32 s{sA+3}, 0x00020000")
    a.e(f"s_mul_i32 s29, s{sBin}, {GBIN}")
    a.e(f"s_mul_i32 s30, s27, {NCT*2048}")
    a.e("s_add_u32 s29, s29, s30")
    a.e(f"s_add_u32 s29, s29, {WS_G}")
    a.e(f"s_add_u32 s{sB}, s4, s29")
    a.e(f"s_addc_u32 s{sB+1}, s5, 0")
    a.e(f"s_mov_b32 s{sB+2}, {15*32768 + NCT*2048}")
    a.e(f"s_mov_b32 s{sB+3}, 0x00020000")
    a.e(f"s_cmp_ge_u32 s{sW}, 4")
    a.e(f"s_cbranch_scc1 L_{name}_loader")
    i_cons = len(a.L)

    a.e(f"s_mul_i32 s29, s{sM0}, {YROW}")
    a.e(f"s_add_u32 s29, s29, {WS_Y}")
    a.e(f"s_add_u32 s{sY}, s4, s29")
    a.e(f"s_addc_u32 s{sY+1}, s5, 0")
    a.e(f"s_mul_i32 s{sY+2}, s28, {YROW}")
    a.e(f"s_mov_b32 s{sY+3}, 0x00020000")
    a.e(f"s_lshr_b32 s29, s{sW}, 1")
    a.e(f"s_and_b32 s30, s{sW}, 1")
    a.e(f"v_and_b32 v{vT}, 15, v0")
    a.e(f"v_bfe_u32 v{vT+1}, v0, 4, 2")
    a.e(f"v_and_b32 v{vT+2}, 63, v0")
    a.e(f"s_mul_i32 s31, s29, {48*128}")
    a.e(f"v_and_b32 v{vT+3}, 7, v{vT}")
    a.e(f"v_xor_b32 v{vT+3}, v{vT+1}, v{vT+3}")
    a.e(f"v_lshlrev_b32 v{vT+3}, 4, v{vT+3}")
    a.e(f"v_lshl_add_u32 v{vT+3}, v{vT}, 7, v{vT+3}")
    a.e(f"v_add_u32 v{vT+3}, s31, v{vT+3}")
    for w in range(NWIN):
        a.e(f"v_add_u32 v{vAre+w}, {w*SPW*SLOT}, v{vT+3}")
        a.e(f"v_xor_b32 v{vAim+w}, 64, v{vAre+w}")
    a.e(f"s_mul_i32 s31, s30, {NT*2048}")
    a.e(f"s_add_u32 s31, s31, {ABYTES}")
    a.e(f"v_lshlrev_b32 v{vT+3}, 4, v{vT+2}")
    a.e(f"v_add_u32 v{vT+3}, s31, v{vT+3}")
    for w in range(NWIN):
        a.e(f"v_add_u32 v{vB+w}, {w*SPW*SLOT}, v{vT+3}")
    vY1, vY2 = vT + 5, vT + 6
    a.e(f"v_and_b32 v{vT+7}, 7, v{vT}")
    a.e(f"v_lshrrev_b32 v{vT+8}, 3, v{vT}")
    a.e(f"v_mul_u32_u24 v{vY1}, {YROW}, v{vT+7}")
    a.e(f"v_lshl_add_u32 v{vY1}, v{vT+1}, 4, v{vY1}")
    a.e(f"s_mul_i32 s31, s29, {48*YROW}")
    a.e(f"v_add_u32 v{vY1}, s31, v{vY1}")
    a.e(f"v_lshl_add_u32 v{vY1}, v{vT+8}, 6, v{vY1}")
    a.e(f"v_xor_b32 v{vT+8}, 64, v{vY1}")
    a.e(f"v_add_u32 v{vY2}, {8*YROW}, v{vT+8}")
    a.e(f"s_mul_i32 s31, s27, {NCT//2}")
    a.e(f"s_mul_i32 s29, s30, {NT//2}")
    a.e("s_add_u32 s31, s31, s29")
    a.e(f"s_mul_i32 s31, s31, {Y_CG}")
    a.e(f"s_mul_i32 s29, s{sBin}, {Y_BIN}")
    a.e("s_add_u32 s33, s31, s29")
    a.e("s_mov_b32 s34, 0x80008000")

    if G2:
        t6, t7 = FR0, FR0 + 1
        a.e("s_load_dwordx2 s[38:39], s[0:1], 16")
        a.e("s_lshr_b32 s40, s2, 4")
        a.e("s_bfe_u32 s41, s2, 0x20002")
        a.e("s_and_b32 s42, s2, 3")
        a.e("s_lshr_b32 s43, s40, 3")
        a.e("s_and_b32 s44, s40, 7")
        a.e(f"v_lshrrev_b32 v{t6}, 3, v{vT+2}")
        a.e("s_lshl_b32 s45, s41, 3")
        a.e("s_lshl_b32 s46, s44, 5")
        a.e("s_add_u32 s45, s45, s46")
        a.e(f"v_add_u32 v{t6}, s45, v{t6}")
        a.e(f"v_lshlrev_b32 v{t6}, 9, v{t6}")
        a.e(f"v_and_b32 v{t7}, 7, v{vT+2}")
        a.e(f"s_lshr_b32 s46, s{sW}, 1")
        a.e("s_lshl_b32 s46, s46, 2")
        a.e(f"v_xor_b32 v{t7}, s46, v{t7}")
        a.e(f"v_lshl_add_u32 v{t6}, v{t7}, 4, v{t6}")
        a.e("s_lshl_b32 s46, s42, 7")
        a.e(f"v_add_u32 v{t6}, s46, v{t6}")
        a.e(f"v_xor_b32 v{t7}, 32, v{t6}")
        a.e(f"s_lshl_b32 s46, s{sW}, 3")
        a.e("s_add_u32 s46, s46, s43")
        a.e("s_lshl_b32 s46, s46, 17")
        a.e(f"s_mul_i32 s47, s{sW}, {4*1152}")
        a.e("s_waitcnt lgkmcnt(0)")
        a.srd(48, "s38", "s39", 31 * 131072)
        for jj in range(4):
            a.e(f"s_add_u32 m0, s47, {GX + jj*1152}")
            a.e(f"s_add_u32 s37, s46, {jj*2*131072}")
            a.e(f"buffer_load_dwordx4 v{t6 if jj < 2 else t7}, s[48:51], s37 offen nt lds")

    def reads(step):
        st = step & 1
        sl = step % S
        w, siw = sl // SPW, sl % SPW
        ops = []
        seq = []
        seq.append(("G", 0, 0))
        seq += [("U", r, 0) for r in range(3)]
        seq += [("G", t, 0) for t in range(1, NT)]
        seq += [("U", r, 1) for r in range(3)]
        seq += [("G", t, 1) for t in range(NT)]
        for kind, x, ri in seq:
            if kind == "G":
                r_ = G(st, x, ri)
                ops.append(f"ds_read_b128 v[{r_}:{r_+3}], v{vB+w} offset:{siw*SLOT + (x*2+ri)*1024}")
            else:
                r_ = U(st, x, ri)
                va = (vAim if ri else vAre) + w
                ops.append(f"ds_read_b128 v[{r_}:{r_+3}], v{va} offset:{siw*SLOT + x*2048}")
        return ops

    def mfma(d, ga, ub, c):
        cs = "0" if c is None else f"{AK}[{c}:{c+3}]"
        return f"v_mfma_f32_16x16x32_bf16 {AK}[{d}:{d+3}], v[{ga}:{ga+3}], v[{ub}:{ub+3}], {cs}"

    def epilogue(p, tmp, nsets):
        ops = []
        k = 0
        for P in range(NT // 2):
            for r in range(3):
                R = tmp + (k % nsets) * 12
                I, D2 = R + 4, R + 8
                k += 1
                for dst, acc in ((R, accr), (I, acci)):
                    a0, a1 = acc(p, 2 * P, r), acc(p, 2 * P + 1, r)
                    if fused:
                        tr = tmp + nsets * 12
                        for x in range(4):
                            ops.append(f"v_accvgpr_read_b32 v{tr+x}, a{a0+x}")
                            ops.append(f"v_accvgpr_read_b32 v{tr+4+x}, a{a1+x}")
                        a0, a1 = tr, tr + 4
                    ops.append(f"v_cvt_pk_bf16_f32 v{dst}, v{a0}, v{a0+1}")
                    ops.append(f"v_cvt_pk_bf16_f32 v{dst+1}, v{a0+2}, v{a0+3}")
                    ops.append(f"v_cvt_pk_bf16_f32 v{dst+2}, v{a1}, v{a1+1}")
                    ops.append(f"v_cvt_pk_bf16_f32 v{dst+3}, v{a1+2}, v{a1+3}")
                for x in range(4):
                    ops.append(f"v_mov_b32 v{D2+x}, v{R+x}")
                ops.append(f"s_add_u32 s35, s33, {r*16*YROW + (P + p*CTP//2)*Y_CG}")
                for x in range(4):
                    ops.append(f"v_mov_b32_dpp v{D2+x}, v{I+x} row_ror:8 row_mask:0xf bank_mask:0x3")
                for x in range(4):
                    ops.append(f"v_mov_b32_dpp v{R+x}, v{I+x} row_ror:8 row_mask:0xf bank_mask:0xc")
                ops.append(f"buffer_store_dwordx4 v[{R}:{R+3}], v{vY1}, s[{sY}:{sY+3}], s35 offen")
                ops.append(f"buffer_store_dwordx4 v[{D2}:{D2+3}], v{vY2}, s[{sY}:{sY+3}], s35 offen")
        return ops

    st_.stamp()
    a.e("s_barrier")
    st_.stamp()
    for op in reads(0):
        a.e(op)
    a.e("s_waitcnt lgkmcnt(0)")
    a.e("s_barrier")
    NM = NT * 12
    st_.stamp()
    pending = []
    for s in range(NSTEP):
        if s in ((1, 4, 8, 12) if NP == 1 else (4, 12, 16, 24)): st_.stamp()
        st = s & 1
        p = s // KST
        first = s % KST == 0
        if first and p > 0:
            pending = epilogue(p - 1, EP, 2)
        mf = []
        for t in range(NT):
            for r in range(3):
                mf.append(mfma(accr(p, t, r), G(st, t, 0), U(st, r, 0), None if first else accr(p, t, r)))
        for t in range(NT):
            for r in range(3):
                mf.append(mfma(acci(p, t, r), G(st, t, 0), U(st, r, 1), None if first else acci(p, t, r)))
        for t in range(NT):
            for r in range(3):
                mf.append(mfma(acci(p, t, r), G(st, t, 1), U(st, r, 0), acci(p, t, r)))
        for t in range(NT):
            for r in range(3):
                mf.append(mfma(accr(p, t, r), G(st, t, 1), U(st, r, 1), accr(p, t, r)))
        fill = [[] for _ in range(NM)]
        rd = reads(s + 1) if s + 1 < NSTEP else []
        rstep = 2 if NT == 4 else 1
        for i, op in enumerate(rd):
            fill[i * rstep].append(op)
        xs = [f"v_xor_b32 v{U(st, r, 1)+k}, s34, v{U(st, r, 1)+k}" for r in range(3) for k in range(4)]
        g3 = 2 * NT * 3
        per = 2
        for i, op in enumerate(xs):
            fill[g3 + i // per].append(op)
        assert g3 + (len(xs) - 1) // per <= 3 * NT * 3 - 1
        if pending:
            slots = [i for i in range(NM) if not (g3 <= i < g3 + 6) and (i >= 8 or not first)]
            for i in slots:
                if pending: fill[i].append(pending.pop(0))
        barpos = NM - (8 if NT == 4 else 4)
        for i in range(NM):
            if "nomfma" not in exp:
                a.e(mf[i])
            for op in fill[i]:
                a.e(op)
            if i == barpos and s + 1 < NSTEP:
                if G2 and s == 3:
                    a.e("s_waitcnt vmcnt(0)")
                a.e("s_waitcnt lgkmcnt(0)")
                if s + 1 <= NSTEP - 2:
                    a.e("s_barrier")
    assert not pending
    st_.stamp()
    a.e("s_nop 7")
    a.e("s_nop 7")
    LDSEP = YBM and NP == 1 and "ldsep" in exp.split(",")
    if LDSEP:
        RB = NCT * 64
        OTP = RB + 16
        OTB = ((NSTEP - 1) % S + 1) * SLOT if ((NSTEP - 1) % S + 1) * SLOT + 96 * OTP <= S * SLOT else 0
        assert OTB + 96 * OTP <= S * SLOT and not (OTB <= ((NSTEP - 1) % S) * SLOT < OTB + 96 * OTP)
        vO = vT + 9
        a.e(f"s_lshr_b32 s29, s{sW}, 1")
        a.e(f"s_and_b32 s30, s{sW}, 1")
        a.e(f"s_mul_i32 s29, s29, {48*OTP}")
        a.e(f"s_mul_i32 s30, s30, {(NT//2)*128}")
        a.e("s_add_u32 s29, s29, s30")
        a.e(f"s_add_u32 s29, s29, {OTB}")
        a.e(f"v_mul_u32_u24 v{vO}, {OTP}, v{vT}")
        a.e(f"v_lshl_add_u32 v{vO}, v{vT+1}, 4, v{vO}")
        a.e(f"v_add_u32 v{vO}, s29, v{vO}")
        k = 0
        for ri in (1, 0):
            acc = acci if ri else accr
            for P in range(NT // 2):
                for r in range(3):
                    d = FR0 + (k % 6) * 4
                    k += 1
                    a0, a1 = acc(0, 2 * P, r), acc(0, 2 * P + 1, r)
                    if fused:
                        tr = FR0 + 24
                        for x in range(4):
                            a.e(f"v_accvgpr_read_b32 v{tr+x}, a{a0+x}")
                            a.e(f"v_accvgpr_read_b32 v{tr+4+x}, a{a1+x}")
                        a0, a1 = tr, tr + 4
                    a.e(f"v_cvt_pk_bf16_f32 v{d}, v{a0}, v{a0+1}")
                    a.e(f"v_cvt_pk_bf16_f32 v{d+1}, v{a0+2}, v{a0+3}")
                    a.e(f"v_cvt_pk_bf16_f32 v{d+2}, v{a1}, v{a1+1}")
                    a.e(f"v_cvt_pk_bf16_f32 v{d+3}, v{a1+2}, v{a1+3}")
                    a.e(f"ds_write_b128 v{vO}, v[{d}:{d+3}] offset:{r*16*OTP + P*128 + ri*64}")
        a.e("s_waitcnt lgkmcnt(0)")
        a.e("s_barrier")
        a.e(f"s_mov_b32 s37, s{sW}")
        a.e(f"s_branch L_{name}_drain")
    else:
        for op in epilogue(NP - 1, FR0, 3):
            a.e(op)
    if fused:
        a.e("s_waitcnt vmcnt(0)")
        a.e("s_barrier")
        a.e(f"s_cmp_lg_u32 s{sW}, 0")
        a.e(f"s_cbranch_scc1 L_{name}_noflag")
        a.add64(sA, 4, WS_TAB)
        a.e(f"s_mov_b32 s{sA+2}, {TAB_END}")
        a.e(f"s_mov_b32 s{sA+3}, 0x00020000")
        a.e("s_lshl_b32 s29, s26, 7")
        a.e(f"s_lshl_b32 s30, s{sBin}, 2")
        a.e("s_add_u32 s29, s29, s30")
        a.e("s_add_u32 s29, s29, s27")
        a.e("s_lshl_b32 s29, s29, 2")
        a.e(f"s_add_u32 s29, s29, {TAB_FLG}")
        a.e("v_mov_b32 v0, 1")
        a.e("v_mov_b32 v1, 0")
        a.e("s_mov_b64 exec, 1")
        a.e(f"buffer_store_dword v0, v1, s[{sA}:{sA+3}], s29 offen sc1")
        a.e("s_mov_b64 exec, -1")
        a.label(f"L_{name}_noflag")
    if st_.on:
        st_.stamp()
        a.e("s_waitcnt vmcnt(0)")
        st_.stamp()
        st_.dump(int(exp.split("wg=")[1].split(",")[0]) if "wg=" in exp else 0, sW, 0, f"L_{name}_nodump")
    a.end()

    a.label(f"L_{name}_loader")
    a.e(f"s_sub_u32 s{sW}, s{sW}, 4")
    vA_, vB_ = 2, 3
    a.e("v_and_b32 v1, 63, v0")
    a.e("v_lshrrev_b32 v4, 3, v1")
    a.e("v_and_b32 v5, 7, v1")
    a.e("v_xor_b32 v5, v5, v4")
    a.e("v_lshlrev_b32 v5, 4, v5")
    a.e(f"v_lshl_add_u32 v{vA_}, v4, 11, v5")
    a.e(f"v_lshlrev_b32 v{vB_}, 4, v1")
    for qi in range(3):
        a.e(f"s_add_u32 s24, s{sW}, {4*qi}")
        if G2 and qi == 2:
            a.e("s_min_u32 s24, s24, 10")
        a.e(f"s_lshl_b32 s{40+qi}, s24, 10")
        a.e(f"s_lshl_b32 s{43+qi}, s24, 14")
    a.e(f"s_mul_i32 s46, s{sW}, {BPW*1024}")
    a.e(f"s_add_u32 s47, s46, {ABYTES}")

    def issue(step):
        sl = step % S
        p, k = step // KST, step % KST
        for qi in range(3):
            a.e(f"s_add_u32 m0, s{40+qi}, {sl*SLOT}")
            a.e(f"s_add_u32 s24, s{43+qi}, {k*128}")
            a.e(f"buffer_load_dwordx4 v{vA_}, s[{sA}:{sA+3}], s24 offen lds")
            a.vm_issue(step)
        a.e(f"s_add_u32 m0, s47, {sl*SLOT}")
        a.e(f"s_add_u32 s24, s46, {k*32768 + p*CTP*2048}")
        for x in range(BPW):
            a.e(f"buffer_load_dwordx4 v{vB_}, s[{sB}:{sB+3}], s24 offen offset:{x*1024} lds")
            a.vm_issue(step)

    sWt, sG = 48, 52
    AF, BF, DD, PK = 36, 52, 84, 116

    def g2_setup():
        lane = 1
        a.e("s_lshr_b32 s58, s2, 4")
        a.e("s_bfe_u32 s59, s2, 0x20002")
        a.e("s_and_b32 s60, s2, 3")
        a.add64(sG, 4, WS_GH2)
        a.e(f"s_mov_b32 s{sG+2}, {32*GBIN}")
        a.e(f"s_mov_b32 s{sG+3}, 0x00020000")
        t = 8
        a.e(f"v_and_b32 v{t}, 15, v{lane}")
        a.e(f"v_or_b32 v{t+1}, 1, v{t}")
        a.e(f"s_lshl_b32 s66, s{sW}, 4")
        a.e(f"v_add_u32 v{t+1}, s66, v{t+1}")
        a.e(f"v_cvt_f32_u32 v{t+1}, v{t+1}")
        a.e(f"v_mul_f32 v{t+1}, 0x3c000000, v{t+1}")
        a.e(f"v_bfe_u32 v{t+2}, v{lane}, 4, 1")
        a.e(f"v_lshlrev_b32 v{t+2}, 3, v{t+2}")
        a.e(f"v_cvt_f32_u32 v{t+2}, v{t+2}")
        a.e(f"v_and_b32 v{t}, 1, v{t}")
        a.e(f"v_cvt_f32_u32 v{t}, v{t}")
        a.e(f"v_mul_f32 v{t}, 0x3f400000, v{t}")
        a.e(f"v_fma_f32 v{t+3}, v{t+1}, v{t+2}, v{t}")
        vals = t + 4
        cos_vals(a, vals, t + 3, t + 1, 8, None)
        for x in range(8):
            a.e(f"v_mul_f32 v{vals+x}, 0x3d000000, v{vals+x}")
        hi, lo = 20, 24
        for x in range(4):
            a.e(f"v_cvt_pk_bf16_f32 v{hi+x}, v{vals+2*x}, v{vals+2*x+1}")
        for x in range(4):
            a.e(f"v_lshlrev_b32 v28, 16, v{hi+x}")
            a.e(f"v_and_b32 v29, 0xffff0000, v{hi+x}")
            a.e(f"v_sub_f32 v28, v{vals+2*x}, v28")
            a.e(f"v_sub_f32 v29, v{vals+2*x+1}, v29")
            a.e(f"v_cvt_pk_bf16_f32 v{lo+x}, v28, v29")
        a.e(f"v_cmp_gt_u32 vcc, 32, v{lane}")
        a.e("s_nop 1")
        for x in range(4):
            a.e(f"v_cndmask_b32 v{hi+x}, v{lo+x}, v{hi+x}, vcc")
        TB = GX + 16 * 1152
        a.e(f"v_lshlrev_b32 v28, 4, v{lane}")
        a.e(f"v_add_u32 v28, {TB}, v28")
        a.e(f"s_lshl_b32 s66, s{sW}, 10")
        a.e(f"v_add_u32 v29, s66, v28")
        a.e(f"ds_write_b128 v29, v[{hi}:{hi+3}]")
        a.e(f"v_bfe_u32 v30, v{lane}, 2, 2")
        a.e(f"v_bfe_u32 v31, v{lane}, 4, 1")
        a.e("v_lshl_add_u32 v32, v31, 3, v30")
        a.e("v_mul_u32_u24 v32, 1152, v32")
        a.e("v_lshrrev_b32 v30, 1, v30")
        a.e("v_lshl_add_u32 v30, v31, 1, v30")
        a.e("v_lshlrev_b32 v30, 1, v30")
        a.e(f"v_bfe_u32 v31, v{lane}, 1, 1")
        a.e(f"s_lshl_b32 s66, s{sW}, 1")
        a.e("v_add_u32 v31, s66, v31")
        a.e("v_xor_b32 v30, v30, v31")
        a.e("v_lshl_add_u32 v32, v30, 4, v32")
        a.e(f"v_and_b32 v30, 1, v{lane}")
        a.e("v_lshl_add_u32 v32, v30, 3, v32")
        a.e(f"v_add_u32 v32, {GX}, v32")
        a.e(f"v_lshrrev_b32 v30, 4, v{lane}")
        a.e(f"s_mov_b32 s66, {2*GBIN}")
        a.e("v_mul_lo_u32 v30, v30, s66")
        a.e(f"v_and_b32 v31, 15, v{lane}")
        a.e("v_lshl_add_u32 v33, v31, 4, v30")
        a.e("s_lshl_b32 s67, s58, 15")
        a.e("s_lshl_b32 s66, s60, 2")
        a.e(f"s_add_u32 s66, s66, s{sW}")
        a.e("s_lshl_b32 s66, s66, 11")
        a.e("s_add_u32 s67, s67, s66")
        a.e("s_lshl_b32 s66, s59, 8")
        a.e("s_add_u32 s67, s67, s66")
        a.e("s_waitcnt lgkmcnt(0)")

    def g2_reads():
        for it in range(4):
            a.e(f"ds_read_b128 v[{AF+4*it}:{AF+4*it+3}], v28 offset:{it*1024}")
        for c in range(8):
            for xx in range(2):
                a.e(f"ds_read_b64_tr_b16 v[{BF+4*c+2*xx}:{BF+4*c+2*xx+1}], v32 offset:{c*128 + xx*4*1152}")
            if c == 4:
                a.e("s_waitcnt lgkmcnt(8)")

    def g2_mfma(it):
        if it == 0:
            a.e("s_waitcnt lgkmcnt(0)")
        for c in range(8):
            d = DD + 4 * c
            a.e(f"v_mfma_f32_16x16x32_bf16 v[{d}:{d+3}], v[{AF+4*it}:{AF+4*it+3}], v[{BF+4*c}:{BF+4*c+3}], 0")

    def g2_store(it):
        for e in range(4):
            pk = PK + 4 * (e & 1)
            for x in range(4):
                a.e(f"v_cvt_pk_bf16_f32 v{pk+x}, v{DD+8*x+e}, v{DD+8*x+4+e}")
            a.e(f"s_add_u32 s66, s67, {(8*it + (e >> 1))*GBIN + (e & 1)*1024}")
            a.e(f"buffer_store_dwordx4 v[{pk}:{pk+3}], v33, s[{sG}:{sG+3}], s66 offen")
            a.vm_issue(("GS", it))
            a.e("s_nop 1")

    g2_sched = {}
    if G2:
        g2_sched = {4: g2_reads}
        for it in range(4):
            g2_sched[5 + 2 * it] = (lambda i=it: g2_mfma(i))
            g2_sched[6 + 2 * it] = (lambda i=it: g2_store(i))

    a.vm = []
    NINIT = int(exp.split("ninit=")[1].split(",")[0]) if "ninit=" in exp else 2
    if "ninit2=" in exp and conv == 2: NINIT = int(exp.split("ninit2=")[1].split(",")[0])
    NINIT = min(NINIT, S - 1)
    for s in range(NINIT):
        issue(s)
    if G2: g2_setup()
    a.wait(vm_tags=(0,))
    a.e("s_barrier")
    nxt = NINIT
    issue(nxt); nxt += 1
    for s in range(NSTEP - 1):
        a.wait(vm_tags=(s + 1,))
        a.e("s_barrier")
        cnt = 0
        while nxt <= min(s + S, NSTEP - 1) and cnt < 2:
            issue(nxt); nxt += 1; cnt += 1
        if s in g2_sched: g2_sched[s]()
        if conv == 1 and not G2 and s == 11 and "w2pf" in exp.split(","):
            a.e("s_load_dwordx2 s[56:57], s[0:1], 16")
            a.e("s_lshr_b32 s58, s2, 4")
            a.e("s_bfe_u32 s59, s2, 0x20002")
            a.e("s_and_b32 s60, s2, 3")
            a.e("s_lshr_b32 s61, s58, 3")
            a.e("s_and_b32 s62, s58, 7")
            a.e("v_lshrrev_b32 v6, 3, v1")
            a.e("s_lshl_b32 s63, s59, 3")
            a.e("s_lshl_b32 s64, s62, 5")
            a.e("s_add_u32 s63, s63, s64")
            a.e("v_add_u32 v6, s63, v6")
            a.e("v_lshlrev_b32 v6, 9, v6")
            a.e("v_and_b32 v7, 7, v1")
            a.e("v_lshl_add_u32 v6, v7, 4, v6")
            a.e("s_lshl_b32 s64, s60, 7")
            a.e("v_add_u32 v6, s64, v6")
            a.e(f"s_lshl_b32 s64, s{sW}, 3")
            a.e("s_add_u32 s64, s64, s61")
            a.e("s_lshl_b32 s64, s64, 17")
            a.e("s_waitcnt lgkmcnt(0)")
            a.srd(48, "s56", "s57", 31 * 131072)
            for jj in range(4):
                a.e(f"s_add_u32 s66, s64, {jj*2*131072}")
                a.e(f"buffer_load_dwordx4 v[{8+4*jj}:{8+4*jj+3}], v6, s[48:51], s66 offen")
                a.vm_issue("W2PF")
        if fused and s == 9 and "nol2pf" not in exp:
            a.add64(48, 4, WS_TAB)
            a.e(f"s_mov_b32 s50, {TAB_END}")
            a.e("s_mov_b32 s51, 0x00020000")
            a.e("s_lshr_b32 s52, s2, 3")
            a.e("s_and_b32 s52, s52, 31")
            a.e("s_lshl_b32 s52, s52, 13")
            a.e(f"s_add_u32 s53, s52, {TAB_WF}")
            a.e("s_cmp_lt_u32 s52, 32768")
            a.e("s_cselect_b32 s52, s52, 0x7f000000")
            a.e(f"s_cmp_eq_u32 s{sW}, 0")
            a.e("s_cselect_b32 s52, s53, s52")
            a.e("v_lshlrev_b32 v6, 7, v1")
            a.e(f"s_cmp_ge_u32 s{sW}, 2")
            a.e(f"s_cbranch_scc1 L_{name}_nopf")
            a.e("buffer_load_dword v7, v6, s[48:51], s52 offen")
            a.label(f"L_{name}_nopf")
    assert nxt == NSTEP
    if LDSEP:
        a.e(f"s_mul_i32 s29, s{sM0}, {YROW}")
        a.e(f"s_add_u32 s29, s29, {WS_Y}")
        a.e(f"s_add_u32 s{sY}, s4, s29")
        a.e(f"s_addc_u32 s{sY+1}, s5, 0")
        a.e(f"s_mul_i32 s{sY+2}, s28, {YROW}")
        a.e(f"s_mov_b32 s{sY+3}, 0x00020000")
        a.e(f"s_add_u32 s37, s{sW}, 4")
        a.e("s_barrier")
        a.label(f"L_{name}_drain")
        LPR = RB // 16
        RPI = 64 // LPR
        NI = 96 // RPI // 8
        a.e("v_mbcnt_lo_u32_b32 v1, -1, 0")
        a.e("v_mbcnt_hi_u32_b32 v1, -1, v1")
        a.e(f"v_lshrrev_b32 v2, {LPR.bit_length()-1}, v1")
        a.e(f"v_and_b32 v3, {LPR-1}, v1")
        a.e(f"s_mul_i32 s29, s37, {NI*RPI}")
        a.e("v_add_u32 v2, s29, v2")
        a.e(f"v_mul_u32_u24 v4, {OTP}, v2")
        a.e("v_lshl_add_u32 v4, v3, 4, v4")
        a.e(f"v_add_u32 v4, {OTB}, v4")
        a.e(f"v_mul_u32_u24 v5, {YROW}, v2")
        a.e("v_lshl_add_u32 v5, v3, 4, v5")
        a.e(f"s_mul_i32 s29, s{sBin}, {Y_BIN}")
        a.e(f"s_mul_i32 s30, s27, {RB}")
        a.e("s_add_u32 s29, s29, s30")
        for i in range(NI):
            a.e(f"ds_read_b128 v[{8+4*i}:{8+4*i+3}], v4 offset:{i*RPI*OTP}")
        for i in range(NI):
            a.e(f"s_waitcnt lgkmcnt({NI-1-i})")
            a.e(f"s_add_u32 s30, s29, {i*RPI*YROW}")
            a.e(f"buffer_store_dwordx4 v[{8+4*i}:{8+4*i+3}], v5, s[{sY}:{sY+3}], s30 offen")
        if fused:
            raise NotImplementedError("fused + LDS epilogue: flag hand-off not wired")
        a.end()
    a.label(f"L_{name}_done")
    a.e("s_endpgm")
    if "consfirst" not in exp.split(","):
        i_load = a.L.index(f"L_{name}_loader:")
        cons, load = a.L[i_cons:i_load], a.L[i_load + 1:]
        head = a.L[:i_cons - 2] + [f"    s_cmp_lt_u32 s{sW}, 4", f"    s_cbranch_scc1 L_{name}_consumer"]
        a.L = head + load + [f"L_{name}_consumer:"] + cons
    return a.text(), LDS, NV
```

```python
from asmlib import Asm, Stamps, f2u
from layout import *
from mid import gelu_group2, gelu_group_pk, GK0, GK1

LOG2E2 = 2.8853900817779268
ATHR = 40.0
BTHR = 84.0


def joint_kernel(name, exp="", fused=False):
    a = Asm()
    NWG = 250 if "nojmap" in exp else 256
    sW = 20
    sR = 21
    STG = 0
    JB = [0, 16384, 32768]
    CSL = 49152
    FB = 65536
    EAP = 1056
    EAT = FB + 16384
    OTP = 528
    OT = [EAT + 32 * EAP, EAT + 32 * EAP + 32 * OTP]
    LDS = OT[1] + 32 * OTP
    sY, sT, sO = 8, 12, 16
    a.label(name)
    if not fused:
        a.e(f"s_cmp_ge_u32 s2, {NWG}")
        a.e(f"s_cbranch_scc1 L_{name}_done")
    if "trace" in exp and a.trace_region is None: a.trace_begin(4)
    st_ = Stamps(a, "stamp" in exp)
    HS = "hstamp" in exp
    st_.begin()

    def ms():
        if not HS: st_.stamp()

    def hs():
        if HS: st_.stamp()
    a.e("s_load_dwordx2 s[6:7], s[0:1], 72")
    a.e("s_load_dwordx2 s[4:5], s[0:1], 56")
    a.e(f"v_readfirstlane_b32 s{sW}, v0")
    a.e(f"s_lshr_b32 s{sW}, s{sW}, 6")
    a.e(f"s_and_b32 s{sR}, s{sW}, 3")
    if "nojmap" in exp:
        a.e("s_mov_b32 s23, s2")
    else:
        a.e("s_and_b32 s23, s2, 7")
        a.e("s_lshl_b32 s23, s23, 5")
        a.e("s_lshr_b32 s22, s2, 3")
        a.e("s_add_u32 s23, s23, s22")
        a.e("s_cmp_ge_u32 s23, 250")
        a.e(f"s_cbranch_scc1 L_{name}_done")
    a.e("s_cmp_ge_u32 s23, 125")
    a.e("s_cselect_b32 s24, 1, 0")
    a.e("s_mul_i32 s25, s24, 125")
    a.e("s_sub_u32 s25, s23, s25")
    for jt in range(2):
        a.e(f"s_lshl_b32 s26, s25, 1")
        a.e(f"s_add_u32 s26, s26, {jt}")
        a.e(f"s_mul_i32 s27, s26, 171")
        a.e(f"s_lshr_b32 s{28+jt}, s27, 9")
        a.e(f"s_mul_i32 s27, s{28+jt}, 3")
        a.e(f"s_sub_u32 s{30+jt}, s26, s27")
    lane = 1
    a.e(f"v_and_b32 v{lane}, 63, v0")
    a.e(f"v_lshlrev_b32 v5, 4, v{lane}")
    a.e("s_waitcnt lgkmcnt(0)")
    a.add64(sT, 6, WS_TAB)
    a.e(f"s_mov_b32 s{sT+2}, {TAB_END}")
    a.e(f"s_mov_b32 s{sT+3}, 0x00020000")
    a.e("s_mul_i32 s36, s24, 4000")
    a.e("s_lshl_b32 s37, s25, 5")
    a.e("s_add_u32 s36, s36, s37")
    a.e("s_lshl_b32 s36, s36, 12")
    a.e(f"s_add_u32 s{sO}, s4, s36")
    a.e(f"s_addc_u32 s{sO+1}, s5, 0")
    a.e(f"s_mov_b32 s{sO+2}, 131072")
    a.e(f"s_mov_b32 s{sO+3}, 0x00020000")
    a.e(f"s_lshl_b32 s38, s{sR}, 15")

    def w_load(i, tab):
        kp, it = i >> 1, i & 1
        r_ = (it * 16 + kp) * 4
        a.e(f"s_add_u32 s36, s38, {tab + (it*16+kp)*1024}")
        a.e(f"buffer_load_dwordx4 a[{r_}:{r_+3}], v5, s[{sT}:{sT+3}], s36 offen")
        a.vm_issue(("W", i))

    EBV = 96
    FI = 8
    if fused:
        for jt in range(2):
            a.e(f"s_lshl_b32 s36, s{30+jt}, 11")
            a.e(f"s_add_u32 s36, s36, {TAB_FI}")
            for kk in range(2):
                r_ = FI + (jt * 2 + kk) * 4
                a.e(f"buffer_load_dwordx4 v[{r_}:{r_+3}], v5, s[{sT}:{sT+3}], s36 offen offset:{kk*1024}")
        a.e(f"v_and_b32 v28, 7, v{lane}")
        a.e("v_lshlrev_b32 v28, 10, v28")
        a.e(f"v_lshrrev_b32 v29, 5, v{lane}")
        a.e("v_lshl_add_u32 v28, v29, 4, v28")
        a.e("s_lshl_b32 s36, s24, 13")
        a.e(f"s_lshl_b32 s37, s{sR}, 8")
        a.e("s_add_u32 s36, s36, s37")
        a.e(f"s_add_u32 s45, s36, {TAB_BP}")
        a.e(f"s_cmp_ge_u32 s{sW}, 4")
        a.e(f"s_cbranch_scc1 L_{name}_hpre")
        a.vm = []
        ms()
        for i in range(32):
            w_load(i, TAB_WO)
            if i in (7, 15, 23): ms()
        ms()
        a.e(f"s_cmp_lg_u32 s{sW}, 0")
        a.e(f"s_cbranch_scc1 L_{name}_phA")
        a.e(f"v_lshlrev_b32 v29, 3, v{lane}")
        a.e("s_lshl_b32 s36, s24, 9")
        a.e(f"s_add_u32 s36, s36, {TAB_FLG}")
        a.e("s_mov_b32 s47, 0")
        PD = [(24, 25), (26, 27), (30, 31), (6, 7)]
        for d in range(3):
            a.e(f"buffer_load_dwordx2 v[{PD[d][0]}:{PD[d][1]}], v29, s[{sT}:{sT+3}], s36 offen sc1")
            a.e("s_sleep 3")
        a.label(f"L_{name}_poll")
        for d in range(4):
            n = PD[(d + 3) % 4]
            a.e(f"buffer_load_dwordx2 v[{n[0]}:{n[1]}], v29, s[{sT}:{sT+3}], s36 offen sc1")
            a.e("s_waitcnt vmcnt(3)")
            a.e(f"v_cmp_ne_u32 vcc, 0, v{PD[d][0]}")
            a.e(f"v_cmp_ne_u32 s[42:43], 0, v{PD[d][1]}")
            a.e("s_nop 1")
            a.e("s_and_b64 s[42:43], s[42:43], vcc")
            a.e("s_cmp_eq_u64 s[42:43], -1")
            a.e(f"s_cbranch_scc1 L_{name}_phA")
            a.e("s_sleep 3")
        a.e("s_add_u32 s47, s47, 1")
        a.e("s_cmp_ge_u32 s47, 0x2000")
        a.e(f"s_cbranch_scc1 L_{name}_phA")
        a.e(f"s_branch L_{name}_poll")
        a.label(f"L_{name}_hpre")
        a.vm = []
        for it in range(2):
            for q in range(4):
                r_ = EBV + (it * 4 + q) * 4
                a.e(f"buffer_load_dwordx4 v[{r_}:{r_+3}], v28, s[{sT}:{sT+3}], s45 offen offset:{(32*it + 8*q)*4}")
                a.vm_issue("BP")
        for i in range(32):
            w_load(i, TAB_WF)
        a.wait(vm_tags=("BP",))
        a.e(f"v_max3_f32 v29, |v{EBV}|, |v{EBV+1}|, |v{EBV+2}|")
        for i in range(3, 31, 2):
            a.e(f"v_max3_f32 v29, v29, |v{EBV+i}|, |v{EBV+i+1}|")
        a.e(f"v_max_f32 v29, v29, |v{EBV+31}|")
        a.e(f"s_mov_b32 s41, 0x{f2u(BTHR):08x}")
        a.e("v_cmp_lt_f32 s[48:49], s41, v29")
        for i in range(32):
            a.e(f"v_exp_f32 v{EBV+i}, v{EBV+i}")
        hs()
        a.label(f"L_{name}_phA")
        a.e(f"v_lshrrev_b32 v2, 3, v{lane}")
        a.e(f"v_mul_u32_u24 v2, {Y_BIN}, v2")
        a.e(f"v_bfe_u32 v3, v{lane}, 2, 1")
        a.e("v_lshl_add_u32 v2, v3, 6, v2")
        a.e(f"v_lshrrev_b32 v3, 5, v{lane}")
        a.e("v_lshlrev_b32 v3, 1, v3")
        a.e(f"v_and_b32 v4, 3, v{lane}")
        a.e("v_xor_b32 v3, v3, v4")
        a.e("v_lshl_add_u32 v2, v3, 4, v2")
        a.e(f"s_lshl_b32 s34, s{sW}, 13")
        a.e(f"s_mul_i32 s35, s{sW}, {Y_CG}")
        a.e(f"s_mul_i32 s33, s24, {NB2*YROW}")
        a.e(f"s_add_u32 s33, s33, {WS_YH2}")
        a.e(f"s_add_u32 s{sY}, s6, s33")
        a.e(f"s_addc_u32 s{sY+1}, s7, 0")
        a.e(f"s_mov_b32 s{sY+2}, {NB2*YROW}")
        a.e(f"s_mov_b32 s{sY+3}, 0x00020000")
        rr, gg, cc = 32, 33, 34
        a.e(f"v_bfe_u32 v{rr}, v{lane}, 2, 2")
        a.e(f"v_lshrrev_b32 v{gg}, 4, v{lane}")
        a.e(f"v_and_b32 v{cc}, 3, v{lane}")
        vI = [[36, 37], [38, 39]]
        a.e(f"v_lshl_add_u32 v35, v{gg}, 3, v{rr}")
        a.e("v_lshlrev_b32 v40, 6, v35")
        a.e(f"v_and_b32 v41, 1, v{gg}")
        a.e("v_lshlrev_b32 v41, 1, v41")
        a.e(f"v_lshrrev_b32 v42, 1, v{cc}")
        a.e("v_xor_b32 v41, v41, v42")
        a.e("v_lshl_add_u32 v40, v41, 4, v40")
        a.e(f"v_and_b32 v42, 1, v{cc}")
        a.e("v_lshl_add_u32 v40, v42, 3, v40")
        a.e("s_cmp_eq_u32 s28, s29")
        a.e("s_cselect_b32 s46, 0, 4096")
        a.e(f"v_add_u32 v{vI[0][0]}, s34, v40")
        a.e(f"v_xor_b32 v{vI[0][1]}, 32, v{vI[0][0]}")
        a.e(f"v_add_u32 v{vI[1][0]}, s46, v{vI[0][0]}")
        a.e(f"v_add_u32 v{vI[1][1]}, s46, v{vI[0][1]}")
        vFW = 43
        a.e(f"v_lshrrev_b32 v41, 1, v{gg}")
        a.e("v_lshlrev_b32 v41, 10, v41")
        a.e(f"v_and_b32 v42, 1, v{gg}")
        a.e("v_lshl_add_u32 v41, v42, 9, v41")
        a.e(f"v_and_b32 v42, 15, v{lane}")
        a.e("v_lshl_add_u32 v41, v42, 4, v41")
        a.e(f"s_lshl_b32 s36, s{sW}, 11")
        a.e(f"s_add_u32 s36, s36, {FB}")
        a.e(f"v_add_u32 v{vFW}, s36, v41")
        vK0 = 44
        a.e(f"s_mov_b32 s40, 0x{f2u(GK1):08x}")
        a.e(f"v_mov_b32 v{vK0}, 0x{f2u(GK0):08x}")
        a.e("s_barrier")
        ms()
        for jt in (1, 0):
            if jt == 1:
                a.e("s_cmp_eq_u32 s28, s29")
                a.e(f"s_cbranch_scc1 L_{name}_same")
            a.e(f"s_mul_i32 s36, s{28+jt}, {YROW}")
            a.e("s_add_u32 s36, s36, s35")
            for q in range(4):
                a.e(f"s_add_u32 m0, s34, {STG + jt*4096 + q*1024}")
                a.e(f"s_add_u32 s37, s36, {q*8*Y_BIN}")
                a.e(f"buffer_load_dwordx4 v2, s[{sY}:{sY+3}], s37 offen lds")
            if jt == 1:
                a.label(f"L_{name}_same")
        a.e("s_waitcnt vmcnt(0)")
        ms()
        AA, DD, TT, PK = [48, 80], 64, 72, 24
        for jt in range(2):
            for t in range(2):
                for kk in range(2):
                    r_ = AA[jt] + (t * 2 + kk) * 4
                    for xx in range(2):
                        a.e(f"ds_read_b64_tr_b16 v[{r_+2*xx}:{r_+2*xx+1}], v{vI[jt][t]} offset:{kk*2048 + xx*256}")
            if jt == 0:
                a.e("s_waitcnt lgkmcnt(0)")
        for jt in range(2):
            if jt == 1:
                a.e("s_waitcnt lgkmcnt(0)")
            for kk in range(2):
                for t in range(2):
                    d = DD + t * 4
                    r_ = AA[jt] + (t * 2 + kk) * 4
                    f = FI + (jt * 2 + kk) * 4
                    c = "0" if kk == 0 else f"v[{d}:{d+3}]"
                    a.e(f"v_mfma_f32_16x16x32_bf16 v[{d}:{d+3}], v[{r_}:{r_+3}], v[{f}:{f+3}], {c}")
            a.e("s_nop 7")
            xs = [DD + i for i in range(8)]
            gelu_group2(a, xs, TT, vK0, 40)
            for i in range(4):
                a.e(f"v_cvt_pk_bf16_f32 v{PK+i}, v{xs[2*i]}, v{xs[2*i+1]}")
            a.e(f"ds_write_b128 v{vFW}, v[{PK}:{PK+3}] offset:{jt*256}")
            a.e("s_nop 1")
        ms()
        a.e(f"s_cmp_ge_u32 s{sW}, 4")
        a.e(f"s_cbranch_scc1 L_{name}_helper")
        a.vm = []
        a.lg = []
        nw = 32
    else:
        a.e(f"s_cmp_ge_u32 s{sW}, 4")
        a.e(f"s_cbranch_scc1 L_{name}_helper")
        i_mstart = len(a.L)

        if "nol2pf" not in exp:
            a.e("s_lshr_b32 s36, s2, 3")
            a.e("s_and_b32 s36, s36, 31")
            a.e("s_lshl_b32 s36, s36, 13")
            a.e(f"s_add_u32 s36, s36, {TAB_WF}")
            a.e(f"v_lshlrev_b32 v6, 7, v{lane}")
            a.e(f"s_cmp_lg_u32 s{sW}, 0")
            a.e(f"s_cbranch_scc1 L_{name}_nopf")
            a.e(f"buffer_load_dword v7, v6, s[{sT}:{sT+3}], s36 offen")
            a.label(f"L_{name}_nopf")
        a.e(f"v_lshrrev_b32 v2, 3, v{lane}")
        a.e(f"v_mul_u32_u24 v2, {Y_BIN}, v2")
        a.e(f"v_bfe_u32 v3, v{lane}, 2, 1")
        a.e("v_lshl_add_u32 v2, v3, 6, v2")
        a.e(f"v_lshrrev_b32 v3, 5, v{lane}")
        a.e("v_lshlrev_b32 v3, 1, v3")
        a.e(f"v_and_b32 v4, 3, v{lane}")
        a.e("v_xor_b32 v3, v3, v4")
        a.e("v_lshl_add_u32 v2, v3, 4, v2")
        a.e(f"s_lshl_b32 s34, s{sR}, 14")
        a.e(f"s_mul_i32 s35, s{sR}, {2*Y_CG}")
        a.e(f"s_mul_i32 s33, s24, {NB2*YROW}")
        a.e(f"s_add_u32 s33, s33, {WS_YH2}")
        a.e(f"s_add_u32 s{sY}, s6, s33")
        a.e(f"s_addc_u32 s{sY+1}, s7, 0")
        a.e(f"s_mov_b32 s{sY+2}, {NB2*YROW}")
        a.e(f"s_mov_b32 s{sY+3}, 0x00020000")

        def ydma(jt):
            a.e(f"s_mul_i32 s36, s{28+jt}, {YROW}")
            a.e("s_add_u32 s36, s36, s35")
            for ci in range(2):
                for q in range(4):
                    a.e(f"s_add_u32 m0, s34, {STG + (jt*2+ci)*4096 + q*1024}")
                    a.e(f"s_add_u32 s37, s36, {ci*Y_CG + q*8*Y_BIN}")
                    a.e(f"buffer_load_dwordx4 v2, s[{sY}:{sY+3}], s37 offen lds")
                    if jt == 0:
                        a.vm_issue(("Y", ci))
        a.e("s_mov_b32 s46, 0")
        a.e("s_cmp_eq_u32 s28, s29")
        a.e(f"s_cbranch_scc1 L_{name}_same")
        ydma(1)
        a.e("s_mov_b32 s46, 8192")
        a.label(f"L_{name}_same")
        FI = 8
        for jt in range(2):
            a.e(f"s_lshl_b32 s36, s{30+jt}, 11")
            a.e(f"s_add_u32 s36, s36, {TAB_FI}")
            for kk in range(2):
                r_ = FI + (jt * 2 + kk) * 4
                a.e(f"buffer_load_dwordx4 v[{r_}:{r_+3}], v5, s[{sT}:{sT+3}], s36 offen offset:{kk*1024}")
                a.vm_issue("FI")
        ydma(0)
        nw_early = int(exp.split("woearly=")[1].split(",")[0]) if "woearly=" in exp else 0
        for i in range(nw_early):
            w_load(i, TAB_WO)
        rr, gg, cc = 32, 33, 34
        a.e(f"v_bfe_u32 v{rr}, v{lane}, 2, 2")
        a.e(f"v_lshrrev_b32 v{gg}, 4, v{lane}")
        a.e(f"v_and_b32 v{cc}, 3, v{lane}")
        vI = [[36, 37], [38, 39]]
        a.e(f"v_lshl_add_u32 v35, v{gg}, 3, v{rr}")
        a.e("v_lshlrev_b32 v40, 6, v35")
        a.e(f"v_and_b32 v41, 1, v{gg}")
        a.e("v_lshlrev_b32 v41, 1, v41")
        a.e(f"v_lshrrev_b32 v42, 1, v{cc}")
        a.e("v_xor_b32 v41, v41, v42")
        a.e("v_lshl_add_u32 v40, v41, 4, v40")
        a.e(f"v_and_b32 v42, 1, v{cc}")
        a.e("v_lshl_add_u32 v40, v42, 3, v40")
        a.e(f"v_add_u32 v{vI[0][0]}, s34, v40")
        a.e(f"v_xor_b32 v{vI[0][1]}, 32, v{vI[0][0]}")
        a.e(f"v_add_u32 v{vI[1][0]}, s46, v{vI[0][0]}")
        a.e(f"v_add_u32 v{vI[1][1]}, s46, v{vI[0][1]}")
        vFW = 43
        a.e(f"v_lshrrev_b32 v41, 1, v{gg}")
        a.e("v_lshlrev_b32 v41, 10, v41")
        a.e(f"v_and_b32 v42, 1, v{gg}")
        a.e("v_lshl_add_u32 v41, v42, 9, v41")
        a.e(f"v_and_b32 v42, 15, v{lane}")
        a.e("v_lshl_add_u32 v41, v42, 4, v41")
        a.e(f"s_lshl_b32 s36, s{sR}, 12")
        a.e(f"s_add_u32 s36, s36, {FB}")
        a.e(f"v_add_u32 v{vFW}, s36, v41")
        vK0 = 44
        a.e(f"s_mov_b32 s40, 0x{f2u(GK1):08x}")
        a.e(f"v_mov_b32 v{vK0}, 0x{f2u(GK0):08x}")
        a.e(f"s_mov_b32 s41, 0x{f2u(GK1):08x}")
        a.e(f"v_mov_b32 v{vK0+1}, 0x{f2u(GK0):08x}")
        ms()
        AA, DD, TT, PK = [48, 84], [64, 100], 72, [80, 108]
        units = [(jt, ci) for ci in range(2) for jt in range(2)]

        def a_reads(ui):
            jt, ci = units[ui]
            for t in range(2):
                for kk in range(2):
                    r_ = AA[ui & 1] + (t * 2 + kk) * 4
                    for xx in range(2):
                        a.e(f"ds_read_b64_tr_b16 v[{r_+2*xx}:{r_+2*xx+1}], v{vI[jt][t]} offset:{ci*4096 + kk*2048 + xx*256}")
                        a.lg_issue(("AR", ui))
        a.lg = []
        a.wait(vm_tags=(("Y", 0),))
        ms()
        a_reads(0)
        nwi = nw_early
        PACE = int(exp.split("pace=")[1].split(",")[0]) if "pace=" in exp else 0

        def paced(lines_start):
            nonlocal nwi
            body = a.L[lines_start:]
            del a.L[lines_start:]
            cnt = 0
            for ln in body:
                a.L.append(ln)
                cnt += 1
                if PACE and cnt % PACE == 0 and nwi < 32:
                    w_load(nwi, TAB_WO); nwi += 1

        for ui, (jt, ci) in enumerate(units):
            if ui == 1:
                a.wait(vm_tags=(("Y", 1),))
            a.wait(lg_tags=(("AR", ui),))
            for kk in range(2):
                for t in range(2):
                    d = DD[ui & 1] + t * 4
                    r_ = AA[ui & 1] + (t * 2 + kk) * 4
                    f = FI + (jt * 2 + kk) * 4
                    c = "0" if kk == 0 else f"v[{d}:{d+3}]"
                    a.e(f"v_mfma_f32_16x16x32_bf16 v[{d}:{d+3}], v[{r_}:{r_+3}], v[{f}:{f+3}], {c}")
            if ui + 1 < 4:
                a_reads(ui + 1)
            else:
                a.e("s_nop 7")
            xs = [DD[ui & 1] + i for i in range(8)]
            mark = len(a.L)
            if "pk" not in exp.split(","): gelu_group2(a, xs, TT, vK0, 40)
            else: gelu_group_pk(a, xs, TT, vK0, 40)
            if ui >= 1: paced(mark)
            pk = PK[ui & 1]
            for i in range(4):
                a.e(f"v_cvt_pk_bf16_f32 v{pk+i}, v{xs[2*i]}, v{xs[2*i+1]}")
            a.e(f"ds_write_b128 v{vFW}, v[{pk}:{pk+3}] offset:{ci*2048 + jt*256}")
            a.lg_issue(("FW", ui))
        ms()
        nw = nwi
    a.e("s_waitcnt lgkmcnt(0)")
    a.e("s_barrier")
    a.lg = []
    if "earlyprio" in exp:
        a.e("s_setprio 3")
    ms()
    NWO0 = 32 if (fused or "wofull" in exp) else (int(exp.split("nwo0=")[1].split(",")[0]) if "nwo0=" in exp else 32)
    ACC = [8, 40]
    CS = 72
    JR = 104
    NJR, PRE = 4, 3
    OP = 120
    vJR, vOW = 5, 6
    a.e(f"v_and_b32 v46, 31, v{lane}")
    a.e(f"v_mul_u32_u24 v47, {OTP}, v46")
    a.e(f"v_lshrrev_b32 v45, 5, v{lane}")
    a.e(f"v_lshl_add_u32 v47, v45, 4, v47")
    a.e(f"s_lshl_b32 s36, s{sR}, 7")
    a.e(f"s_add_u32 s36, s36, {OT[0]}")
    a.e(f"v_add_u32 v{vOW}, s36, v47")
    a.e(f"v_lshlrev_b32 v7, 6, v45")
    a.e(f"s_lshl_b32 s36, s{sR}, 8")
    a.e(f"s_add_u32 s36, s36, {TAB_CS}")
    for it in range(2):
        for x in range(4):
            a.e(f"buffer_load_dwordx4 v[{CS+16*it+4*x}:{CS+16*it+4*x+3}], v7, s[{sT}:{sT+3}], s36 offen offset:{it*128 + x*16}")
            a.vm_issue("CS")
    while nw < NWO0:
        w_load(nw, TAB_WO); nw += 1
    if "noprio" not in exp:
        a.e("s_setprio 1")
    ms()
    a.e("s_barrier")
    ms()
    a.lg = []

    def emit(op):
        s, tag = op
        if s == "WLOAD":
            w_load(tag, TAB_WO)
            return
        if s is not None:
            if "j_nostore" in exp and s.startswith("buffer_store"): return
        if tag and tag[0] == "wait_lg":
            a.wait(lg_tags=tag[1])
            return
        a.e(s)
        if tag:
            if tag[0] == "lg": a.lg_issue(tag[1])
            else: a.vm_issue(tag[1])

    def jread(i, k):
        r_ = JR + ((16 * i + k) % NJR) * 4
        a.e(f"ds_read_b128 v[{r_}:{r_+3}], v{vJR} offset:{JB[i % 3] + k*1024}")
        a.lg_issue(("JR", i, k))

    def out_wr(i):
        ops = []
        acc = ACC[i & 1]
        dlt = OT[i & 1] - OT[0]
        for it in range(2):
            for qp in range(2):
                r_ = OP + qp * 4
                for k in range(4):
                    s0 = acc + it * 16 + qp * 8 + 2 * k
                    ops.append((f"v_cvt_pk_bf16_f32 v{r_+k}, v{s0}, v{s0+1}", None))
                ops.append((f"ds_write_b128 v{vOW}, v[{r_}:{r_+3}] offset:{dlt + it*64 + qp*32}", ("lg", ("OW", i))))
        return ops

    MIDB = "midb" in exp.split(",")
    for k in range(PRE): jread(0, k)
    for u in range(8):
        acc = ACC[u & 1]
        per = [[] for _ in range(32)]
        if u > 0:
            ow = out_wr(u - 1)
            for i, op in enumerate(ow):
                per[4 + (i * (10 if MIDB else 20)) // len(ow)].append(op)
        if u == 0:
            for i, wi in enumerate(range(nw, 32)):
                per[i].append(("WLOAD", wi))
        for k in range(16):
            a.wait(lg_tags=(("JR", u, k),))
            if u == 0:
                a.wait(vm_tags=(("W", 2 * k + 1), "CS"))
            r_ = JR + ((16 * u + k) % NJR) * 4
            for it in range(2):
                d = acc + it * 16
                w_ = (it * 16 + k) * 4
                c = f"v[{CS+16*it}:{CS+16*it+15}]" if k == 0 else f"v[{d}:{d+15}]"
                a.e(f"v_mfma_f32_32x32x16_bf16 v[{d}:{d+15}], a[{w_}:{w_+3}], v[{r_}:{r_+3}], {c}")
                if it == 0:
                    if k + PRE < 16:
                        jread(u, k + PRE)
                    elif u + 1 < 8:
                        jread(u + 1, k + PRE - 16)
                for op in per[2 * k + it]: emit(op)
            if MIDB and k == 7 and u > 0:
                a.wait(lg_tags=(("OW", u - 1),))
                a.e("s_barrier")
            if k == 15:
                a.wait(lg_tags=(("OW", u - 1),))
                a.e("s_barrier")
        if u == 0: ms()
    ms()
    a.e("s_nop 7")
    a.e("s_nop 7")
    for op in out_wr(7): emit(op)
    a.wait(lg_tags=(("OW", 7),))
    a.e("s_barrier")
    if st_.on and not HS:
        ms()
        st_.dump(int(exp.split("wg=")[1].split(",")[0]) if "wg=" in exp else 0, sW, 0, f"L_{name}_nodump")
    a.end()

    def b_check_ops():
        ops = [f"v_max3_f32 v8, |v{EBV}|, |v{EBV+1}|, |v{EBV+2}|"]
        for i in range(3, 31, 2):
            ops.append(f"v_max3_f32 v8, v8, |v{EBV+i}|, |v{EBV+i+1}|")
        ops.append(f"v_max_f32 v8, v8, |v{EBV+31}|")
        ops.append(f"s_mov_b32 s41, 0x{f2u(BTHR):08x}")
        ops.append("v_cmp_lt_f32 s[42:43], s41, v8")
        for i in range(32):
            ops.append(f"v_exp_f32 v{EBV+i}, v{EBV+i}")
        return ops

    a.label(f"L_{name}_helper")
    late_check = []
    if fused:
        a.vm = []
        a.lg = []
        nw = 32
        vBP, sBP = 28, 45
        a.e("s_mov_b64 s[42:43], s[48:49]")
        a.e("s_waitcnt lgkmcnt(0)")
    else:
        vBP, sBP = 14, 37
        a.vm = []
        a.lg = []
        nw = 0
        EBV = 96
        a.e(f"v_and_b32 v14, 7, v{lane}")
        a.e("v_lshlrev_b32 v14, 10, v14")
        a.e(f"v_lshrrev_b32 v15, 5, v{lane}")
        a.e("v_lshl_add_u32 v14, v15, 4, v14")
        a.e("s_lshl_b32 s36, s24, 13")
        a.e(f"s_lshl_b32 s37, s{sR}, 8")
        a.e("s_add_u32 s36, s36, s37")
        a.e(f"s_add_u32 s37, s36, {TAB_BP}")
        BPLAST = "bpfirst" not in exp

        def bp_loads():
            for it in range(2):
                for q in range(4):
                    r_ = EBV + (it * 4 + q) * 4
                    a.e(f"buffer_load_dwordx4 v[{r_}:{r_+3}], v14, s[{sT}:{sT+3}], s37 offen offset:{(32*it + 8*q)*4}")
                    a.vm_issue("BP")
        if not BPLAST: bp_loads()
        NWF0 = int(exp.split("nwf0=")[1].split(",")[0]) if "nwf0=" in exp else 32
        if "finestamp" in exp: hs()
        while nw < NWF0:
            w_load(nw, TAB_WF); nw += 1
            if "finestamp" in exp and nw % 8 == 0: hs()
        if BPLAST:
            bp_loads()
            late_check = b_check_ops()
        else:
            a.wait(vm_tags=("BP",))
            for op in b_check_ops(): a.e(op)
    i_hba = len(a.L)
    hs()
    a.e("s_barrier")
    hs()
    ACF, BFR = 32, 64
    a.e(f"v_add_u32 v7, {FB}, v5")
    for k8 in range(8):
        a.e(f"ds_read_b128 v[{BFR+4*k8}:{BFR+4*k8+3}], v7 offset:{k8*1024}")
        a.lg_issue(("FR", k8))
    for kp in range(16):
        k8 = kp & 7
        for _ in range(2):
            if nw < 32:
                w_load(nw, TAB_WF); nw += 1
        assert nw > 2 * kp + 1
        a.wait(vm_tags=[("W", 2 * kp + 1)], lg_tags=[("FR", kp)])
        for it in range(2):
            d = ACF + it * 16
            w_ = (it * 16 + kp) * 4
            c = "0" if kp == 0 else f"v[{d}:{d+15}]"
            a.e(f"v_mfma_f32_32x32x16_bf16 v[{d}:{d+15}], a[{w_}:{w_+3}], v[{BFR+4*k8}:{BFR+4*k8+3}], {c}")
        if kp >= 1 and kp + 7 < 16:
            kn = kp + 7
            a.e(f"ds_read_b128 v[{BFR+4*(kn & 7)}:{BFR+4*(kn & 7)+3}], v7 offset:{kn*1024}")
            a.lg_issue(("FR", kn))
        if late_check and kp >= 9:
            if kp == 9: a.wait(vm_tags=("BP",))
            for _ in range(8):
                if late_check: a.e(late_check.pop(0))
    for op in late_check: a.e(op)
    hs()
    vJW, vEA, vOR, vOS, vEW = 2, 4, 6, 7, 9
    a.e(f"s_lshl_b32 s36, s{sR}, 12")
    a.e(f"v_add_u32 v{vJW}, s36, v5")
    a.e(f"v_lshrrev_b32 v10, 5, v{lane}")
    a.e(f"v_lshlrev_b32 v11, 4, v10")
    a.e(f"s_lshl_b32 s36, s{sR}, 8")
    a.e(f"s_add_u32 s36, s36, {EAT}")
    a.e(f"v_add_u32 v11, s36, v11")
    a.e(f"v_and_b32 v12, 31, v{lane}")
    a.e(f"v_mul_u32_u24 v13, {EAP}, v12")
    a.e(f"v_add_u32 v{vEW}, v11, v13")
    a.e(f"v_lshrrev_b32 v13, 3, v12")
    a.e(f"v_mul_u32_u24 v13, {EAP}, v13")
    a.e(f"v_add_u32 v{vEA}, v11, v13")
    a.e(f"s_lshl_b32 s36, s{sR}, 3")
    a.e(f"v_add_u32 v10, s36, v10")
    a.e(f"v_mul_u32_u24 v13, {OTP}, v10")
    a.e(f"v_lshl_add_u32 v13, v12, 4, v13")
    a.e(f"v_add_u32 v{vOR}, {OT[0]}, v13")
    a.e(f"v_lshlrev_b32 v13, 9, v10")
    a.e(f"v_lshl_add_u32 v{vOS}, v12, 4, v13")
    AP = 64
    a.e(f"s_mov_b32 s41, 0x{f2u(LOG2E2):08x}")
    for i in range(32):
        a.e(f"v_mul_f32 v{AP+i}, s41, v{ACF+i}")
    a.e(f"v_max3_f32 v8, |v{AP}|, |v{AP+1}|, |v{AP+2}|")
    for i in range(3, 31, 2):
        a.e(f"v_max3_f32 v8, v8, |v{AP+i}|, |v{AP+i+1}|")
    a.e(f"v_max_f32 v8, v8, |v{AP+31}|")
    a.e(f"s_mov_b32 s41, 0x{f2u(ATHR):08x}")
    a.e("v_cmp_lt_f32 vcc, s41, v8")
    a.e("s_nop 3")
    a.e("s_or_b64 s[42:43], s[42:43], vcc")
    a.e("s_cmp_lg_u64 s[42:43], 0")
    a.e("s_cselect_b32 s44, 1, 0")
    if "forceslow" in exp:
        a.e("s_mov_b32 s44, 1")
    a.e("s_cmp_lg_u32 s44, 0")
    a.e(f"s_cbranch_scc1 L_{name}_slow")
    vm2 = list(a.vm)

    def helper(slow):
        a.vm = list(vm2)
        a.lg = []
        EAV = 32
        TT = 64
        JP = 80
        if not slow:
            for i in range(32):
                a.e(f"v_exp_f32 v{ACF+i}, v{AP+i}")
            src = ACF
        else:
            for it in range(2):
                for q in range(4):
                    r_ = EBV + (it * 4 + q) * 4
                    a.e(f"buffer_load_dwordx4 v[{r_}:{r_+3}], v{vBP}, s[{sT}:{sT+3}], s{sBP} offen offset:{(32*it + 8*q)*4}")
            a.e("s_waitcnt vmcnt(0)")
            a.vm = []
            src = AP
        for it in range(2):
            for q in range(4):
                r_ = src + (it * 4 + q) * 4
                a.e(f"ds_write_b128 v{vEW}, v[{r_}:{r_+3}] offset:{(32*it + 8*q)*4}")
        a.e("s_waitcnt lgkmcnt(0)")

        def ea_read(i, grp):
            it, qp = grp >> 1, grp & 1
            for s_ in range(2):
                q = 2 * qp + s_
                r_ = EAV + (it * 4 + q) * 4
                a.e(f"ds_read_b128 v[{r_}:{r_+3}], v{vEA} offset:{i*4*EAP + (32*it + 8*q)*4}")
                a.lg_issue(("EA", i, grp))

        def tanh(i, mid=None):
            for grp in range(4):
                t0 = TT + (grp & 1) * 8
                jp = JP + (grp & 1) * 4
                a.wait(lg_tags=(("EA", i, grp),))
                if "pkfma" in exp.split(",") and not slow:
                    for x in range(0, 8, 2):
                        a.e(f"v_pk_fma_f32 v[{t0+x}:{t0+x+1}], v[{EAV+grp*8+x}:{EAV+grp*8+x+1}], v[{EBV+grp*8+x}:{EBV+grp*8+x+1}], 1.0 op_sel_hi:[1,1,0]")
                else:
                    for x in range(8):
                        if slow: a.e(f"v_add_f32 v{t0+x}, v{EAV+grp*8+x}, v{EBV+grp*8+x}")
                        else: a.e(f"v_fma_f32 v{t0+x}, v{EAV+grp*8+x}, v{EBV+grp*8+x}, 1.0")
                if i + 1 < 8: ea_read(i + 1, grp)
                if slow:
                    for x in range(8): a.e(f"v_exp_f32 v{t0+x}, v{t0+x}")
                    for x in range(8): a.e(f"v_add_f32 v{t0+x}, 1.0, v{t0+x}")
                for x in range(8): a.e(f"v_rcp_f32 v{t0+x}, v{t0+x}")
                if mid and grp in mid: mid[grp]()
                else: a.e("s_nop 0")
                for k in range(4):
                    a.e(f"v_cvt_pk_bf16_f32 v{jp+k}, v{t0+2*k}, v{t0+2*k+1}")
                a.e(f"ds_write_b128 v{vJW}, v[{jp}:{jp+3}] offset:{JB[i % 3] + grp*1024}")
                a.lg_issue(("JW", i))

        def out_rd(i, ks=(0, 1, 2, 3)):
            dlt = OT[i & 1] - OT[0]
            for k in ks:
                a.e(f"ds_read_b128 a[{4*k}:{4*k+3}], v{vOR} offset:{dlt + 2*k*OTP}")
                a.lg_issue(("OR", i, k))

        def out_st(i, ks=(0, 1, 2, 3)):
            for k in ks:
                a.wait(lg_tags=(("OR", i, k),))
                if "j_nostore" in exp: continue
                a.e(f"s_mov_b32 s36, {i*16384 + k*1024}")
                a.e(f"buffer_store_dwordx4 a[{4*k}:{4*k+3}], v{vOS}, s[{sO}:{sO+3}], s36 offen")
                a.vm_issue(("O", i))

        if not slow: hs()
        for grp in range(4): ea_read(0, grp)
        tanh(0)
        tanh(1)
        a.wait(lg_tags=(("JW", 1),))
        if not slow: hs()
        a.e("s_barrier")
        if not slow: hs()
        mark = len(a.L)
        for u in range(8):
            if "j_hidle" in exp:
                a.e("s_barrier")
                continue
            if MIDB:
                def midbar(uu=u):
                    if uu > 0:
                        a.e("s_barrier")
                        out_rd(uu - 1)
                    else:
                        a.e("s_nop 0")
                if u + 2 < 8:
                    mid = {1: midbar}
                    if u > 0:
                        mid[2] = (lambda uu=u: out_st(uu - 1, (0, 1)))
                        mid[3] = (lambda uu=u: out_st(uu - 1, (2, 3)))
                    tanh(u + 2, mid)
                    a.wait(lg_tags=(("JW", u + 2),))
                else:
                    midbar()
                    out_st(u - 1)
            else:
                if u >= 2:
                    out_rd(u - 2)
                if u + 2 < 8:
                    mid = {}
                    if u >= 2:
                        mid = {0: (lambda uu=u: out_st(uu - 2, (0, 1))), 1: (lambda uu=u: out_st(uu - 2, (2, 3)))}
                    tanh(u + 2, mid)
                    a.wait(lg_tags=(("JW", u + 2),))
                elif u >= 2:
                    out_st(u - 2)
            if not slow and u in (2, 3): hs()
            a.e("s_barrier")
            if not slow and u in (2, 3): hs()
        if "j_hnovalu" in exp:
            a.L[mark:] = [l for l in a.L[mark:] if not l.strip().startswith("v_")]
        if "j_hnolds" in exp:
            a.L[mark:] = [l for l in a.L[mark:] if not l.strip().startswith("ds_")]
        if "j_hnotrans" in exp:
            a.L[mark:] = [l for l in a.L[mark:] if not l.strip().startswith("v_rcp")]
        if not MIDB:
            out_rd(6)
            out_st(6)
        a.e("s_barrier")
        out_rd(7)
        out_st(7)
        if st_.on and HS and not slow:
            st_.stamp()
            a.e("s_waitcnt vmcnt(0)")
            st_.stamp()
            st_.dump(0, sW, 4, f"L_{name}_nodump")
        a.end()

    helper(False)
    a.label(f"L_{name}_slow")
    helper(True)
    a.label(f"L_{name}_done")
    a.e("s_endpgm")
    if not fused and "hfar" not in exp.split(","):
        i_h = a.L.index(f"L_{name}_helper:")
        hpre = a.L[i_h + 1:i_hba]
        head = a.L[:i_mstart - 2] + [f"    s_cmp_lt_u32 s{sW}, 4", f"    s_cbranch_scc1 L_{name}_mpath"]
        a.L = head + hpre + [f"    s_branch L_{name}_helper", f"L_{name}_mpath:"] + a.L[i_mstart:i_h + 1] + a.L[i_hba:]
    return a.text(), LDS, 256, NWG
```

```python
import os as _os
NFFT = 64
V = 48
NBINS = 32
NB1 = 167
NB2 = 84
M1 = 2 * NB1
M2 = 2 * NB2
XROW = 2048
XBIN1 = M1 * XROW
XBIN2 = M2 * XROW
YBM = int(_os.environ.get('YBM', '1'))
Y_CG = 128 if YBM else 4096
Y_BIN = 1024 if YBM else 128
GBIN = 524288 + 4352
YROW = int(_os.environ.get('YROW', '37120'))


def al(x, a=4096):
    return (x + a - 1) // a * a


WS_XH1 = int(_os.environ.get('WSB', '0')) << 20
_ORD = int(_os.environ.get('WSORD', '0'))
_G, _Y1, _Y2, _X1, _X2 = NBINS * GBIN, M1 * YROW, M2 * YROW, NBINS * XBIN1 + 65536, NBINS * XBIN2 + 65536
_B = WS_XH1
if _ORD == 0:
    WS_GH1 = al(WS_XH1 + _X1); WS_YH1 = al(WS_GH1 + _G); WS_XH2 = al(WS_YH1 + _Y1); WS_GH2 = al(WS_XH2 + _X2); WS_YH2 = al(WS_GH2 + _G); _E = WS_YH2 + _Y2
elif _ORD == 1:
    WS_GH2 = _B; WS_XH2 = al(WS_GH2 + _G); WS_YH2 = al(WS_XH2 + _X2); WS_XH1 = al(WS_YH2 + _Y2); WS_GH1 = al(WS_XH1 + _X1); WS_YH1 = al(WS_GH1 + _G); _E = WS_YH1 + _Y1
else:
    WS_YH1 = al(WS_XH1 + _X1); WS_XH2 = al(WS_YH1 + _Y1); WS_YH2 = al(WS_XH2 + _X2); WS_GH1 = al(WS_YH2 + _Y2); WS_GH2 = al(WS_GH1 + _G); _E = WS_GH2 + _G
WS_TAB = al(_E)
import os
REUSE = int(os.environ.get("REUSE", "0"))
X_PTR = 72
if REUSE in (1, 2):
    WS_XH2, WS_GH2, WS_YH2 = WS_XH1, WS_GH1, WS_YH1
if REUSE in (2, 3):
    X_PTR = 56
    WS_XH1 = WS_XH2 = 0
TAB_F = 0
TAB_FI = 8192
TAB_BP = 16384
TAB_CS = 14336
TAB_WF = 32768
TAB_WO = TAB_WF + 131072
TAB_FLG = TAB_WO + 131072
TAB_END = TAB_FLG + 1024
WS_END = al(WS_TAB + TAB_END)


def pi(q):
    g, t, e = q >> 3, (q >> 2) & 1, q & 3
    return 16 * t + 4 * g + e


if __name__ == "__main__":
    for k in ("WS_XH1", "WS_GH1", "WS_YH1", "WS_XH2", "WS_GH2", "WS_YH2", "WS_TAB", "WS_END"):
        print(k, hex(globals()[k]), globals()[k] / 1e6)
```

```python
import struct


def f2u(f):
    return struct.unpack('<I', struct.pack('<f', f))[0]


class Asm:
    def __init__(self):
        self.L = []
        self.vm = []
        self.lg = []

    def e(self, s):
        self.L.append("    " + s)

    def label(self, s):
        self.L.append(s + ":")

    def c(self, s):
        self.L.append("    ; " + s)

    def vm_issue(self, tag):
        self.vm.append(tag)
        assert len(self.vm) <= 63, "vmcnt overflow"

    def lg_issue(self, tag):
        self.lg.append(tag)
        assert len(self.lg) <= 15, ("lgkmcnt overflow", self.lg)

    def _need(self, q, tags):
        idx = -1
        for i, t in enumerate(q):
            if t in tags:
                idx = i
        return idx

    def wait(self, vm_tags=(), lg_tags=(), force=False):
        parts = []
        if vm_tags:
            idx = self._need(self.vm, vm_tags)
            if idx >= 0:
                parts.append(f"vmcnt({len(self.vm) - idx - 1})")
                self.vm = self.vm[idx + 1:]
        if lg_tags:
            idx = self._need(self.lg, lg_tags)
            if idx >= 0:
                parts.append(f"lgkmcnt({len(self.lg) - idx - 1})")
                self.lg = self.lg[idx + 1:]
        if parts:
            self.e("s_waitcnt " + " ".join(parts))

    def wait_all(self, vm=True, lg=True):
        parts = []
        if vm:
            parts.append("vmcnt(0)")
            self.vm = []
        if lg:
            parts.append("lgkmcnt(0)")
            self.lg = []
        self.e("s_waitcnt " + " ".join(parts))

    def text(self):
        return "\n".join(self.L) + "\n"

    trace_region = None
    trace_tid = 0
    _ntr = 0

    def trace_begin(self, region, dbg=False):
        if dbg: self.dbg_slot = region
        else: self.trace_region = region
        self.e("s_memrealtime s[98:99]")
        self.e("v_readfirstlane_b32 s97, v0")

    dbg_slot = None

    def end(self):
        if self.dbg_slot is not None:
            Asm._ntr += 1
            lab = f"L_dbg_skip_{Asm._ntr}"
            k = self.dbg_slot
            self.e("s_waitcnt vmcnt(0) lgkmcnt(0)")
            self.e("s_memrealtime s[100:101]")
            self.e("s_or_b32 s96, s97, s2")
            self.e(f"s_cmp_lg_u32 s96, {self.trace_tid}")
            self.e(f"s_cbranch_scc1 {lab}")
            self.e("s_load_dwordx2 s[92:93], s[0:1], 64")
            self.e("s_waitcnt lgkmcnt(0)")
            self.e(f"s_sub_u32 s92, s92, {k*512}")
            self.e("s_subb_u32 s93, s93, 0")
            self.e("s_mov_b32 s94, 256")
            self.e("s_mov_b32 s95, 0x00020000")
            self.e("s_mov_b64 exec, 1")
            self.e(f"v_mov_b32 v2, {k*8}")
            self.e("v_mov_b32 v0, s98")
            self.e("v_mov_b32 v1, s100")
            self.e("buffer_store_dwordx2 v[0:1], v2, s[92:95], 0 offen")
            self.label(lab)
        if self.trace_region is not None:
            Asm._ntr += 1
            lab = f"L_trace_skip_{Asm._ntr}"
            self.e("s_waitcnt vmcnt(0) lgkmcnt(0)")
            self.e("s_memrealtime s[100:101]")
            self.e(f"s_cmp_lg_u32 s97, {self.trace_tid}")
            self.e(f"s_cbranch_scc1 {lab}")
            self.e("s_load_dwordx2 s[92:93], s[0:1], 72")
            self.e("s_waitcnt lgkmcnt(0)")
            self.e(f"s_add_u32 s92, s92, {0x8000000 + self.trace_region*65536}")
            self.e("s_addc_u32 s93, s93, 0")
            self.e("s_mov_b32 s94, 65536")
            self.e("s_mov_b32 s95, 0x00020000")
            self.e("s_lshl_b32 s96, s2, 4")
            self.e("s_mov_b64 exec, 1")
            self.e("v_mov_b32 v2, s96")
            self.e("v_mov_b32 v0, s98")
            self.e("v_mov_b32 v1, s100")
            self.e("buffer_store_dwordx2 v[0:1], v2, s[92:95], 0 offen")
            self.label(lab)
        self.e("s_endpgm")

    def srd(self, s, base_lo, base_hi, nbytes):
        self.e(f"s_mov_b32 s{s}, {base_lo}")
        self.e(f"s_mov_b32 s{s+1}, {base_hi}")
        self.e(f"s_mov_b32 s{s+2}, {nbytes}")
        self.e(f"s_mov_b32 s{s+3}, 0x00020000")

    def add64(self, d, a, off):
        self.e(f"s_add_u32 s{d}, s{a}, {off}")
        self.e(f"s_addc_u32 s{d+1}, s{a+1}, 0")


class Stamps:
    def __init__(self, a, on, s0=60):
        self.a, self.on, self.s0, self.n = a, on, s0, 0

    def begin(self):
        if not self.on: return
        a = self.a
        a.e(f"s_load_dwordx2 s[{self.s0}:{self.s0+1}], s[0:1], 64")
        a.e(f"s_memrealtime s[{self.s0+2}:{self.s0+3}]")
        self.stamp()

    def stamp(self):
        if not self.on: return
        r = self.s0 + 6 + 2 * self.n
        self.a.e(f"s_memtime s[{r}:{r+1}]")
        self.n += 1

    def trace(self, wave_sgpr, wave, label, region):
        a, s0 = self.a, self.s0
        a.e(f"s_cmp_lg_u32 s{wave_sgpr}, {wave}")
        a.e(f"s_cbranch_scc1 {label}")
        a.e("s_load_dwordx2 s[56:57], s[0:1], 72")
        a.e("s_waitcnt lgkmcnt(0)")
        a.e(f"s_add_u32 s56, s56, {0x8000000 + region*65536}")
        a.e("s_addc_u32 s57, s57, 0")
        a.e("s_mov_b32 s58, 65536")
        a.e("s_mov_b32 s59, 0x00020000")
        a.e("s_lshl_b32 s55, s2, 4")
        a.e("v_mov_b32 v2, s55")
        a.e(f"v_mov_b32 v0, s{s0+2}")
        a.e(f"v_mov_b32 v1, s{s0+4}")
        a.e("buffer_store_dwordx2 v[0:1], v2, s[56:59], 0 offen")
        a.label(label)

    def dump(self, wg, wave_sgpr, wave, label, region=None):
        if not self.on: return
        a, s0 = self.a, self.s0
        a.e(f"s_memrealtime s[{s0+4}:{s0+5}]")
        a.e("s_waitcnt lgkmcnt(0)")
        if region is not None:
            self.trace(wave_sgpr, wave, label + "_tr", region)
        a.e(f"s_cmp_lg_u32 s2, {wg}")
        a.e(f"s_cbranch_scc1 {label}")
        a.e(f"s_cmp_lg_u32 s{wave_sgpr}, {wave}")
        a.e(f"s_cbranch_scc1 {label}")
        a.e(f"s_mov_b32 s56, s{s0}")
        a.e(f"s_mov_b32 s57, s{s0+1}")
        a.e("s_mov_b32 s58, 256")
        a.e("s_mov_b32 s59, 0x00020000")
        a.e("v_mov_b32 v2, 0")
        a.e(f"s_sub_u32 s{s0+4}, s{s0+4}, s{s0+2}")
        a.e(f"v_mov_b32 v0, s{s0+4}")
        a.e("buffer_store_dword v0, v2, s[56:59], 0 offen")
        for i in range(1, self.n):
            r = s0 + 6 + 2 * i
            a.e(f"s_sub_u32 s{s0+5}, s{r}, s{s0+6}")
            a.e(f"v_mov_b32 v0, s{s0+5}")
            a.e(f"buffer_store_dword v0, v2, s[56:59], 0 offen offset:{4*i}")
        a.label(label)


def kd(name, vgpr=256, sgpr=102, accum=None):
    accum = accum or ((vgpr + 3) // 4 * 4)
    return f""".amdhsa_kernel {name}
  .amdhsa_next_free_vgpr {vgpr}
  .amdhsa_next_free_sgpr {sgpr}
  .amdhsa_accum_offset {accum}
  .amdhsa_group_segment_fixed_size 0
  .amdhsa_kernarg_size 80
  .amdhsa_user_sgpr_count 2
  .amdhsa_user_sgpr_kernarg_segment_ptr 1
  .amdhsa_system_sgpr_workgroup_id_x 1
.end_amdhsa_kernel
"""
```

```python
from asmlib import Asm, Stamps
from layout import *
from prep import cos_vals


def gemm_kernel(name, conv, exp="", fused=False):
    a = Asm()
    if conv == 1:
        M, XBIN, WS_X, WS_G, WS_Y = M1, XBIN1, WS_XH1, WS_GH1, WS_YH1
        NT, S, NP = (2, 7, 2) if "twopass" in exp else (4, 5, 1)
    else:
        M, XBIN, WS_X, WS_G, WS_Y = M2, XBIN2, WS_XH2, WS_GH2, WS_YH2
        NT, S, NP = 2, 7, 1
    KST = 16
    NSTEP = KST * NP
    ROWS = 84
    G2 = conv == 1 and "g2ingemm" in exp
    ABYTES = 11264 if G2 else 12288
    CTP = 2 * NT
    BP = CTP * 2
    SLOT = ABYTES + BP * 1024
    SPW = 65536 // SLOT
    NWIN = (S + SPW - 1) // SPW
    LDS = S * SLOT
    GX = LDS
    if G2:
        LDS += 16 * 1152 + 4096
    BPW = BP // 4
    NWG = 256
    NCT = CTP * NP

    ASZ = NT * 24
    FR0 = 4 if fused else NP * ASZ
    AK = "a" if fused else "v"
    FSZ = NT * 8 + 24
    vAre = FR0 + 2 * FSZ
    vAim = vAre + NWIN
    vB = vAim + NWIN
    vT = vB + NWIN
    EP = (vT + 12 + 1) // 2 * 2
    NV = EP + (24 if NP > 1 else 0)
    assert NV <= (128 if fused else 256)

    def G(st, t, ri):
        return FR0 + st * FSZ + (t * 2 + ri) * 4

    def U(st, r, ri):
        return FR0 + st * FSZ + NT * 8 + (r * 2 + ri) * 4

    def accr(p, t, r):
        return p * ASZ + (t * 3 + r) * 4

    def acci(p, t, r):
        return p * ASZ + NT * 12 + (t * 3 + r) * 4

    sA, sB, sY = 8, 12, 16
    sW = 20
    sBin = 21
    sM0 = 22
    a.label(name)
    if not fused:
        a.e(f"s_cmp_ge_u32 s2, {NWG}")
        a.e(f"s_cbranch_scc1 L_{name}_done")
    if "trace" in exp and a.trace_region is None: a.trace_begin(conv*2-1)
    if "dbgtime" in exp: a.trace_begin(conv*2-1, dbg=True)
    st_ = Stamps(a, "stamp" in exp)
    st_.begin()
    a.e("s_load_dwordx2 s[4:5], s[0:1], 72")
    a.e(f"s_load_dwordx2 s[6:7], s[0:1], {X_PTR}")
    a.e(f"v_readfirstlane_b32 s{sW}, v0")
    a.e(f"s_lshr_b32 s{sW}, s{sW}, 6")
    if "ldfirst" in exp.split(","):
        a.trace_tid = 256
        a.e(f"s_xor_b32 s{sW}, s{sW}, 4")
    a.e("s_and_b32 s24, s2, 7")
    a.e("s_lshr_b32 s25, s2, 3")
    a.e("s_lshr_b32 s26, s25, 3")
    a.e("s_lshl_b32 s24, s24, 2")
    a.e(f"s_add_u32 s{sBin}, s24, s26")
    a.e("s_and_b32 s25, s25, 7")
    if conv == 1:
        a.e("s_lshr_b32 s26, s25, 1")
        a.e("s_and_b32 s27, s25, 1")
    else:
        a.e("s_lshr_b32 s26, s25, 2")
        a.e("s_and_b32 s27, s25, 3")
    a.e(f"s_mul_i32 s{sM0}, s26, {ROWS}")
    a.e(f"s_sub_u32 s28, {M}, s{sM0}")
    a.e(f"s_min_u32 s28, s28, {ROWS}")
    a.e("s_waitcnt lgkmcnt(0)")
    a.e(f"s_mul_i32 s29, s{sBin}, {XBIN}")
    a.e(f"s_lshl_b32 s30, s{sM0}, 11")
    a.e("s_add_u32 s29, s29, s30")
    a.e(f"s_add_u32 s29, s29, {WS_X}")
    a.e(f"s_add_u32 s{sA}, s6, s29")
    a.e(f"s_addc_u32 s{sA+1}, s7, 0")
    a.e(f"s_lshl_b32 s{sA+2}, s28, 11")
    a.e(f"s_mov_b32 s{sA+3}, 0x00020000")
    a.e(f"s_mul_i32 s29, s{sBin}, {GBIN}")
    a.e(f"s_mul_i32 s30, s27, {NCT*2048}")
    a.e("s_add_u32 s29, s29, s30")
    a.e(f"s_add_u32 s29, s29, {WS_G}")
    a.e(f"s_add_u32 s{sB}, s4, s29")
    a.e(f"s_addc_u32 s{sB+1}, s5, 0")
    a.e(f"s_mov_b32 s{sB+2}, {15*32768 + NCT*2048}")
    a.e(f"s_mov_b32 s{sB+3}, 0x00020000")
    a.e(f"s_cmp_ge_u32 s{sW}, 4")
    a.e(f"s_cbranch_scc1 L_{name}_loader")
    i_cons = len(a.L)

    a.e(f"s_mul_i32 s29, s{sM0}, {YROW}")
    a.e(f"s_add_u32 s29, s29, {WS_Y}")
    a.e(f"s_add_u32 s{sY}, s4, s29")
    a.e(f"s_addc_u32 s{sY+1}, s5, 0")
    a.e(f"s_mul_i32 s{sY+2}, s28, {YROW}")
    a.e(f"s_mov_b32 s{sY+3}, 0x00020000")
    a.e(f"s_lshr_b32 s29, s{sW}, 1")
    a.e(f"s_and_b32 s30, s{sW}, 1")
    a.e(f"v_and_b32 v{vT}, 15, v0")
    a.e(f"v_bfe_u32 v{vT+1}, v0, 4, 2")
    a.e(f"v_and_b32 v{vT+2}, 63, v0")
    a.e(f"s_mul_i32 s31, s29, {48*128}")
    a.e(f"v_and_b32 v{vT+3}, 7, v{vT}")
    a.e(f"v_xor_b32 v{vT+3}, v{vT+1}, v{vT+3}")
    a.e(f"v_lshlrev_b32 v{vT+3}, 4, v{vT+3}")
    a.e(f"v_lshl_add_u32 v{vT+3}, v{vT}, 7, v{vT+3}")
    a.e(f"v_add_u32 v{vT+3}, s31, v{vT+3}")
    for w in range(NWIN):
        a.e(f"v_add_u32 v{vAre+w}, {w*SPW*SLOT}, v{vT+3}")
        a.e(f"v_xor_b32 v{vAim+w}, 64, v{vAre+w}")
    a.e(f"s_mul_i32 s31, s30, {NT*2048}")
    a.e(f"s_add_u32 s31, s31, {ABYTES}")
    a.e(f"v_lshlrev_b32 v{vT+3}, 4, v{vT+2}")
    a.e(f"v_add_u32 v{vT+3}, s31, v{vT+3}")
    for w in range(NWIN):
        a.e(f"v_add_u32 v{vB+w}, {w*SPW*SLOT}, v{vT+3}")
    vY1, vY2 = vT + 5, vT + 6
    a.e(f"v_and_b32 v{vT+7}, 7, v{vT}")
    a.e(f"v_lshrrev_b32 v{vT+8}, 3, v{vT}")
    a.e(f"v_mul_u32_u24 v{vY1}, {YROW}, v{vT+7}")
    a.e(f"v_lshl_add_u32 v{vY1}, v{vT+1}, 4, v{vY1}")
    a.e(f"s_mul_i32 s31, s29, {48*YROW}")
    a.e(f"v_add_u32 v{vY1}, s31, v{vY1}")
    a.e(f"v_lshl_add_u32 v{vY1}, v{vT+8}, 6, v{vY1}")
    a.e(f"v_xor_b32 v{vT+8}, 64, v{vY1}")
    a.e(f"v_add_u32 v{vY2}, {8*YROW}, v{vT+8}")
    a.e(f"s_mul_i32 s31, s27, {NCT//2}")
    a.e(f"s_mul_i32 s29, s30, {NT//2}")
    a.e("s_add_u32 s31, s31, s29")
    a.e(f"s_mul_i32 s31, s31, {Y_CG}")
    a.e(f"s_mul_i32 s29, s{sBin}, {Y_BIN}")
    a.e("s_add_u32 s33, s31, s29")
    a.e("s_mov_b32 s34, 0x80008000")

    if G2:
        t6, t7 = FR0, FR0 + 1
        a.e("s_load_dwordx2 s[38:39], s[0:1], 16")
        a.e("s_lshr_b32 s40, s2, 4")
        a.e("s_bfe_u32 s41, s2, 0x20002")
        a.e("s_and_b32 s42, s2, 3")
        a.e("s_lshr_b32 s43, s40, 3")
        a.e("s_and_b32 s44, s40, 7")
        a.e(f"v_lshrrev_b32 v{t6}, 3, v{vT+2}")
        a.e("s_lshl_b32 s45, s41, 3")
        a.e("s_lshl_b32 s46, s44, 5")
        a.e("s_add_u32 s45, s45, s46")
        a.e(f"v_add_u32 v{t6}, s45, v{t6}")
        a.e(f"v_lshlrev_b32 v{t6}, 9, v{t6}")
        a.e(f"v_and_b32 v{t7}, 7, v{vT+2}")
        a.e(f"s_lshr_b32 s46, s{sW}, 1")
        a.e("s_lshl_b32 s46, s46, 2")
        a.e(f"v_xor_b32 v{t7}, s46, v{t7}")
        a.e(f"v_lshl_add_u32 v{t6}, v{t7}, 4, v{t6}")
        a.e("s_lshl_b32 s46, s42, 7")
        a.e(f"v_add_u32 v{t6}, s46, v{t6}")
        a.e(f"v_xor_b32 v{t7}, 32, v{t6}")
        a.e(f"s_lshl_b32 s46, s{sW}, 3")
        a.e("s_add_u32 s46, s46, s43")
        a.e("s_lshl_b32 s46, s46, 17")
        a.e(f"s_mul_i32 s47, s{sW}, {4*1152}")
        a.e("s_waitcnt lgkmcnt(0)")
        a.srd(48, "s38", "s39", 31 * 131072)
        for jj in range(4):
            a.e(f"s_add_u32 m0, s47, {GX + jj*1152}")
            a.e(f"s_add_u32 s37, s46, {jj*2*131072}")
            a.e(f"buffer_load_dwordx4 v{t6 if jj < 2 else t7}, s[48:51], s37 offen nt lds")

    def reads(step):
        st = step & 1
        sl = step % S
        w, siw = sl // SPW, sl % SPW
        ops = []
        seq = []
        seq.append(("G", 0, 0))
        seq += [("U", r, 0) for r in range(3)]
        seq += [("G", t, 0) for t in range(1, NT)]
        seq += [("U", r, 1) for r in range(3)]
        seq += [("G", t, 1) for t in range(NT)]
        for kind, x, ri in seq:
            if kind == "G":
                r_ = G(st, x, ri)
                ops.append(f"ds_read_b128 v[{r_}:{r_+3}], v{vB+w} offset:{siw*SLOT + (x*2+ri)*1024}")
            else:
                r_ = U(st, x, ri)
                va = (vAim if ri else vAre) + w
                ops.append(f"ds_read_b128 v[{r_}:{r_+3}], v{va} offset:{siw*SLOT + x*2048}")
        return ops

    def mfma(d, ga, ub, c):
        cs = "0" if c is None else f"{AK}[{c}:{c+3}]"
        return f"v_mfma_f32_16x16x32_bf16 {AK}[{d}:{d+3}], v[{ga}:{ga+3}], v[{ub}:{ub+3}], {cs}"

    def epilogue(p, tmp, nsets):
        ops = []
        k = 0
        for P in range(NT // 2):
            for r in range(3):
                R = tmp + (k % nsets) * 12
                I, D2 = R + 4, R + 8
                k += 1
                for dst, acc in ((R, accr), (I, acci)):
                    a0, a1 = acc(p, 2 * P, r), acc(p, 2 * P + 1, r)
                    if fused:
                        tr = tmp + nsets * 12
                        for x in range(4):
                            ops.append(f"v_accvgpr_read_b32 v{tr+x}, a{a0+x}")
                            ops.append(f"v_accvgpr_read_b32 v{tr+4+x}, a{a1+x}")
                        a0, a1 = tr, tr + 4
                    ops.append(f"v_cvt_pk_bf16_f32 v{dst}, v{a0}, v{a0+1}")
                    ops.append(f"v_cvt_pk_bf16_f32 v{dst+1}, v{a0+2}, v{a0+3}")
                    ops.append(f"v_cvt_pk_bf16_f32 v{dst+2}, v{a1}, v{a1+1}")
                    ops.append(f"v_cvt_pk_bf16_f32 v{dst+3}, v{a1+2}, v{a1+3}")
                for x in range(4):
                    ops.append(f"v_mov_b32 v{D2+x}, v{R+x}")
                ops.append(f"s_add_u32 s35, s33, {r*16*YROW + (P + p*CTP//2)*Y_CG}")
                for x in range(4):
                    ops.append(f"v_mov_b32_dpp v{D2+x}, v{I+x} row_ror:8 row_mask:0xf bank_mask:0x3")
                for x in range(4):
                    ops.append(f"v_mov_b32_dpp v{R+x}, v{I+x} row_ror:8 row_mask:0xf bank_mask:0xc")
                ops.append(f"buffer_store_dwordx4 v[{R}:{R+3}], v{vY1}, s[{sY}:{sY+3}], s35 offen")
                ops.append(f"buffer_store_dwordx4 v[{D2}:{D2+3}], v{vY2}, s[{sY}:{sY+3}], s35 offen")
        return ops

    st_.stamp()
    a.e("s_barrier")
    st_.stamp()
    for op in reads(0):
        a.e(op)
    a.e("s_waitcnt lgkmcnt(0)")
    a.e("s_barrier")
    NM = NT * 12
    st_.stamp()
    pending = []
    for s in range(NSTEP):
        if s in ((1, 4, 8, 12) if NP == 1 else (4, 12, 16, 24)): st_.stamp()
        st = s & 1
        p = s // KST
        first = s % KST == 0
        if first and p > 0:
            pending = epilogue(p - 1, EP, 2)
        mf = []
        for t in range(NT):
            for r in range(3):
                mf.append(mfma(accr(p, t, r), G(st, t, 0), U(st, r, 0), None if first else accr(p, t, r)))
        for t in range(NT):
            for r in range(3):
                mf.append(mfma(acci(p, t, r), G(st, t, 0), U(st, r, 1), None if first else acci(p, t, r)))
        for t in range(NT):
            for r in range(3):
                mf.append(mfma(acci(p, t, r), G(st, t, 1), U(st, r, 0), acci(p, t, r)))
        for t in range(NT):
            for r in range(3):
                mf.append(mfma(accr(p, t, r), G(st, t, 1), U(st, r, 1), accr(p, t, r)))
        fill = [[] for _ in range(NM)]
        rd = reads(s + 1) if s + 1 < NSTEP else []
        rstep = 2 if NT == 4 else 1
        for i, op in enumerate(rd):
            fill[i * rstep].append(op)
        xs = [f"v_xor_b32 v{U(st, r, 1)+k}, s34, v{U(st, r, 1)+k}" for r in range(3) for k in range(4)]
        g3 = 2 * NT * 3
        per = 2
        for i, op in enumerate(xs):
            fill[g3 + i // per].append(op)
        assert g3 + (len(xs) - 1) // per <= 3 * NT * 3 - 1
        if pending:
            slots = [i for i in range(NM) if not (g3 <= i < g3 + 6) and (i >= 8 or not first)]
            for i in slots:
                if pending: fill[i].append(pending.pop(0))
        barpos = NM - (8 if NT == 4 else 4)
        for i in range(NM):
            if "nomfma" not in exp:
                a.e(mf[i])
            for op in fill[i]:
                a.e(op)
            if i == barpos and s + 1 < NSTEP:
                if G2 and s == 3:
                    a.e("s_waitcnt vmcnt(0)")
                a.e("s_waitcnt lgkmcnt(0)")
                if s + 1 <= NSTEP - 2:
                    a.e("s_barrier")
    assert not pending
    st_.stamp()
    a.e("s_nop 7")
    a.e("s_nop 7")
    LDSEP = YBM and NP == 1 and "ldsep" in exp.split(",")
    if LDSEP:
        RB = NCT * 64
        OTP = RB + 16
        OTB = ((NSTEP - 1) % S + 1) * SLOT if ((NSTEP - 1) % S + 1) * SLOT + 96 * OTP <= S * SLOT else 0
        assert OTB + 96 * OTP <= S * SLOT and not (OTB <= ((NSTEP - 1) % S) * SLOT < OTB + 96 * OTP)
        vO = vT + 9
        a.e(f"s_lshr_b32 s29, s{sW}, 1")
        a.e(f"s_and_b32 s30, s{sW}, 1")
        a.e(f"s_mul_i32 s29, s29, {48*OTP}")
        a.e(f"s_mul_i32 s30, s30, {(NT//2)*128}")
        a.e("s_add_u32 s29, s29, s30")
        a.e(f"s_add_u32 s29, s29, {OTB}")
        a.e(f"v_mul_u32_u24 v{vO}, {OTP}, v{vT}")
        a.e(f"v_lshl_add_u32 v{vO}, v{vT+1}, 4, v{vO}")
        a.e(f"v_add_u32 v{vO}, s29, v{vO}")
        k = 0
        for ri in (1, 0):
            acc = acci if ri else accr
            for P in range(NT // 2):
                for r in range(3):
                    d = FR0 + (k % 6) * 4
                    k += 1
                    a0, a1 = acc(0, 2 * P, r), acc(0, 2 * P + 1, r)
                    if fused:
                        tr = FR0 + 24
                        for x in range(4):
                            a.e(f"v_accvgpr_read_b32 v{tr+x}, a{a0+x}")
                            a.e(f"v_accvgpr_read_b32 v{tr+4+x}, a{a1+x}")
                        a0, a1 = tr, tr + 4
                    a.e(f"v_cvt_pk_bf16_f32 v{d}, v{a0}, v{a0+1}")
                    a.e(f"v_cvt_pk_bf16_f32 v{d+1}, v{a0+2}, v{a0+3}")
                    a.e(f"v_cvt_pk_bf16_f32 v{d+2}, v{a1}, v{a1+1}")
                    a.e(f"v_cvt_pk_bf16_f32 v{d+3}, v{a1+2}, v{a1+3}")
                    a.e(f"ds_write_b128 v{vO}, v[{d}:{d+3}] offset:{r*16*OTP + P*128 + ri*64}")
        a.e("s_waitcnt lgkmcnt(0)")
        a.e("s_barrier")
        a.e(f"s_mov_b32 s37, s{sW}")
        a.e(f"s_branch L_{name}_drain")
    else:
        for op in epilogue(NP - 1, FR0, 3):
            a.e(op)
    if fused:
        a.e("s_waitcnt vmcnt(0)")
        a.e("s_barrier")
        a.e(f"s_cmp_lg_u32 s{sW}, 0")
        a.e(f"s_cbranch_scc1 L_{name}_noflag")
        a.add64(sA, 4, WS_TAB)
        a.e(f"s_mov_b32 s{sA+2}, {TAB_END}")
        a.e(f"s_mov_b32 s{sA+3}, 0x00020000")
        a.e("s_lshl_b32 s29, s26, 7")
        a.e(f"s_lshl_b32 s30, s{sBin}, 2")
        a.e("s_add_u32 s29, s29, s30")
        a.e("s_add_u32 s29, s29, s27")
        a.e("s_lshl_b32 s29, s29, 2")
        a.e(f"s_add_u32 s29, s29, {TAB_FLG}")
        a.e("v_mov_b32 v0, 1")
        a.e("v_mov_b32 v1, 0")
        a.e("s_mov_b64 exec, 1")
        a.e(f"buffer_store_dword v0, v1, s[{sA}:{sA+3}], s29 offen sc1")
        a.e("s_mov_b64 exec, -1")
        a.label(f"L_{name}_noflag")
    if st_.on:
        st_.stamp()
        a.e("s_waitcnt vmcnt(0)")
        st_.stamp()
        st_.dump(int(exp.split("wg=")[1].split(",")[0]) if "wg=" in exp else 0, sW, 0, f"L_{name}_nodump")
    a.end()

    a.label(f"L_{name}_loader")
    a.e(f"s_sub_u32 s{sW}, s{sW}, 4")
    vA_, vB_ = 2, 3
    a.e("v_and_b32 v1, 63, v0")
    a.e("v_lshrrev_b32 v4, 3, v1")
    a.e("v_and_b32 v5, 7, v1")
    a.e("v_xor_b32 v5, v5, v4")
    a.e("v_lshlrev_b32 v5, 4, v5")
    a.e(f"v_lshl_add_u32 v{vA_}, v4, 11, v5")
    a.e(f"v_lshlrev_b32 v{vB_}, 4, v1")
    for qi in range(3):
        a.e(f"s_add_u32 s24, s{sW}, {4*qi}")
        if G2 and qi == 2:
            a.e("s_min_u32 s24, s24, 10")
        a.e(f"s_lshl_b32 s{40+qi}, s24, 10")
        a.e(f"s_lshl_b32 s{43+qi}, s24, 14")
    a.e(f"s_mul_i32 s46, s{sW}, {BPW*1024}")
    a.e(f"s_add_u32 s47, s46, {ABYTES}")

    def issue(step):
        sl = step % S
        p, k = step // KST, step % KST
        for qi in range(3):
            a.e(f"s_add_u32 m0, s{40+qi}, {sl*SLOT}")
            a.e(f"s_add_u32 s24, s{43+qi}, {k*128}")
            a.e(f"buffer_load_dwordx4 v{vA_}, s[{sA}:{sA+3}], s24 offen lds")
            a.vm_issue(step)
        a.e(f"s_add_u32 m0, s47, {sl*SLOT}")
        a.e(f"s_add_u32 s24, s46, {k*32768 + p*CTP*2048}")
        for x in range(BPW):
            a.e(f"buffer_load_dwordx4 v{vB_}, s[{sB}:{sB+3}], s24 offen offset:{x*1024} lds")
            a.vm_issue(step)

    sWt, sG = 48, 52
    AF, BF, DD, PK = 36, 52, 84, 116

    def g2_setup():
        lane = 1
        a.e("s_lshr_b32 s58, s2, 4")
        a.e("s_bfe_u32 s59, s2, 0x20002")
        a.e("s_and_b32 s60, s2, 3")
        a.add64(sG, 4, WS_GH2)
        a.e(f"s_mov_b32 s{sG+2}, {32*GBIN}")
        a.e(f"s_mov_b32 s{sG+3}, 0x00020000")
        t = 8
        a.e(f"v_and_b32 v{t}, 15, v{lane}")
        a.e(f"v_or_b32 v{t+1}, 1, v{t}")
        a.e(f"s_lshl_b32 s66, s{sW}, 4")
        a.e(f"v_add_u32 v{t+1}, s66, v{t+1}")
        a.e(f"v_cvt_f32_u32 v{t+1}, v{t+1}")
        a.e(f"v_mul_f32 v{t+1}, 0x3c000000, v{t+1}")
        a.e(f"v_bfe_u32 v{t+2}, v{lane}, 4, 1")
        a.e(f"v_lshlrev_b32 v{t+2}, 3, v{t+2}")
        a.e(f"v_cvt_f32_u32 v{t+2}, v{t+2}")
        a.e(f"v_and_b32 v{t}, 1, v{t}")
        a.e(f"v_cvt_f32_u32 v{t}, v{t}")
        a.e(f"v_mul_f32 v{t}, 0x3f400000, v{t}")
        a.e(f"v_fma_f32 v{t+3}, v{t+1}, v{t+2}, v{t}")
        vals = t + 4
        cos_vals(a, vals, t + 3, t + 1, 8, None)
        for x in range(8):
            a.e(f"v_mul_f32 v{vals+x}, 0x3d000000, v{vals+x}")
        hi, lo = 20, 24
        for x in range(4):
            a.e(f"v_cvt_pk_bf16_f32 v{hi+x}, v{vals+2*x}, v{vals+2*x+1}")
        for x in range(4):
            a.e(f"v_lshlrev_b32 v28, 16, v{hi+x}")
            a.e(f"v_and_b32 v29, 0xffff0000, v{hi+x}")
            a.e(f"v_sub_f32 v28, v{vals+2*x}, v28")
            a.e(f"v_sub_f32 v29, v{vals+2*x+1}, v29")
            a.e(f"v_cvt_pk_bf16_f32 v{lo+x}, v28, v29")
        a.e(f"v_cmp_gt_u32 vcc, 32, v{lane}")
        a.e("s_nop 1")
        for x in range(4):
            a.e(f"v_cndmask_b32 v{hi+x}, v{lo+x}, v{hi+x}, vcc")
        TB = GX + 16 * 1152
        a.e(f"v_lshlrev_b32 v28, 4, v{lane}")
        a.e(f"v_add_u32 v28, {TB}, v28")
        a.e(f"s_lshl_b32 s66, s{sW}, 10")
        a.e(f"v_add_u32 v29, s66, v28")
        a.e(f"ds_write_b128 v29, v[{hi}:{hi+3}]")
        a.e(f"v_bfe_u32 v30, v{lane}, 2, 2")
        a.e(f"v_bfe_u32 v31, v{lane}, 4, 1")
        a.e("v_lshl_add_u32 v32, v31, 3, v30")
        a.e("v_mul_u32_u24 v32, 1152, v32")
        a.e("v_lshrrev_b32 v30, 1, v30")
        a.e("v_lshl_add_u32 v30, v31, 1, v30")
        a.e("v_lshlrev_b32 v30, 1, v30")
        a.e(f"v_bfe_u32 v31, v{lane}, 1, 1")
        a.e(f"s_lshl_b32 s66, s{sW}, 1")
        a.e("v_add_u32 v31, s66, v31")
        a.e("v_xor_b32 v30, v30, v31")
        a.e("v_lshl_add_u32 v32, v30, 4, v32")
        a.e(f"v_and_b32 v30, 1, v{lane}")
        a.e("v_lshl_add_u32 v32, v30, 3, v32")
        a.e(f"v_add_u32 v32, {GX}, v32")
        a.e(f"v_lshrrev_b32 v30, 4, v{lane}")
        a.e(f"s_mov_b32 s66, {2*GBIN}")
        a.e("v_mul_lo_u32 v30, v30, s66")
        a.e(f"v_and_b32 v31, 15, v{lane}")
        a.e("v_lshl_add_u32 v33, v31, 4, v30")
        a.e("s_lshl_b32 s67, s58, 15")
        a.e("s_lshl_b32 s66, s60, 2")
        a.e(f"s_add_u32 s66, s66, s{sW}")
        a.e("s_lshl_b32 s66, s66, 11")
        a.e("s_add_u32 s67, s67, s66")
        a.e("s_lshl_b32 s66, s59, 8")
        a.e("s_add_u32 s67, s67, s66")
        a.e("s_waitcnt lgkmcnt(0)")

    def g2_reads():
        for it in range(4):
            a.e(f"ds_read_b128 v[{AF+4*it}:{AF+4*it+3}], v28 offset:{it*1024}")
        for c in range(8):
            for xx in range(2):
                a.e(f"ds_read_b64_tr_b16 v[{BF+4*c+2*xx}:{BF+4*c+2*xx+1}], v32 offset:{c*128 + xx*4*1152}")
            if c == 4:
                a.e("s_waitcnt lgkmcnt(8)")

    def g2_mfma(it):
        if it == 0:
            a.e("s_waitcnt lgkmcnt(0)")
        for c in range(8):
            d = DD + 4 * c
            a.e(f"v_mfma_f32_16x16x32_bf16 v[{d}:{d+3}], v[{AF+4*it}:{AF+4*it+3}], v[{BF+4*c}:{BF+4*c+3}], 0")

    def g2_store(it):
        for e in range(4):
            pk = PK + 4 * (e & 1)
            for x in range(4):
                a.e(f"v_cvt_pk_bf16_f32 v{pk+x}, v{DD+8*x+e}, v{DD+8*x+4+e}")
            a.e(f"s_add_u32 s66, s67, {(8*it + (e >> 1))*GBIN + (e & 1)*1024}")
            a.e(f"buffer_store_dwordx4 v[{pk}:{pk+3}], v33, s[{sG}:{sG+3}], s66 offen")
            a.vm_issue(("GS", it))
            a.e("s_nop 1")

    g2_sched = {}
    if G2:
        g2_sched = {4: g2_reads}
        for it in range(4):
            g2_sched[5 + 2 * it] = (lambda i=it: g2_mfma(i))
            g2_sched[6 + 2 * it] = (lambda i=it: g2_store(i))

    a.vm = []
    NINIT = int(exp.split("ninit=")[1].split(",")[0]) if "ninit=" in exp else 2
    if "ninit2=" in exp and conv == 2: NINIT = int(exp.split("ninit2=")[1].split(",")[0])
    NINIT = min(NINIT, S - 1)
    for s in range(NINIT):
        issue(s)
    if G2: g2_setup()
    a.wait(vm_tags=(0,))
    a.e("s_barrier")
    nxt = NINIT
    issue(nxt); nxt += 1
    for s in range(NSTEP - 1):
        a.wait(vm_tags=(s + 1,))
        a.e("s_barrier")
        cnt = 0
        while nxt <= min(s + S, NSTEP - 1) and cnt < 2:
            issue(nxt); nxt += 1; cnt += 1
        if s in g2_sched: g2_sched[s]()
        if conv == 1 and not G2 and s == 11 and "w2pf" in exp.split(","):
            a.e("s_load_dwordx2 s[56:57], s[0:1], 16")
            a.e("s_lshr_b32 s58, s2, 4")
            a.e("s_bfe_u32 s59, s2, 0x20002")
            a.e("s_and_b32 s60, s2, 3")
            a.e("s_lshr_b32 s61, s58, 3")
            a.e("s_and_b32 s62, s58, 7")
            a.e("v_lshrrev_b32 v6, 3, v1")
            a.e("s_lshl_b32 s63, s59, 3")
            a.e("s_lshl_b32 s64, s62, 5")
            a.e("s_add_u32 s63, s63, s64")
            a.e("v_add_u32 v6, s63, v6")
            a.e("v_lshlrev_b32 v6, 9, v6")
            a.e("v_and_b32 v7, 7, v1")
            a.e("v_lshl_add_u32 v6, v7, 4, v6")
            a.e("s_lshl_b32 s64, s60, 7")
            a.e("v_add_u32 v6, s64, v6")
            a.e(f"s_lshl_b32 s64, s{sW}, 3")
            a.e("s_add_u32 s64, s64, s61")
            a.e("s_lshl_b32 s64, s64, 17")
            a.e("s_waitcnt lgkmcnt(0)")
            a.srd(48, "s56", "s57", 31 * 131072)
            for jj in range(4):
                a.e(f"s_add_u32 s66, s64, {jj*2*131072}")
                a.e(f"buffer_load_dwordx4 v[{8+4*jj}:{8+4*jj+3}], v6, s[48:51], s66 offen")
                a.vm_issue("W2PF")
        if fused and s == 9 and "nol2pf" not in exp:
            a.add64(48, 4, WS_TAB)
            a.e(f"s_mov_b32 s50, {TAB_END}")
            a.e("s_mov_b32 s51, 0x00020000")
            a.e("s_lshr_b32 s52, s2, 3")
            a.e("s_and_b32 s52, s52, 31")
            a.e("s_lshl_b32 s52, s52, 13")
            a.e(f"s_add_u32 s53, s52, {TAB_WF}")
            a.e("s_cmp_lt_u32 s52, 32768")
            a.e("s_cselect_b32 s52, s52, 0x7f000000")
            a.e(f"s_cmp_eq_u32 s{sW}, 0")
            a.e("s_cselect_b32 s52, s53, s52")
            a.e("v_lshlrev_b32 v6, 7, v1")
            a.e(f"s_cmp_ge_u32 s{sW}, 2")
            a.e(f"s_cbranch_scc1 L_{name}_nopf")
            a.e("buffer_load_dword v7, v6, s[48:51], s52 offen")
            a.label(f"L_{name}_nopf")
    assert nxt == NSTEP
    if LDSEP:
        a.e(f"s_mul_i32 s29, s{sM0}, {YROW}")
        a.e(f"s_add_u32 s29, s29, {WS_Y}")
        a.e(f"s_add_u32 s{sY}, s4, s29")
        a.e(f"s_addc_u32 s{sY+1}, s5, 0")
        a.e(f"s_mul_i32 s{sY+2}, s28, {YROW}")
        a.e(f"s_mov_b32 s{sY+3}, 0x00020000")
        a.e(f"s_add_u32 s37, s{sW}, 4")
        a.e("s_barrier")
        a.label(f"L_{name}_drain")
        LPR = RB // 16
        RPI = 64 // LPR
        NI = 96 // RPI // 8
        a.e("v_mbcnt_lo_u32_b32 v1, -1, 0")
        a.e("v_mbcnt_hi_u32_b32 v1, -1, v1")
        a.e(f"v_lshrrev_b32 v2, {LPR.bit_length()-1}, v1")
        a.e(f"v_and_b32 v3, {LPR-1}, v1")
        a.e(f"s_mul_i32 s29, s37, {NI*RPI}")
        a.e("v_add_u32 v2, s29, v2")
        a.e(f"v_mul_u32_u24 v4, {OTP}, v2")
        a.e("v_lshl_add_u32 v4, v3, 4, v4")
        a.e(f"v_add_u32 v4, {OTB}, v4")
        a.e(f"v_mul_u32_u24 v5, {YROW}, v2")
        a.e("v_lshl_add_u32 v5, v3, 4, v5")
        a.e(f"s_mul_i32 s29, s{sBin}, {Y_BIN}")
        a.e(f"s_mul_i32 s30, s27, {RB}")
        a.e("s_add_u32 s29, s29, s30")
        for i in range(NI):
            a.e(f"ds_read_b128 v[{8+4*i}:{8+4*i+3}], v4 offset:{i*RPI*OTP}")
        for i in range(NI):
            a.e(f"s_waitcnt lgkmcnt({NI-1-i})")
            a.e(f"s_add_u32 s30, s29, {i*RPI*YROW}")
            a.e(f"buffer_store_dwordx4 v[{8+4*i}:{8+4*i+3}], v5, s[{sY}:{sY+3}], s30 offen")
        if fused:
            raise NotImplementedError("fused + LDS epilogue: flag hand-off not wired")
        a.end()
    a.label(f"L_{name}_done")
    a.e("s_endpgm")
    if "consfirst" not in exp.split(","):
        i_load = a.L.index(f"L_{name}_loader:")
        cons, load = a.L[i_cons:i_load], a.L[i_load + 1:]
        head = a.L[:i_cons - 2] + [f"    s_cmp_lt_u32 s{sW}, 4", f"    s_cbranch_scc1 L_{name}_consumer"]
        a.L = head + load + [f"L_{name}_consumer:"] + cons
    return a.text(), LDS, NV
```

```python
from asmlib import Asm, Stamps, f2u
from layout import *
from mid import gelu_group2, gelu_group_pk, GK0, GK1

LOG2E2 = 2.8853900817779268
ATHR = 40.0
BTHR = 84.0


def joint_kernel(name, exp="", fused=False):
    a = Asm()
    NWG = 250 if "nojmap" in exp else 256
    sW = 20
    sR = 21
    STG = 0
    JB = [0, 16384, 32768]
    CSL = 49152
    FB = 65536
    EAP = 1056
    EAT = FB + 16384
    OTP = 528
    OT = [EAT + 32 * EAP, EAT + 32 * EAP + 32 * OTP]
    LDS = OT[1] + 32 * OTP
    sY, sT, sO = 8, 12, 16
    a.label(name)
    if not fused:
        a.e(f"s_cmp_ge_u32 s2, {NWG}")
        a.e(f"s_cbranch_scc1 L_{name}_done")
    if "trace" in exp and a.trace_region is None: a.trace_begin(4)
    if "dbgtime" in exp: a.trace_begin(4, dbg=True)
    st_ = Stamps(a, "stamp" in exp)
    HS = "hstamp" in exp
    st_.begin()

    def ms():
        if not HS: st_.stamp()

    def hs():
        if HS: st_.stamp()
    a.e("s_load_dwordx2 s[6:7], s[0:1], 72")
    a.e("s_load_dwordx2 s[4:5], s[0:1], 56")
    a.e(f"v_readfirstlane_b32 s{sW}, v0")
    a.e(f"s_lshr_b32 s{sW}, s{sW}, 6")
    if "hfirst" in exp.split(","):
        a.e(f"s_xor_b32 s{sW}, s{sW}, 4")
    a.e(f"s_and_b32 s{sR}, s{sW}, 3")
    if "nojmap" in exp:
        a.e("s_mov_b32 s23, s2")
    else:
        a.e("s_and_b32 s23, s2, 7")
        a.e("s_lshl_b32 s23, s23, 5")
        a.e("s_lshr_b32 s22, s2, 3")
        a.e("s_add_u32 s23, s23, s22")
        a.e("s_cmp_ge_u32 s23, 250")
        a.e(f"s_cbranch_scc1 L_{name}_done")
    a.e("s_cmp_ge_u32 s23, 125")
    a.e("s_cselect_b32 s24, 1, 0")
    a.e("s_mul_i32 s25, s24, 125")
    a.e("s_sub_u32 s25, s23, s25")
    for jt in range(2):
        a.e(f"s_lshl_b32 s26, s25, 1")
        a.e(f"s_add_u32 s26, s26, {jt}")
        a.e(f"s_mul_i32 s27, s26, 171")
        a.e(f"s_lshr_b32 s{28+jt}, s27, 9")
        a.e(f"s_mul_i32 s27, s{28+jt}, 3")
        a.e(f"s_sub_u32 s{30+jt}, s26, s27")
    lane = 1
    a.e(f"v_and_b32 v{lane}, 63, v0")
    a.e(f"v_lshlrev_b32 v5, 4, v{lane}")
    a.e("s_waitcnt lgkmcnt(0)")
    a.add64(sT, 6, WS_TAB)
    a.e(f"s_mov_b32 s{sT+2}, {TAB_END}")
    a.e(f"s_mov_b32 s{sT+3}, 0x00020000")
    a.e("s_mul_i32 s36, s24, 4000")
    a.e("s_lshl_b32 s37, s25, 5")
    a.e("s_add_u32 s36, s36, s37")
    a.e("s_lshl_b32 s36, s36, 12")
    a.e(f"s_add_u32 s{sO}, s4, s36")
    a.e(f"s_addc_u32 s{sO+1}, s5, 0")
    a.e(f"s_mov_b32 s{sO+2}, 131072")
    a.e(f"s_mov_b32 s{sO+3}, 0x00020000")
    a.e(f"s_lshl_b32 s38, s{sR}, 15")

    def w_load(i, tab):
        kp, it = i >> 1, i & 1
        r_ = (it * 16 + kp) * 4
        a.e(f"s_add_u32 s36, s38, {tab + (it*16+kp)*1024}")
        a.e(f"buffer_load_dwordx4 a[{r_}:{r_+3}], v5, s[{sT}:{sT+3}], s36 offen")
        a.vm_issue(("W", i))

    EBV = 96
    FI = 8
    if fused:
        for jt in range(2):
            a.e(f"s_lshl_b32 s36, s{30+jt}, 11")
            a.e(f"s_add_u32 s36, s36, {TAB_FI}")
            for kk in range(2):
                r_ = FI + (jt * 2 + kk) * 4
                a.e(f"buffer_load_dwordx4 v[{r_}:{r_+3}], v5, s[{sT}:{sT+3}], s36 offen offset:{kk*1024}")
        a.e(f"v_and_b32 v28, 7, v{lane}")
        a.e("v_lshlrev_b32 v28, 10, v28")
        a.e(f"v_lshrrev_b32 v29, 5, v{lane}")
        a.e("v_lshl_add_u32 v28, v29, 4, v28")
        a.e("s_lshl_b32 s36, s24, 13")
        a.e(f"s_lshl_b32 s37, s{sR}, 8")
        a.e("s_add_u32 s36, s36, s37")
        a.e(f"s_add_u32 s45, s36, {TAB_BP}")
        a.e(f"s_cmp_ge_u32 s{sW}, 4")
        a.e(f"s_cbranch_scc1 L_{name}_hpre")
        a.vm = []
        ms()
        for i in range(32):
            w_load(i, TAB_WO)
            if i in (7, 15, 23): ms()
        ms()
        a.e(f"s_cmp_lg_u32 s{sW}, 0")
        a.e(f"s_cbranch_scc1 L_{name}_phA")
        a.e(f"v_lshlrev_b32 v29, 3, v{lane}")
        a.e("s_lshl_b32 s36, s24, 9")
        a.e(f"s_add_u32 s36, s36, {TAB_FLG}")
        a.e("s_mov_b32 s47, 0")
        PD = [(24, 25), (26, 27), (30, 31), (6, 7)]
        for d in range(3):
            a.e(f"buffer_load_dwordx2 v[{PD[d][0]}:{PD[d][1]}], v29, s[{sT}:{sT+3}], s36 offen sc1")
            a.e("s_sleep 3")
        a.label(f"L_{name}_poll")
        for d in range(4):
            n = PD[(d + 3) % 4]
            a.e(f"buffer_load_dwordx2 v[{n[0]}:{n[1]}], v29, s[{sT}:{sT+3}], s36 offen sc1")
            a.e("s_waitcnt vmcnt(3)")
            a.e(f"v_cmp_ne_u32 vcc, 0, v{PD[d][0]}")
            a.e(f"v_cmp_ne_u32 s[42:43], 0, v{PD[d][1]}")
            a.e("s_nop 1")
            a.e("s_and_b64 s[42:43], s[42:43], vcc")
            a.e("s_cmp_eq_u64 s[42:43], -1")
            a.e(f"s_cbranch_scc1 L_{name}_phA")
            a.e("s_sleep 3")
        a.e("s_add_u32 s47, s47, 1")
        a.e("s_cmp_ge_u32 s47, 0x2000")
        a.e(f"s_cbranch_scc1 L_{name}_phA")
        a.e(f"s_branch L_{name}_poll")
        a.label(f"L_{name}_hpre")
        a.vm = []
        for it in range(2):
            for q in range(4):
                r_ = EBV + (it * 4 + q) * 4
                a.e(f"buffer_load_dwordx4 v[{r_}:{r_+3}], v28, s[{sT}:{sT+3}], s45 offen offset:{(32*it + 8*q)*4}")
                a.vm_issue("BP")
        for i in range(32):
            w_load(i, TAB_WF)
        a.wait(vm_tags=("BP",))
        a.e(f"v_max3_f32 v29, |v{EBV}|, |v{EBV+1}|, |v{EBV+2}|")
        for i in range(3, 31, 2):
            a.e(f"v_max3_f32 v29, v29, |v{EBV+i}|, |v{EBV+i+1}|")
        a.e(f"v_max_f32 v29, v29, |v{EBV+31}|")
        a.e(f"s_mov_b32 s41, 0x{f2u(BTHR):08x}")
        a.e("v_cmp_lt_f32 s[48:49], s41, v29")
        for i in range(32):
            a.e(f"v_exp_f32 v{EBV+i}, v{EBV+i}")
        hs()
        a.label(f"L_{name}_phA")
        a.e(f"v_lshrrev_b32 v2, 3, v{lane}")
        a.e(f"v_mul_u32_u24 v2, {Y_BIN}, v2")
        a.e(f"v_bfe_u32 v3, v{lane}, 2, 1")
        a.e("v_lshl_add_u32 v2, v3, 6, v2")
        a.e(f"v_lshrrev_b32 v3, 5, v{lane}")
        a.e("v_lshlrev_b32 v3, 1, v3")
        a.e(f"v_and_b32 v4, 3, v{lane}")
        a.e("v_xor_b32 v3, v3, v4")
        a.e("v_lshl_add_u32 v2, v3, 4, v2")
        a.e(f"s_lshl_b32 s34, s{sW}, 13")
        a.e(f"s_mul_i32 s35, s{sW}, {Y_CG}")
        a.e(f"s_mul_i32 s33, s24, {NB2*YROW}")
        a.e(f"s_add_u32 s33, s33, {WS_YH2}")
        a.e(f"s_add_u32 s{sY}, s6, s33")
        a.e(f"s_addc_u32 s{sY+1}, s7, 0")
        a.e(f"s_mov_b32 s{sY+2}, {NB2*YROW}")
        a.e(f"s_mov_b32 s{sY+3}, 0x00020000")
        rr, gg, cc = 32, 33, 34
        a.e(f"v_bfe_u32 v{rr}, v{lane}, 2, 2")
        a.e(f"v_lshrrev_b32 v{gg}, 4, v{lane}")
        a.e(f"v_and_b32 v{cc}, 3, v{lane}")
        vI = [[36, 37], [38, 39]]
        a.e(f"v_lshl_add_u32 v35, v{gg}, 3, v{rr}")
        a.e("v_lshlrev_b32 v40, 6, v35")
        a.e(f"v_and_b32 v41, 1, v{gg}")
        a.e("v_lshlrev_b32 v41, 1, v41")
        a.e(f"v_lshrrev_b32 v42, 1, v{cc}")
        a.e("v_xor_b32 v41, v41, v42")
        a.e("v_lshl_add_u32 v40, v41, 4, v40")
        a.e(f"v_and_b32 v42, 1, v{cc}")
        a.e("v_lshl_add_u32 v40, v42, 3, v40")
        a.e("s_cmp_eq_u32 s28, s29")
        a.e("s_cselect_b32 s46, 0, 4096")
        a.e(f"v_add_u32 v{vI[0][0]}, s34, v40")
        a.e(f"v_xor_b32 v{vI[0][1]}, 32, v{vI[0][0]}")
        a.e(f"v_add_u32 v{vI[1][0]}, s46, v{vI[0][0]}")
        a.e(f"v_add_u32 v{vI[1][1]}, s46, v{vI[0][1]}")
        vFW = 43
        a.e(f"v_lshrrev_b32 v41, 1, v{gg}")
        a.e("v_lshlrev_b32 v41, 10, v41")
        a.e(f"v_and_b32 v42, 1, v{gg}")
        a.e("v_lshl_add_u32 v41, v42, 9, v41")
        a.e(f"v_and_b32 v42, 15, v{lane}")
        a.e("v_lshl_add_u32 v41, v42, 4, v41")
        a.e(f"s_lshl_b32 s36, s{sW}, 11")
        a.e(f"s_add_u32 s36, s36, {FB}")
        a.e(f"v_add_u32 v{vFW}, s36, v41")
        vK0 = 44
        a.e(f"s_mov_b32 s40, 0x{f2u(GK1):08x}")
        a.e(f"v_mov_b32 v{vK0}, 0x{f2u(GK0):08x}")
        a.e("s_barrier")
        ms()
        for jt in (1, 0):
            if jt == 1:
                a.e("s_cmp_eq_u32 s28, s29")
                a.e(f"s_cbranch_scc1 L_{name}_same")
            a.e(f"s_mul_i32 s36, s{28+jt}, {YROW}")
            a.e("s_add_u32 s36, s36, s35")
            for q in range(4):
                a.e(f"s_add_u32 m0, s34, {STG + jt*4096 + q*1024}")
                a.e(f"s_add_u32 s37, s36, {q*8*Y_BIN}")
                a.e(f"buffer_load_dwordx4 v2, s[{sY}:{sY+3}], s37 offen lds")
            if jt == 1:
                a.label(f"L_{name}_same")
        a.e("s_waitcnt vmcnt(0)")
        ms()
        AA, DD, TT, PK = [48, 80], 64, 72, 24
        for jt in range(2):
            for t in range(2):
                for kk in range(2):
                    r_ = AA[jt] + (t * 2 + kk) * 4
                    for xx in range(2):
                        a.e(f"ds_read_b64_tr_b16 v[{r_+2*xx}:{r_+2*xx+1}], v{vI[jt][t]} offset:{kk*2048 + xx*256}")
            if jt == 0:
                a.e("s_waitcnt lgkmcnt(0)")
        for jt in range(2):
            if jt == 1:
                a.e("s_waitcnt lgkmcnt(0)")
            for kk in range(2):
                for t in range(2):
                    d = DD + t * 4
                    r_ = AA[jt] + (t * 2 + kk) * 4
                    f = FI + (jt * 2 + kk) * 4
                    c = "0" if kk == 0 else f"v[{d}:{d+3}]"
                    a.e(f"v_mfma_f32_16x16x32_bf16 v[{d}:{d+3}], v[{r_}:{r_+3}], v[{f}:{f+3}], {c}")
            a.e("s_nop 7")
            xs = [DD + i for i in range(8)]
            gelu_group2(a, xs, TT, vK0, 40)
            for i in range(4):
                a.e(f"v_cvt_pk_bf16_f32 v{PK+i}, v{xs[2*i]}, v{xs[2*i+1]}")
            a.e(f"ds_write_b128 v{vFW}, v[{PK}:{PK+3}] offset:{jt*256}")
            a.e("s_nop 1")
        ms()
        a.e(f"s_cmp_ge_u32 s{sW}, 4")
        a.e(f"s_cbranch_scc1 L_{name}_helper")
        a.vm = []
        a.lg = []
        nw = 32
    else:
        a.e(f"s_cmp_ge_u32 s{sW}, 4")
        a.e(f"s_cbranch_scc1 L_{name}_helper")
        i_mstart = len(a.L)

        if "nol2pf" not in exp:
            a.e("s_lshr_b32 s36, s2, 3")
            a.e("s_and_b32 s36, s36, 31")
            a.e("s_lshl_b32 s36, s36, 13")
            a.e(f"s_add_u32 s36, s36, {TAB_WF}")
            a.e(f"v_lshlrev_b32 v6, 7, v{lane}")
            a.e(f"s_cmp_lg_u32 s{sW}, 0")
            a.e(f"s_cbranch_scc1 L_{name}_nopf")
            a.e(f"buffer_load_dword v7, v6, s[{sT}:{sT+3}], s36 offen")
            if "pf64" in exp.split(","):
                a.e(f"buffer_load_dword v7, v6, s[{sT}:{sT+3}], s36 offen offset:64")
            a.label(f"L_{name}_nopf")
        a.e(f"v_lshrrev_b32 v2, 3, v{lane}")
        a.e(f"v_mul_u32_u24 v2, {Y_BIN}, v2")
        a.e(f"v_bfe_u32 v3, v{lane}, 2, 1")
        a.e("v_lshl_add_u32 v2, v3, 6, v2")
        a.e(f"v_lshrrev_b32 v3, 5, v{lane}")
        a.e("v_lshlrev_b32 v3, 1, v3")
        a.e(f"v_and_b32 v4, 3, v{lane}")
        a.e("v_xor_b32 v3, v3, v4")
        a.e("v_lshl_add_u32 v2, v3, 4, v2")
        a.e(f"s_lshl_b32 s34, s{sR}, 14")
        a.e(f"s_mul_i32 s35, s{sR}, {2*Y_CG}")
        a.e(f"s_mul_i32 s33, s24, {NB2*YROW}")
        a.e(f"s_add_u32 s33, s33, {WS_YH2}")
        a.e(f"s_add_u32 s{sY}, s6, s33")
        a.e(f"s_addc_u32 s{sY+1}, s7, 0")
        a.e(f"s_mov_b32 s{sY+2}, {NB2*YROW}")
        a.e(f"s_mov_b32 s{sY+3}, 0x00020000")

        def ydma(jt):
            a.e(f"s_mul_i32 s36, s{28+jt}, {YROW}")
            a.e("s_add_u32 s36, s36, s35")
            for ci in range(2):
                for q in range(4):
                    a.e(f"s_add_u32 m0, s34, {STG + (jt*2+ci)*4096 + q*1024}")
                    a.e(f"s_add_u32 s37, s36, {ci*Y_CG + q*8*Y_BIN}")
                    a.e(f"buffer_load_dwordx4 v2, s[{sY}:{sY+3}], s37 offen lds")
                    if jt == 0:
                        a.vm_issue(("Y", ci))
        a.e("s_mov_b32 s46, 0")
        a.e("s_cmp_eq_u32 s28, s29")
        a.e(f"s_cbranch_scc1 L_{name}_same")
        ydma(1)
        a.e("s_mov_b32 s46, 8192")
        a.label(f"L_{name}_same")
        FI = 8
        for jt in range(2):
            a.e(f"s_lshl_b32 s36, s{30+jt}, 11")
            a.e(f"s_add_u32 s36, s36, {TAB_FI}")
            for kk in range(2):
                r_ = FI + (jt * 2 + kk) * 4
                a.e(f"buffer_load_dwordx4 v[{r_}:{r_+3}], v5, s[{sT}:{sT+3}], s36 offen offset:{kk*1024}")
                a.vm_issue("FI")
        ydma(0)
        nw_early = int(exp.split("woearly=")[1].split(",")[0]) if "woearly=" in exp else 0
        for i in range(nw_early):
            w_load(i, TAB_WO)
        rr, gg, cc = 32, 33, 34
        a.e(f"v_bfe_u32 v{rr}, v{lane}, 2, 2")
        a.e(f"v_lshrrev_b32 v{gg}, 4, v{lane}")
        a.e(f"v_and_b32 v{cc}, 3, v{lane}")
        vI = [[36, 37], [38, 39]]
        a.e(f"v_lshl_add_u32 v35, v{gg}, 3, v{rr}")
        a.e("v_lshlrev_b32 v40, 6, v35")
        a.e(f"v_and_b32 v41, 1, v{gg}")
        a.e("v_lshlrev_b32 v41, 1, v41")
        a.e(f"v_lshrrev_b32 v42, 1, v{cc}")
        a.e("v_xor_b32 v41, v41, v42")
        a.e("v_lshl_add_u32 v40, v41, 4, v40")
        a.e(f"v_and_b32 v42, 1, v{cc}")
        a.e("v_lshl_add_u32 v40, v42, 3, v40")
        a.e(f"v_add_u32 v{vI[0][0]}, s34, v40")
        a.e(f"v_xor_b32 v{vI[0][1]}, 32, v{vI[0][0]}")
        a.e(f"v_add_u32 v{vI[1][0]}, s46, v{vI[0][0]}")
        a.e(f"v_add_u32 v{vI[1][1]}, s46, v{vI[0][1]}")
        vFW = 43
        a.e(f"v_lshrrev_b32 v41, 1, v{gg}")
        a.e("v_lshlrev_b32 v41, 10, v41")
        a.e(f"v_and_b32 v42, 1, v{gg}")
        a.e("v_lshl_add_u32 v41, v42, 9, v41")
        a.e(f"v_and_b32 v42, 15, v{lane}")
        a.e("v_lshl_add_u32 v41, v42, 4, v41")
        a.e(f"s_lshl_b32 s36, s{sR}, 12")
        a.e(f"s_add_u32 s36, s36, {FB}")
        a.e(f"v_add_u32 v{vFW}, s36, v41")
        vK0 = 44
        a.e(f"s_mov_b32 s40, 0x{f2u(GK1):08x}")
        a.e(f"v_mov_b32 v{vK0}, 0x{f2u(GK0):08x}")
        a.e(f"s_mov_b32 s41, 0x{f2u(GK1):08x}")
        a.e(f"v_mov_b32 v{vK0+1}, 0x{f2u(GK0):08x}")
        ms()
        AA, DD, TT, PK = [48, 84], [64, 100], 72, [80, 108]
        units = [(jt, ci) for ci in range(2) for jt in range(2)]

        def a_reads(ui):
            jt, ci = units[ui]
            for t in range(2):
                for kk in range(2):
                    r_ = AA[ui & 1] + (t * 2 + kk) * 4
                    for xx in range(2):
                        a.e(f"ds_read_b64_tr_b16 v[{r_+2*xx}:{r_+2*xx+1}], v{vI[jt][t]} offset:{ci*4096 + kk*2048 + xx*256}")
                        a.lg_issue(("AR", ui))
        a.lg = []
        a.wait(vm_tags=(("Y", 0),))
        ms()
        a_reads(0)
        nwi = nw_early
        PACE = int(exp.split("pace=")[1].split(",")[0]) if "pace=" in exp else 0

        def paced(lines_start):
            nonlocal nwi
            body = a.L[lines_start:]
            del a.L[lines_start:]
            cnt = 0
            for ln in body:
                a.L.append(ln)
                cnt += 1
                if PACE and cnt % PACE == 0 and nwi < 32:
                    w_load(nwi, TAB_WO); nwi += 1

        for ui, (jt, ci) in enumerate(units):
            if ui == 1:
                a.wait(vm_tags=(("Y", 1),))
            a.wait(lg_tags=(("AR", ui),))
            for kk in range(2):
                for t in range(2):
                    d = DD[ui & 1] + t * 4
                    r_ = AA[ui & 1] + (t * 2 + kk) * 4
                    f = FI + (jt * 2 + kk) * 4
                    c = "0" if kk == 0 else f"v[{d}:{d+3}]"
                    a.e(f"v_mfma_f32_16x16x32_bf16 v[{d}:{d+3}], v[{r_}:{r_+3}], v[{f}:{f+3}], {c}")
            if ui + 1 < 4:
                a_reads(ui + 1)
            else:
                a.e("s_nop 7")
            xs = [DD[ui & 1] + i for i in range(8)]
            mark = len(a.L)
            if "pk" not in exp.split(","): gelu_group2(a, xs, TT, vK0, 40)
            else: gelu_group_pk(a, xs, TT, vK0, 40)
            if ui >= 1: paced(mark)
            pk = PK[ui & 1]
            for i in range(4):
                a.e(f"v_cvt_pk_bf16_f32 v{pk+i}, v{xs[2*i]}, v{xs[2*i+1]}")
            a.e(f"ds_write_b128 v{vFW}, v[{pk}:{pk+3}] offset:{ci*2048 + jt*256}")
            a.lg_issue(("FW", ui))
        ms()
        nw = nwi
    a.e("s_waitcnt lgkmcnt(0)")
    a.e("s_barrier")
    a.lg = []
    if "earlyprio" in exp:
        a.e("s_setprio 3")
    ms()
    NWO0 = 32 if (fused or "wofull" in exp) else (int(exp.split("nwo0=")[1].split(",")[0]) if "nwo0=" in exp else 32)
    ACC = [8, 40]
    CS = 72
    JR = 104
    NJR, PRE = 4, 3
    OP = 120
    vJR, vOW = 5, 6
    a.e(f"v_and_b32 v46, 31, v{lane}")
    a.e(f"v_mul_u32_u24 v47, {OTP}, v46")
    a.e(f"v_lshrrev_b32 v45, 5, v{lane}")
    a.e(f"v_lshl_add_u32 v47, v45, 4, v47")
    a.e(f"s_lshl_b32 s36, s{sR}, 7")
    a.e(f"s_add_u32 s36, s36, {OT[0]}")
    a.e(f"v_add_u32 v{vOW}, s36, v47")
    a.e(f"v_lshlrev_b32 v7, 6, v45")
    a.e(f"s_lshl_b32 s36, s{sR}, 8")
    a.e(f"s_add_u32 s36, s36, {TAB_CS}")
    for it in range(2):
        for x in range(4):
            a.e(f"buffer_load_dwordx4 v[{CS+16*it+4*x}:{CS+16*it+4*x+3}], v7, s[{sT}:{sT+3}], s36 offen offset:{it*128 + x*16}")
            a.vm_issue("CS")
    while nw < NWO0:
        w_load(nw, TAB_WO); nw += 1
    if "noprio" not in exp:
        a.e("s_setprio 1")
    ms()
    a.e("s_barrier")
    ms()
    a.lg = []

    def emit(op):
        s, tag = op
        if s == "WLOAD":
            w_load(tag, TAB_WO)
            return
        if s is not None:
            if "j_nostore" in exp and s.startswith("buffer_store"): return
        if tag and tag[0] == "wait_lg":
            a.wait(lg_tags=tag[1])
            return
        a.e(s)
        if tag:
            if tag[0] == "lg": a.lg_issue(tag[1])
            else: a.vm_issue(tag[1])

    def jread(i, k):
        r_ = JR + ((16 * i + k) % NJR) * 4
        a.e(f"ds_read_b128 v[{r_}:{r_+3}], v{vJR} offset:{JB[i % 3] + k*1024}")
        a.lg_issue(("JR", i, k))

    def out_wr(i):
        ops = []
        acc = ACC[i & 1]
        dlt = OT[i & 1] - OT[0]
        for it in range(2):
            for qp in range(2):
                r_ = OP + qp * 4
                for k in range(4):
                    s0 = acc + it * 16 + qp * 8 + 2 * k
                    ops.append((f"v_cvt_pk_bf16_f32 v{r_+k}, v{s0}, v{s0+1}", None))
                ops.append((f"ds_write_b128 v{vOW}, v[{r_}:{r_+3}] offset:{dlt + it*64 + qp*32}", ("lg", ("OW", i))))
        return ops

    MIDB = "midb" in exp.split(",")
    for k in range(PRE): jread(0, k)
    for u in range(8):
        acc = ACC[u & 1]
        per = [[] for _ in range(32)]
        if u > 0:
            ow = out_wr(u - 1)
            for i, op in enumerate(ow):
                per[4 + (i * (10 if MIDB else 20)) // len(ow)].append(op)
        if u == 0:
            for i, wi in enumerate(range(nw, 32)):
                per[i].append(("WLOAD", wi))
        for k in range(16):
            a.wait(lg_tags=(("JR", u, k),))
            if u == 0:
                a.wait(vm_tags=(("W", 2 * k + 1), "CS"))
            r_ = JR + ((16 * u + k) % NJR) * 4
            for it in range(2):
                d = acc + it * 16
                w_ = (it * 16 + k) * 4
                c = f"v[{CS+16*it}:{CS+16*it+15}]" if k == 0 else f"v[{d}:{d+15}]"
                a.e(f"v_mfma_f32_32x32x16_bf16 v[{d}:{d+15}], a[{w_}:{w_+3}], v[{r_}:{r_+3}], {c}")
                if it == 0:
                    if k + PRE < 16:
                        jread(u, k + PRE)
                    elif u + 1 < 8:
                        jread(u + 1, k + PRE - 16)
                for op in per[2 * k + it]: emit(op)
            if MIDB and k == 7 and u > 0:
                a.wait(lg_tags=(("OW", u - 1),))
                a.e("s_barrier")
            if k == 15:
                a.wait(lg_tags=(("OW", u - 1),))
                a.e("s_barrier")
        if u == 0: ms()
    ms()
    a.e("s_nop 7")
    a.e("s_nop 7")
    for op in out_wr(7): emit(op)
    a.wait(lg_tags=(("OW", 7),))
    a.e("s_barrier")
    if st_.on and not HS:
        ms()
        st_.dump(int(exp.split("wg=")[1].split(",")[0]) if "wg=" in exp else 0, sW, 0, f"L_{name}_nodump")
    a.end()

    def b_check_ops():
        ops = [f"v_max3_f32 v8, |v{EBV}|, |v{EBV+1}|, |v{EBV+2}|"]
        for i in range(3, 31, 2):
            ops.append(f"v_max3_f32 v8, v8, |v{EBV+i}|, |v{EBV+i+1}|")
        ops.append(f"v_max_f32 v8, v8, |v{EBV+31}|")
        ops.append(f"s_mov_b32 s41, 0x{f2u(BTHR):08x}")
        ops.append("v_cmp_lt_f32 s[42:43], s41, v8")
        for i in range(32):
            ops.append(f"v_exp_f32 v{EBV+i}, v{EBV+i}")
        return ops

    a.label(f"L_{name}_helper")
    late_check = []
    if fused:
        a.vm = []
        a.lg = []
        nw = 32
        vBP, sBP = 28, 45
        a.e("s_mov_b64 s[42:43], s[48:49]")
        a.e("s_waitcnt lgkmcnt(0)")
    else:
        vBP, sBP = 14, 37
        a.vm = []
        a.lg = []
        nw = 0
        EBV = 96
        a.e(f"v_and_b32 v14, 7, v{lane}")
        a.e("v_lshlrev_b32 v14, 10, v14")
        a.e(f"v_lshrrev_b32 v15, 5, v{lane}")
        a.e("v_lshl_add_u32 v14, v15, 4, v14")
        a.e("s_lshl_b32 s36, s24, 13")
        a.e(f"s_lshl_b32 s37, s{sR}, 8")
        a.e("s_add_u32 s36, s36, s37")
        a.e(f"s_add_u32 s37, s36, {TAB_BP}")
        BPLAST = "bpfirst" not in exp

        def bp_loads():
            for it in range(2):
                for q in range(4):
                    r_ = EBV + (it * 4 + q) * 4
                    a.e(f"buffer_load_dwordx4 v[{r_}:{r_+3}], v14, s[{sT}:{sT+3}], s37 offen offset:{(32*it + 8*q)*4}")
                    a.vm_issue("BP")
        if not BPLAST: bp_loads()
        NWF0 = int(exp.split("nwf0=")[1].split(",")[0]) if "nwf0=" in exp else 32
        if "finestamp" in exp: hs()
        while nw < NWF0:
            w_load(nw, TAB_WF); nw += 1
            if "finestamp" in exp and nw % 8 == 0: hs()
        if BPLAST:
            bp_loads()
            late_check = b_check_ops()
        else:
            a.wait(vm_tags=("BP",))
            for op in b_check_ops(): a.e(op)
    i_hba = len(a.L)
    hs()
    a.e("s_barrier")
    hs()
    ACF, BFR = 32, 64
    a.e(f"v_add_u32 v7, {FB}, v5")
    for k8 in range(8):
        a.e(f"ds_read_b128 v[{BFR+4*k8}:{BFR+4*k8+3}], v7 offset:{k8*1024}")
        a.lg_issue(("FR", k8))
    for kp in range(16):
        k8 = kp & 7
        for _ in range(2):
            if nw < 32:
                w_load(nw, TAB_WF); nw += 1
        assert nw > 2 * kp + 1
        a.wait(vm_tags=[("W", 2 * kp + 1)], lg_tags=[("FR", kp)])
        for it in range(2):
            d = ACF + it * 16
            w_ = (it * 16 + kp) * 4
            c = "0" if kp == 0 else f"v[{d}:{d+15}]"
            a.e(f"v_mfma_f32_32x32x16_bf16 v[{d}:{d+15}], a[{w_}:{w_+3}], v[{BFR+4*k8}:{BFR+4*k8+3}], {c}")
        if kp >= 1 and kp + 7 < 16:
            kn = kp + 7
            a.e(f"ds_read_b128 v[{BFR+4*(kn & 7)}:{BFR+4*(kn & 7)+3}], v7 offset:{kn*1024}")
            a.lg_issue(("FR", kn))
        if late_check and kp >= 9:
            if kp == 9: a.wait(vm_tags=("BP",))
            for _ in range(8):
                if late_check: a.e(late_check.pop(0))
    for op in late_check: a.e(op)
    hs()
    vJW, vEA, vOR, vOS, vEW = 2, 4, 6, 7, 9
    a.e(f"s_lshl_b32 s36, s{sR}, 12")
    a.e(f"v_add_u32 v{vJW}, s36, v5")
    a.e(f"v_lshrrev_b32 v10, 5, v{lane}")
    a.e(f"v_lshlrev_b32 v11, 4, v10")
    a.e(f"s_lshl_b32 s36, s{sR}, 8")
    a.e(f"s_add_u32 s36, s36, {EAT}")
    a.e(f"v_add_u32 v11, s36, v11")
    a.e(f"v_and_b32 v12, 31, v{lane}")
    a.e(f"v_mul_u32_u24 v13, {EAP}, v12")
    a.e(f"v_add_u32 v{vEW}, v11, v13")
    a.e(f"v_lshrrev_b32 v13, 3, v12")
    a.e(f"v_mul_u32_u24 v13, {EAP}, v13")
    a.e(f"v_add_u32 v{vEA}, v11, v13")
    a.e(f"s_lshl_b32 s36, s{sR}, 3")
    a.e(f"v_add_u32 v10, s36, v10")
    a.e(f"v_mul_u32_u24 v13, {OTP}, v10")
    a.e(f"v_lshl_add_u32 v13, v12, 4, v13")
    a.e(f"v_add_u32 v{vOR}, {OT[0]}, v13")
    a.e(f"v_lshlrev_b32 v13, 9, v10")
    a.e(f"v_lshl_add_u32 v{vOS}, v12, 4, v13")
    AP = 64
    a.e(f"s_mov_b32 s41, 0x{f2u(LOG2E2):08x}")
    for i in range(32):
        a.e(f"v_mul_f32 v{AP+i}, s41, v{ACF+i}")
    a.e(f"v_max3_f32 v8, |v{AP}|, |v{AP+1}|, |v{AP+2}|")
    for i in range(3, 31, 2):
        a.e(f"v_max3_f32 v8, v8, |v{AP+i}|, |v{AP+i+1}|")
    a.e(f"v_max_f32 v8, v8, |v{AP+31}|")
    a.e(f"s_mov_b32 s41, 0x{f2u(ATHR):08x}")
    a.e("v_cmp_lt_f32 vcc, s41, v8")
    a.e("s_nop 3")
    a.e("s_or_b64 s[42:43], s[42:43], vcc")
    a.e("s_cmp_lg_u64 s[42:43], 0")
    a.e("s_cselect_b32 s44, 1, 0")
    if "forceslow" in exp:
        a.e("s_mov_b32 s44, 1")
    a.e("s_cmp_lg_u32 s44, 0")
    a.e(f"s_cbranch_scc1 L_{name}_slow")
    vm2 = list(a.vm)

    def helper(slow):
        a.vm = list(vm2)
        a.lg = []
        EAV = 32
        TT = 64
        JP = 80
        if not slow:
            for i in range(32):
                a.e(f"v_exp_f32 v{ACF+i}, v{AP+i}")
            src = ACF
        else:
            for it in range(2):
                for q in range(4):
                    r_ = EBV + (it * 4 + q) * 4
                    a.e(f"buffer_load_dwordx4 v[{r_}:{r_+3}], v{vBP}, s[{sT}:{sT+3}], s{sBP} offen offset:{(32*it + 8*q)*4}")
            a.e("s_waitcnt vmcnt(0)")
            a.vm = []
            src = AP
        for it in range(2):
            for q in range(4):
                r_ = src + (it * 4 + q) * 4
                a.e(f"ds_write_b128 v{vEW}, v[{r_}:{r_+3}] offset:{(32*it + 8*q)*4}")
        a.e("s_waitcnt lgkmcnt(0)")

        def ea_read(i, grp):
            it, qp = grp >> 1, grp & 1
            for s_ in range(2):
                q = 2 * qp + s_
                r_ = EAV + (it * 4 + q) * 4
                a.e(f"ds_read_b128 v[{r_}:{r_+3}], v{vEA} offset:{i*4*EAP + (32*it + 8*q)*4}")
                a.lg_issue(("EA", i, grp))

        def tanh(i, mid=None):
            for grp in range(4):
                t0 = TT + (grp & 1) * 8
                jp = JP + (grp & 1) * 4
                a.wait(lg_tags=(("EA", i, grp),))
                if "pkfma" in exp.split(",") and not slow:
                    for x in range(0, 8, 2):
                        a.e(f"v_pk_fma_f32 v[{t0+x}:{t0+x+1}], v[{EAV+grp*8+x}:{EAV+grp*8+x+1}], v[{EBV+grp*8+x}:{EBV+grp*8+x+1}], 1.0 op_sel_hi:[1,1,0]")
                else:
                    for x in range(8):
                        if slow: a.e(f"v_add_f32 v{t0+x}, v{EAV+grp*8+x}, v{EBV+grp*8+x}")
                        else: a.e(f"v_fma_f32 v{t0+x}, v{EAV+grp*8+x}, v{EBV+grp*8+x}, 1.0")
                if i + 1 < 8: ea_read(i + 1, grp)
                if slow:
                    for x in range(8): a.e(f"v_exp_f32 v{t0+x}, v{t0+x}")
                    for x in range(8): a.e(f"v_add_f32 v{t0+x}, 1.0, v{t0+x}")
                for x in range(8): a.e(f"v_rcp_f32 v{t0+x}, v{t0+x}")
                if mid and grp in mid: mid[grp]()
                else: a.e("s_nop 0")
                for k in range(4):
                    a.e(f"v_cvt_pk_bf16_f32 v{jp+k}, v{t0+2*k}, v{t0+2*k+1}")
                a.e(f"ds_write_b128 v{vJW}, v[{jp}:{jp+3}] offset:{JB[i % 3] + grp*1024}")
                a.lg_issue(("JW", i))

        def out_rd(i, ks=(0, 1, 2, 3)):
            dlt = OT[i & 1] - OT[0]
            for k in ks:
                a.e(f"ds_read_b128 a[{4*k}:{4*k+3}], v{vOR} offset:{dlt + 2*k*OTP}")
                a.lg_issue(("OR", i, k))

        def out_st(i, ks=(0, 1, 2, 3)):
            for k in ks:
                a.wait(lg_tags=(("OR", i, k),))
                if "j_nostore" in exp: continue
                a.e(f"s_mov_b32 s36, {i*16384 + k*1024}")
                a.e(f"buffer_store_dwordx4 a[{4*k}:{4*k+3}], v{vOS}, s[{sO}:{sO+3}], s36 offen")
                a.vm_issue(("O", i))

        if not slow: hs()
        for grp in range(4): ea_read(0, grp)
        tanh(0)
        tanh(1)
        a.wait(lg_tags=(("JW", 1),))
        if not slow: hs()
        a.e("s_barrier")
        if not slow: hs()
        mark = len(a.L)
        for u in range(8):
            if "j_hidle" in exp:
                a.e("s_barrier")
                continue
            if MIDB:
                def midbar(uu=u):
                    if uu > 0:
                        a.e("s_barrier")
                        out_rd(uu - 1)
                    else:
                        a.e("s_nop 0")
                if u + 2 < 8:
                    mid = {1: midbar}
                    if u > 0:
                        mid[2] = (lambda uu=u: out_st(uu - 1, (0, 1)))
                        mid[3] = (lambda uu=u: out_st(uu - 1, (2, 3)))
                    tanh(u + 2, mid)
                    a.wait(lg_tags=(("JW", u + 2),))
                else:
                    midbar()
                    out_st(u - 1)
            else:
                if u >= 2:
                    out_rd(u - 2)
                if u + 2 < 8:
                    mid = {}
                    if u >= 2:
                        mid = {0: (lambda uu=u: out_st(uu - 2, (0, 1))), 1: (lambda uu=u: out_st(uu - 2, (2, 3)))}
                    tanh(u + 2, mid)
                    a.wait(lg_tags=(("JW", u + 2),))
                elif u >= 2:
                    out_st(u - 2)
            if not slow and u in (2, 3): hs()
            a.e("s_barrier")
            if not slow and u in (2, 3): hs()
        if "j_hnovalu" in exp:
            a.L[mark:] = [l for l in a.L[mark:] if not l.strip().startswith("v_")]
        if "j_hnolds" in exp:
            a.L[mark:] = [l for l in a.L[mark:] if not l.strip().startswith("ds_")]
        if "j_hnotrans" in exp:
            a.L[mark:] = [l for l in a.L[mark:] if not l.strip().startswith("v_rcp")]
        if not MIDB:
            out_rd(6)
            out_st(6)
        a.e("s_barrier")
        out_rd(7)
        out_st(7)
        if st_.on and HS and not slow:
            st_.stamp()
            a.e("s_waitcnt vmcnt(0)")
            st_.stamp()
            st_.dump(0, sW, 4, f"L_{name}_nodump")
        a.end()

    helper(False)
    a.label(f"L_{name}_slow")
    helper(True)
    a.label(f"L_{name}_done")
    a.e("s_endpgm")
    if not fused and "hfar" not in exp.split(","):
        i_h = a.L.index(f"L_{name}_helper:")
        hpre = a.L[i_h + 1:i_hba]
        head = a.L[:i_mstart - 2] + [f"    s_cmp_lt_u32 s{sW}, 4", f"    s_cbranch_scc1 L_{name}_mpath"]
        a.L = head + hpre + [f"    s_branch L_{name}_helper", f"L_{name}_mpath:"] + a.L[i_mstart:i_h + 1] + a.L[i_hba:]
    return a.text(), LDS, 256, NWG
```

```python
import os
import sys
sys.path.insert(0, os.path.dirname(os.path.abspath(__file__)))
from asmlib import kd
from gemm import gemm_kernel

HEADER = """; Kernarg layout for this problem (80 bytes, ptrs only, base s[0:1]):
"""


def build(which, exp=""):
    ks = []
    for nm in which:
        if nm == "gemm1":
            code, lds, nv = gemm_kernel("gemm1_kernel", 1, exp)
            ks.append(("gemm1_kernel", 256, 512, code, lds, nv))
        elif nm == "gemm2":
            code, lds, nv = gemm_kernel("gemm2_kernel", 2, exp)
            ks.append(("gemm2_kernel", 256, 512, code, lds, nv))
        elif nm == "prep":
            from prep import prep_kernel
            code, lds, nv, grid = prep_kernel("prep_kernel", exp)
            ks.append(("prep_kernel", grid, 256, code, lds, nv))
        elif nm == "mid":
            from mid import mid_kernel
            code, lds, nv, grid = mid_kernel("mid_kernel", exp)
            ks.append(("mid_kernel", grid, 256, code, lds, nv))
        elif nm == "joint":
            from joint import joint_kernel
            code, lds, nv, grid = joint_kernel("joint_kernel", exp)
            ks.append(("joint_kernel", grid, 512, code, lds, nv))
        elif nm == "gj":
            from gj import gj_kernel
            code, lds, nv, grid = gj_kernel("gj_kernel", exp)
            ks.append(("gj_kernel", grid, 512, code, lds, nv))
        else:
            raise ValueError(nm)
    pol = {"st": "sc1", "sto": "sc1"}
    for tok in exp.split(","):
        for k in ("st", "sto"):
            if tok.startswith(k + "="):
                pol[k] = tok[len(k) + 1:].replace("+", " ")
    for tok in exp.split(","):
        for k in ("px", "pg", "mx", "mg", "g1", "g2"):
            if tok.startswith(k + "="):
                pol[k] = tok[len(k) + 1:].replace("+", " ")
    ks2 = []
    cnt = {}
    for nm, grid, block, code, lds, nv in ks:
        lines = []
        for ln in code.split("\n"):
            t = ln.strip()
            if t.startswith("buffer_store_dwordx4") and "s[56:59]" not in ln:
                key = "sto" if nm == "joint_kernel" else "st"
                if nm == "gj_kernel" and ", s[16:19], s36 " in t: key = "sto"
                if nm == "prep_kernel" and ", v16, " in t: key = "px"
                if nm == "prep_kernel" and ", v33, " in t: key = "pg"
                if nm == "mid_kernel" and ", v58, " in t: key = "mx"
                if nm == "mid_kernel" and ", v33, " in t: key = "mg"
                if nm == "gemm1_kernel": key = "g1"
                if nm == "gemm2_kernel": key = "g2"
                sfx = pol.get(key, pol["st"])
                for tok in exp.split(","):
                    if tok.startswith("hyb=") and nm in tok[4:].replace("+", " ").split():
                        cnt[nm] = cnt.get(nm, 0) + 1
                        if cnt[nm] % 2 == 0: sfx = "plain"
                ln = ln + ("" if sfx == "plain" else " " + sfx)
            if nm == "prep_kernel" and "nontld" not in exp and t.startswith("buffer_load_dwordx4") and t.endswith(" lds"):
                ln = ln[:-4] + " nt lds"
            if nm == "mid_kernel" and "nontld" not in exp and "w2pf" not in exp.split(",") and t.startswith("buffer_load_dwordx4") and t.endswith(" lds") and "s[8:11], s32" in ln:
                ln = ln[:-4] + " nt lds"
            fl = exp.split(",")
            if t.startswith("buffer_load_dwordx4") and t.endswith(" lds") and " nt " not in ln:
                if ("ntg1" in fl and nm == "gemm1_kernel") or ("ntg2" in fl and nm == "gemm2_kernel") or \
                   ("ntmid" in fl and nm == "mid_kernel") or ("ntj" in fl and nm == "joint_kernel"):
                    ln = ln[:-4] + " nt lds"
            lines.append(ln)
        ks2.append((nm, grid, block, "\n".join(lines), lds, nv))
    ks = ks2
    out = HEADER
    for nm, grid, block, code, lds, nv in ks:
        out += f"; @launch kernel={nm} grid=({grid},1,1) block=({block},1,1) lds={lds}\n"
    out += '.amdgcn_target "amdgcn-amd-amdhsa--gfx950"\n.text\n'
    for nm, grid, block, code, lds, nv in ks:
        out += f".globl {nm}\n.p2align 8\n.type {nm},@function\n" + code
    out += '.section .rodata,"a"\n'
    for nm, grid, block, code, lds, nv in ks:
        out += ".p2align 6\n" + kd(nm, vgpr=(nv + 7) // 8 * 8, accum=128 if nm in ("joint_kernel", "gj_kernel") else min(256, (nv + 7) // 8 * 8))
    return out


if __name__ == "__main__":
    path = sys.argv[1]
    which = sys.argv[2].split(",") if len(sys.argv) > 2 else (["prep", "gemm1", "mid", "gj"] if "fuse" in os.environ.get("EXP", "").split(",") else ["prep", "gemm1", "mid", "gemm2", "joint"])
    open(path, "w").write(build(which, os.environ.get("EXP", "")))
```

```python
import struct


def f2u(f):
    return struct.unpack('<I', struct.pack('<f', f))[0]


class Asm:
    def __init__(self):
        self.L = []
        self.vm = []
        self.lg = []

    def e(self, s):
        self.L.append("    " + s)

    def label(self, s):
        self.L.append(s + ":")

    def c(self, s):
        self.L.append("    ; " + s)

    def vm_issue(self, tag):
        self.vm.append(tag)
        assert len(self.vm) <= 63, "vmcnt overflow"

    def lg_issue(self, tag):
        self.lg.append(tag)
        assert len(self.lg) <= 15, ("lgkmcnt overflow", self.lg)

    def _need(self, q, tags):
        idx = -1
        for i, t in enumerate(q):
            if t in tags:
                idx = i
        return idx

    def wait(self, vm_tags=(), lg_tags=(), force=False):
        parts = []
        if vm_tags:
            idx = self._need(self.vm, vm_tags)
            if idx >= 0:
                parts.append(f"vmcnt({len(self.vm) - idx - 1})")
                self.vm = self.vm[idx + 1:]
        if lg_tags:
            idx = self._need(self.lg, lg_tags)
            if idx >= 0:
                parts.append(f"lgkmcnt({len(self.lg) - idx - 1})")
                self.lg = self.lg[idx + 1:]
        if parts:
            self.e("s_waitcnt " + " ".join(parts))

    def wait_all(self, vm=True, lg=True):
        parts = []
        if vm:
            parts.append("vmcnt(0)")
            self.vm = []
        if lg:
            parts.append("lgkmcnt(0)")
            self.lg = []
        self.e("s_waitcnt " + " ".join(parts))

    def text(self):
        return "\n".join(self.L) + "\n"

    trace_region = None
    trace_tid = 0
    _ntr = 0

    def trace_begin(self, region, dbg=False):
        if dbg: self.dbg_slot = region
        else: self.trace_region = region
        self.e("s_memrealtime s[98:99]")
        self.e("v_readfirstlane_b32 s97, v0")

    dbg_slot = None

    def end(self):
        if self.dbg_slot is not None:
            Asm._ntr += 1
            lab = f"L_dbg_skip_{Asm._ntr}"
            k = self.dbg_slot
            self.e("s_waitcnt vmcnt(0) lgkmcnt(0)")
            self.e("s_memrealtime s[100:101]")
            self.e("s_or_b32 s96, s97, s2")
            self.e(f"s_cmp_lg_u32 s96, {self.trace_tid}")
            self.e(f"s_cbranch_scc1 {lab}")
            self.e("s_load_dwordx2 s[92:93], s[0:1], 72")
            self.e("s_load_dwordx2 s[90:91], s[0:1], 64")
            self.e("s_waitcnt lgkmcnt(0)")
            self.e("s_add_u32 s92, s92, 0x8000000")
            self.e("s_addc_u32 s93, s93, 0")
            self.e("s_mov_b32 s94, 256")
            self.e("s_mov_b32 s95, 0x00020000")
            self.e("s_mov_b64 exec, 1")
            self.e(f"v_mov_b32 v2, {k*8}")
            self.e("v_mov_b32 v0, s98")
            self.e("v_mov_b32 v1, s100")
            self.e("buffer_store_dwordx2 v[0:1], v2, s[92:95], 0 offen sc1")
            if k == 4:
                self.e("s_waitcnt vmcnt(0)")
                self.e("s_mov_b64 exec, 0xffff")
                self.e("v_mbcnt_lo_u32_b32 v2, -1, 0")
                self.e("v_lshlrev_b32 v2, 2, v2")
                self.e("buffer_load_dword v3, v2, s[92:95], 0 offen sc1")
                self.e("s_waitcnt vmcnt(0)")
                self.e("s_mov_b32 s92, s90")
                self.e("s_mov_b32 s93, s91")
                self.e("buffer_store_dword v3, v2, s[92:95], 0 offen")
            self.label(lab)
        if self.trace_region is not None:
            Asm._ntr += 1
            lab = f"L_trace_skip_{Asm._ntr}"
            self.e("s_waitcnt vmcnt(0) lgkmcnt(0)")
            self.e("s_memrealtime s[100:101]")
            self.e(f"s_cmp_lg_u32 s97, {self.trace_tid}")
            self.e(f"s_cbranch_scc1 {lab}")
            self.e("s_load_dwordx2 s[92:93], s[0:1], 72")
            self.e("s_waitcnt lgkmcnt(0)")
            self.e(f"s_add_u32 s92, s92, {0x8000000 + self.trace_region*65536}")
            self.e("s_addc_u32 s93, s93, 0")
            self.e("s_mov_b32 s94, 65536")
            self.e("s_mov_b32 s95, 0x00020000")
            self.e("s_lshl_b32 s96, s2, 4")
            self.e("s_mov_b64 exec, 1")
            self.e("v_mov_b32 v2, s96")
            self.e("v_mov_b32 v0, s98")
            self.e("v_mov_b32 v1, s100")
            self.e("buffer_store_dwordx2 v[0:1], v2, s[92:95], 0 offen")
            self.label(lab)
        self.e("s_endpgm")

    def srd(self, s, base_lo, base_hi, nbytes):
        self.e(f"s_mov_b32 s{s}, {base_lo}")
        self.e(f"s_mov_b32 s{s+1}, {base_hi}")
        self.e(f"s_mov_b32 s{s+2}, {nbytes}")
        self.e(f"s_mov_b32 s{s+3}, 0x00020000")

    def add64(self, d, a, off):
        self.e(f"s_add_u32 s{d}, s{a}, {off}")
        self.e(f"s_addc_u32 s{d+1}, s{a+1}, 0")


class Stamps:
    def __init__(self, a, on, s0=60):
        self.a, self.on, self.s0, self.n = a, on, s0, 0

    def begin(self):
        if not self.on: return
        a = self.a
        a.e(f"s_load_dwordx2 s[{self.s0}:{self.s0+1}], s[0:1], 64")
        a.e(f"s_memrealtime s[{self.s0+2}:{self.s0+3}]")
        self.stamp()

    def stamp(self):
        if not self.on: return
        r = self.s0 + 6 + 2 * self.n
        self.a.e(f"s_memtime s[{r}:{r+1}]")
        self.n += 1

    def trace(self, wave_sgpr, wave, label, region):
        a, s0 = self.a, self.s0
        a.e(f"s_cmp_lg_u32 s{wave_sgpr}, {wave}")
        a.e(f"s_cbranch_scc1 {label}")
        a.e("s_load_dwordx2 s[56:57], s[0:1], 72")
        a.e("s_waitcnt lgkmcnt(0)")
        a.e(f"s_add_u32 s56, s56, {0x8000000 + region*65536}")
        a.e("s_addc_u32 s57, s57, 0")
        a.e("s_mov_b32 s58, 65536")
        a.e("s_mov_b32 s59, 0x00020000")
        a.e("s_lshl_b32 s55, s2, 4")
        a.e("v_mov_b32 v2, s55")
        a.e(f"v_mov_b32 v0, s{s0+2}")
        a.e(f"v_mov_b32 v1, s{s0+4}")
        a.e("buffer_store_dwordx2 v[0:1], v2, s[56:59], 0 offen")
        a.label(label)

    def dump(self, wg, wave_sgpr, wave, label, region=None):
        if not self.on: return
        a, s0 = self.a, self.s0
        a.e(f"s_memrealtime s[{s0+4}:{s0+5}]")
        a.e("s_waitcnt lgkmcnt(0)")
        if region is not None:
            self.trace(wave_sgpr, wave, label + "_tr", region)
        a.e(f"s_cmp_lg_u32 s2, {wg}")
        a.e(f"s_cbranch_scc1 {label}")
        a.e(f"s_cmp_lg_u32 s{wave_sgpr}, {wave}")
        a.e(f"s_cbranch_scc1 {label}")
        a.e(f"s_mov_b32 s56, s{s0}")
        a.e(f"s_mov_b32 s57, s{s0+1}")
        a.e("s_mov_b32 s58, 256")
        a.e("s_mov_b32 s59, 0x00020000")
        a.e("v_mov_b32 v2, 0")
        a.e(f"s_sub_u32 s{s0+4}, s{s0+4}, s{s0+2}")
        a.e(f"v_mov_b32 v0, s{s0+4}")
        a.e("buffer_store_dword v0, v2, s[56:59], 0 offen")
        for i in range(1, self.n):
            r = s0 + 6 + 2 * i
            a.e(f"s_sub_u32 s{s0+5}, s{r}, s{s0+6}")
            a.e(f"v_mov_b32 v0, s{s0+5}")
            a.e(f"buffer_store_dword v0, v2, s[56:59], 0 offen offset:{4*i}")
        a.label(label)


def kd(name, vgpr=256, sgpr=102, accum=None):
    accum = accum or ((vgpr + 3) // 4 * 4)
    return f""".amdhsa_kernel {name}
  .amdhsa_next_free_vgpr {vgpr}
  .amdhsa_next_free_sgpr {sgpr}
  .amdhsa_accum_offset {accum}
  .amdhsa_group_segment_fixed_size 0
  .amdhsa_kernarg_size 80
  .amdhsa_user_sgpr_count 2
  .amdhsa_user_sgpr_kernarg_segment_ptr 1
  .amdhsa_system_sgpr_workgroup_id_x 1
.end_amdhsa_kernel
"""
```

```python
from asmlib import Asm, Stamps
from layout import *
from prep import cos_vals


def gemm_kernel(name, conv, exp="", fused=False):
    a = Asm()
    if conv == 1:
        M, XBIN, WS_X, WS_G, WS_Y = M1, XBIN1, WS_XH1, WS_GH1, WS_YH1
        NT, S, NP = (2, 7, 2) if "twopass" in exp else (4, 5, 1)
    else:
        M, XBIN, WS_X, WS_G, WS_Y = M2, XBIN2, WS_XH2, WS_GH2, WS_YH2
        NT, S, NP = 2, 7, 1
    KST = 16
    NSTEP = KST * NP
    ROWS = 84
    G2 = conv == 1 and "g2ingemm" in exp
    ABYTES = 11264 if G2 else 12288
    CTP = 2 * NT
    BP = CTP * 2
    SLOT = ABYTES + BP * 1024
    SPW = 65536 // SLOT
    NWIN = (S + SPW - 1) // SPW
    LDS = S * SLOT
    GX = LDS
    if G2:
        LDS += 16 * 1152 + 4096
    BPW = BP // 4
    NWG = 256
    NCT = CTP * NP

    ASZ = NT * 24
    FR0 = 4 if fused else NP * ASZ
    AK = "a" if fused else "v"
    FSZ = NT * 8 + 24
    vAre = FR0 + 2 * FSZ
    vAim = vAre + NWIN
    vB = vAim + NWIN
    vT = vB + NWIN
    EP = (vT + 12 + 1) // 2 * 2
    NV = EP + (24 if NP > 1 else 0)
    assert NV <= (128 if fused else 256)

    def G(st, t, ri):
        return FR0 + st * FSZ + (t * 2 + ri) * 4

    def U(st, r, ri):
        return FR0 + st * FSZ + NT * 8 + (r * 2 + ri) * 4

    def accr(p, t, r):
        return p * ASZ + (t * 3 + r) * 4

    def acci(p, t, r):
        return p * ASZ + NT * 12 + (t * 3 + r) * 4

    sA, sB, sY = 8, 12, 16
    sW = 20
    sBin = 21
    sM0 = 22
    a.label(name)
    if not fused:
        a.e(f"s_cmp_ge_u32 s2, {NWG}")
        a.e(f"s_cbranch_scc1 L_{name}_done")
    if "trace" in exp and a.trace_region is None: a.trace_begin(conv*2-1)
    if "dbgtime" in exp: a.trace_begin(conv*2-1, dbg=True)
    st_ = Stamps(a, "stamp" in exp)
    st_.begin()
    a.e("s_load_dwordx2 s[4:5], s[0:1], 72")
    a.e(f"s_load_dwordx2 s[6:7], s[0:1], {X_PTR}")
    a.e(f"v_readfirstlane_b32 s{sW}, v0")
    a.e(f"s_lshr_b32 s{sW}, s{sW}, 6")
    if "ldfirst" in exp.split(","):
        a.trace_tid = 256
        a.e(f"s_xor_b32 s{sW}, s{sW}, 4")
    a.e("s_and_b32 s24, s2, 7")
    a.e("s_lshr_b32 s25, s2, 3")
    a.e("s_lshr_b32 s26, s25, 3")
    a.e("s_lshl_b32 s24, s24, 2")
    a.e(f"s_add_u32 s{sBin}, s24, s26")
    a.e("s_and_b32 s25, s25, 7")
    if conv == 1:
        a.e("s_lshr_b32 s26, s25, 1")
        a.e("s_and_b32 s27, s25, 1")
    else:
        a.e("s_lshr_b32 s26, s25, 2")
        a.e("s_and_b32 s27, s25, 3")
    a.e(f"s_mul_i32 s{sM0}, s26, {ROWS}")
    a.e(f"s_sub_u32 s28, {M}, s{sM0}")
    a.e(f"s_min_u32 s28, s28, {ROWS}")
    a.e("s_waitcnt lgkmcnt(0)")
    a.e(f"s_mul_i32 s29, s{sBin}, {XBIN}")
    a.e(f"s_lshl_b32 s30, s{sM0}, 11")
    a.e("s_add_u32 s29, s29, s30")
    a.e(f"s_add_u32 s29, s29, {WS_X}")
    a.e(f"s_add_u32 s{sA}, s6, s29")
    a.e(f"s_addc_u32 s{sA+1}, s7, 0")
    a.e(f"s_lshl_b32 s{sA+2}, s28, 11")
    a.e(f"s_mov_b32 s{sA+3}, 0x00020000")
    a.e(f"s_mul_i32 s29, s{sBin}, {GBIN}")
    a.e(f"s_mul_i32 s30, s27, {NCT*2048}")
    a.e("s_add_u32 s29, s29, s30")
    a.e(f"s_add_u32 s29, s29, {WS_G}")
    a.e(f"s_add_u32 s{sB}, s4, s29")
    a.e(f"s_addc_u32 s{sB+1}, s5, 0")
    a.e(f"s_mov_b32 s{sB+2}, {15*32768 + NCT*2048}")
    a.e(f"s_mov_b32 s{sB+3}, 0x00020000")
    a.e(f"s_cmp_ge_u32 s{sW}, 4")
    a.e(f"s_cbranch_scc1 L_{name}_loader")
    i_cons = len(a.L)

    a.e(f"s_mul_i32 s29, s{sM0}, {YROW}")
    a.e(f"s_add_u32 s29, s29, {WS_Y}")
    a.e(f"s_add_u32 s{sY}, s4, s29")
    a.e(f"s_addc_u32 s{sY+1}, s5, 0")
    a.e(f"s_mul_i32 s{sY+2}, s28, {YROW}")
    a.e(f"s_mov_b32 s{sY+3}, 0x00020000")
    a.e(f"s_lshr_b32 s29, s{sW}, 1")
    a.e(f"s_and_b32 s30, s{sW}, 1")
    a.e(f"v_and_b32 v{vT}, 15, v0")
    a.e(f"v_bfe_u32 v{vT+1}, v0, 4, 2")
    a.e(f"v_and_b32 v{vT+2}, 63, v0")
    a.e(f"s_mul_i32 s31, s29, {48*128}")
    a.e(f"v_and_b32 v{vT+3}, 7, v{vT}")
    a.e(f"v_xor_b32 v{vT+3}, v{vT+1}, v{vT+3}")
    a.e(f"v_lshlrev_b32 v{vT+3}, 4, v{vT+3}")
    a.e(f"v_lshl_add_u32 v{vT+3}, v{vT}, 7, v{vT+3}")
    a.e(f"v_add_u32 v{vT+3}, s31, v{vT+3}")
    for w in range(NWIN):
        a.e(f"v_add_u32 v{vAre+w}, {w*SPW*SLOT}, v{vT+3}")
        a.e(f"v_xor_b32 v{vAim+w}, 64, v{vAre+w}")
    a.e(f"s_mul_i32 s31, s30, {NT*2048}")
    a.e(f"s_add_u32 s31, s31, {ABYTES}")
    a.e(f"v_lshlrev_b32 v{vT+3}, 4, v{vT+2}")
    a.e(f"v_add_u32 v{vT+3}, s31, v{vT+3}")
    for w in range(NWIN):
        a.e(f"v_add_u32 v{vB+w}, {w*SPW*SLOT}, v{vT+3}")
    vY1, vY2 = vT + 5, vT + 6
    a.e(f"v_and_b32 v{vT+7}, 7, v{vT}")
    a.e(f"v_lshrrev_b32 v{vT+8}, 3, v{vT}")
    a.e(f"v_mul_u32_u24 v{vY1}, {YROW}, v{vT+7}")
    a.e(f"v_lshl_add_u32 v{vY1}, v{vT+1}, 4, v{vY1}")
    a.e(f"s_mul_i32 s31, s29, {48*YROW}")
    a.e(f"v_add_u32 v{vY1}, s31, v{vY1}")
    a.e(f"v_lshl_add_u32 v{vY1}, v{vT+8}, 6, v{vY1}")
    a.e(f"v_xor_b32 v{vT+8}, 64, v{vY1}")
    a.e(f"v_add_u32 v{vY2}, {8*YROW}, v{vT+8}")
    a.e(f"s_mul_i32 s31, s27, {NCT//2}")
    a.e(f"s_mul_i32 s29, s30, {NT//2}")
    a.e("s_add_u32 s31, s31, s29")
    a.e(f"s_mul_i32 s31, s31, {Y_CG}")
    a.e(f"s_mul_i32 s29, s{sBin}, {Y_BIN}")
    a.e("s_add_u32 s33, s31, s29")
    a.e("s_mov_b32 s34, 0x80008000")

    if G2:
        t6, t7 = FR0, FR0 + 1
        a.e("s_load_dwordx2 s[38:39], s[0:1], 16")
        a.e("s_lshr_b32 s40, s2, 4")
        a.e("s_bfe_u32 s41, s2, 0x20002")
        a.e("s_and_b32 s42, s2, 3")
        a.e("s_lshr_b32 s43, s40, 3")
        a.e("s_and_b32 s44, s40, 7")
        a.e(f"v_lshrrev_b32 v{t6}, 3, v{vT+2}")
        a.e("s_lshl_b32 s45, s41, 3")
        a.e("s_lshl_b32 s46, s44, 5")
        a.e("s_add_u32 s45, s45, s46")
        a.e(f"v_add_u32 v{t6}, s45, v{t6}")
        a.e(f"v_lshlrev_b32 v{t6}, 9, v{t6}")
        a.e(f"v_and_b32 v{t7}, 7, v{vT+2}")
        a.e(f"s_lshr_b32 s46, s{sW}, 1")
        a.e("s_lshl_b32 s46, s46, 2")
        a.e(f"v_xor_b32 v{t7}, s46, v{t7}")
        a.e(f"v_lshl_add_u32 v{t6}, v{t7}, 4, v{t6}")
        a.e("s_lshl_b32 s46, s42, 7")
        a.e(f"v_add_u32 v{t6}, s46, v{t6}")
        a.e(f"v_xor_b32 v{t7}, 32, v{t6}")
        a.e(f"s_lshl_b32 s46, s{sW}, 3")
        a.e("s_add_u32 s46, s46, s43")
        a.e("s_lshl_b32 s46, s46, 17")
        a.e(f"s_mul_i32 s47, s{sW}, {4*1152}")
        a.e("s_waitcnt lgkmcnt(0)")
        a.srd(48, "s38", "s39", 31 * 131072)
        for jj in range(4):
            a.e(f"s_add_u32 m0, s47, {GX + jj*1152}")
            a.e(f"s_add_u32 s37, s46, {jj*2*131072}")
            a.e(f"buffer_load_dwordx4 v{t6 if jj < 2 else t7}, s[48:51], s37 offen nt lds")

    def reads(step):
        st = step & 1
        sl = step % S
        w, siw = sl // SPW, sl % SPW
        ops = []
        seq = []
        seq.append(("G", 0, 0))
        seq += [("U", r, 0) for r in range(3)]
        seq += [("G", t, 0) for t in range(1, NT)]
        seq += [("U", r, 1) for r in range(3)]
        seq += [("G", t, 1) for t in range(NT)]
        for kind, x, ri in seq:
            if kind == "G":
                r_ = G(st, x, ri)
                ops.append(f"ds_read_b128 v[{r_}:{r_+3}], v{vB+w} offset:{siw*SLOT + (x*2+ri)*1024}")
            else:
                r_ = U(st, x, ri)
                va = (vAim if ri else vAre) + w
                ops.append(f"ds_read_b128 v[{r_}:{r_+3}], v{va} offset:{siw*SLOT + x*2048}")
        return ops

    def mfma(d, ga, ub, c):
        cs = "0" if c is None else f"{AK}[{c}:{c+3}]"
        return f"v_mfma_f32_16x16x32_bf16 {AK}[{d}:{d+3}], v[{ga}:{ga+3}], v[{ub}:{ub+3}], {cs}"

    def epilogue(p, tmp, nsets):
        ops = []
        k = 0
        for P in range(NT // 2):
            for r in range(3):
                R = tmp + (k % nsets) * 12
                I, D2 = R + 4, R + 8
                k += 1
                for dst, acc in ((R, accr), (I, acci)):
                    a0, a1 = acc(p, 2 * P, r), acc(p, 2 * P + 1, r)
                    if fused:
                        tr = tmp + nsets * 12
                        for x in range(4):
                            ops.append(f"v_accvgpr_read_b32 v{tr+x}, a{a0+x}")
                            ops.append(f"v_accvgpr_read_b32 v{tr+4+x}, a{a1+x}")
                        a0, a1 = tr, tr + 4
                    ops.append(f"v_cvt_pk_bf16_f32 v{dst}, v{a0}, v{a0+1}")
                    ops.append(f"v_cvt_pk_bf16_f32 v{dst+1}, v{a0+2}, v{a0+3}")
                    ops.append(f"v_cvt_pk_bf16_f32 v{dst+2}, v{a1}, v{a1+1}")
                    ops.append(f"v_cvt_pk_bf16_f32 v{dst+3}, v{a1+2}, v{a1+3}")
                for x in range(4):
                    ops.append(f"v_mov_b32 v{D2+x}, v{R+x}")
                ops.append(f"s_add_u32 s35, s33, {r*16*YROW + (P + p*CTP//2)*Y_CG}")
                for x in range(4):
                    ops.append(f"v_mov_b32_dpp v{D2+x}, v{I+x} row_ror:8 row_mask:0xf bank_mask:0x3")
                for x in range(4):
                    ops.append(f"v_mov_b32_dpp v{R+x}, v{I+x} row_ror:8 row_mask:0xf bank_mask:0xc")
                ops.append(f"buffer_store_dwordx4 v[{R}:{R+3}], v{vY1}, s[{sY}:{sY+3}], s35 offen")
                ops.append(f"buffer_store_dwordx4 v[{D2}:{D2+3}], v{vY2}, s[{sY}:{sY+3}], s35 offen")
        return ops

    ROLL = NP == 1 and not G2 and not fused and "unroll" not in exp.split(",")
    NM = NT * 12
    if ROLL:
        vAc, vAi, vBc = vAre + 1, vAim, vB + 1
        sSl, sCnt = 38, 39

        def reads_dyn(st):
            ops = []
            seq = [("G", 0, 0)] + [("U", r, 0) for r in range(3)] + [("G", t, 0) for t in range(1, NT)]
            seq += [("U", r, 1) for r in range(3)] + [("G", t, 1) for t in range(NT)]
            for kind, x, ri in seq:
                if kind == "G":
                    r_ = G(st, x, ri)
                    ops.append(f"ds_read_b128 v[{r_}:{r_+3}], v{vBc} offset:{(x*2+ri)*1024}")
                else:
                    r_ = U(st, x, ri)
                    ops.append(f"ds_read_b128 v[{r_}:{r_+3}], v{vAi if ri else vAc} offset:{x*2048}")
            return ops

        def next_addr():
            return [f"v_add_u32 v{vAc}, s{sSl}, v{vAre}", f"v_add_u32 v{vBc}, s{sSl}, v{vB}", f"v_xor_b32 v{vAi}, 64, v{vAc}",
                    f"s_add_u32 s{sSl}, s{sSl}, {SLOT}", f"s_cmp_eq_u32 s{sSl}, {S*SLOT}", f"s_cselect_b32 s{sSl}, 0, s{sSl}"]

        for t in range(NT):
            for r in range(3):
                for x in range(4):
                    a.e(f"v_mov_b32 v{accr(0, t, r)+x}, 0")
                    a.e(f"v_mov_b32 v{acci(0, t, r)+x}, 0")
        a.e(f"s_mov_b32 s{sSl}, 0")
        for op in next_addr(): a.e(op)
        st_.stamp()
        a.e("s_barrier")
        st_.stamp()
        for op in reads_dyn(0): a.e(op)
        for op in next_addr(): a.e(op)
        a.e(f"s_mov_b32 s{sCnt}, {NSTEP // 2}")
        a.e("s_waitcnt lgkmcnt(0)")
        a.e("s_barrier")
        st_.stamp()
        a.label(f"L_{name}_loop")
        for st in range(2):
            mf = []
            for t in range(NT):
                for r in range(3):
                    mf.append(mfma(accr(0, t, r), G(st, t, 0), U(st, r, 0), accr(0, t, r)))
            for t in range(NT):
                for r in range(3):
                    mf.append(mfma(acci(0, t, r), G(st, t, 0), U(st, r, 1), acci(0, t, r)))
            for t in range(NT):
                for r in range(3):
                    mf.append(mfma(acci(0, t, r), G(st, t, 1), U(st, r, 0), acci(0, t, r)))
            for t in range(NT):
                for r in range(3):
                    mf.append(mfma(accr(0, t, r), G(st, t, 1), U(st, r, 1), accr(0, t, r)))
            fill = [[] for _ in range(NM)]
            rstep = 2 if NT == 4 else 1
            for i, op in enumerate(reads_dyn(st ^ 1)):
                fill[i * rstep].append(op)
            xs = [f"v_xor_b32 v{U(st, r, 1)+k}, s34, v{U(st, r, 1)+k}" for r in range(3) for k in range(4)]
            g3 = 2 * NT * 3
            for i, op in enumerate(xs):
                fill[g3 + i // 2].append(op)
            barpos = NM - (8 if NT == 4 else 4)
            na = next_addr()
            for i, op in enumerate(na):
                fill[min(barpos + 1 + i // 2, NM - 1)].append(op)
            if st == 1:
                fill[NM - 2].append(f"s_sub_u32 s{sCnt}, s{sCnt}, 1")
            for i in range(NM):
                a.e(mf[i])
                for op in fill[i]:
                    a.e(op)
                if i == barpos:
                    a.e("s_waitcnt lgkmcnt(0)")
                    a.e("s_barrier")
        a.e(f"s_cmp_lg_u32 s{sCnt}, 0")
        a.e(f"s_cbranch_scc1 L_{name}_loop")
    else:
        st_.stamp()
        a.e("s_barrier")
        st_.stamp()
        for op in reads(0):
            a.e(op)
        a.e("s_waitcnt lgkmcnt(0)")
        a.e("s_barrier")
        st_.stamp()
        pending = []
        for s in range(NSTEP):
            if s in ((1, 4, 8, 12) if NP == 1 else (4, 12, 16, 24)): st_.stamp()
            st = s & 1
            p = s // KST
            first = s % KST == 0
            if first and p > 0:
                pending = epilogue(p - 1, EP, 2)
            mf = []
            for t in range(NT):
                for r in range(3):
                    mf.append(mfma(accr(p, t, r), G(st, t, 0), U(st, r, 0), None if first else accr(p, t, r)))
            for t in range(NT):
                for r in range(3):
                    mf.append(mfma(acci(p, t, r), G(st, t, 0), U(st, r, 1), None if first else acci(p, t, r)))
            for t in range(NT):
                for r in range(3):
                    mf.append(mfma(acci(p, t, r), G(st, t, 1), U(st, r, 0), acci(p, t, r)))
            for t in range(NT):
                for r in range(3):
                    mf.append(mfma(accr(p, t, r), G(st, t, 1), U(st, r, 1), accr(p, t, r)))
            fill = [[] for _ in range(NM)]
            rd = reads(s + 1) if s + 1 < NSTEP else []
            rstep = 2 if NT == 4 else 1
            for i, op in enumerate(rd):
                fill[i * rstep].append(op)
            xs = [f"v_xor_b32 v{U(st, r, 1)+k}, s34, v{U(st, r, 1)+k}" for r in range(3) for k in range(4)]
            g3 = 2 * NT * 3
            per = 2
            for i, op in enumerate(xs):
                fill[g3 + i // per].append(op)
            assert g3 + (len(xs) - 1) // per <= 3 * NT * 3 - 1
            if pending:
                slots = [i for i in range(NM) if not (g3 <= i < g3 + 6) and (i >= 8 or not first)]
                for i in slots:
                    if pending: fill[i].append(pending.pop(0))
            barpos = NM - (8 if NT == 4 else 4)
            for i in range(NM):
                if "nomfma" not in exp:
                    a.e(mf[i])
                for op in fill[i]:
                    a.e(op)
                if i == barpos and s + 1 < NSTEP:
                    if G2 and s == 3:
                        a.e("s_waitcnt vmcnt(0)")
                    a.e("s_waitcnt lgkmcnt(0)")
                    if s + 1 <= NSTEP - 2:
                        a.e("s_barrier")
    if not ROLL: assert not pending
    st_.stamp()
    a.e("s_nop 7")
    a.e("s_nop 7")
    LDSEP = YBM and NP == 1 and "ldsep" in exp.split(",")
    if LDSEP:
        RB = NCT * 64
        OTP = RB + 16
        OTB = ((NSTEP - 1) % S + 1) * SLOT if ((NSTEP - 1) % S + 1) * SLOT + 96 * OTP <= S * SLOT else 0
        assert OTB + 96 * OTP <= S * SLOT and not (OTB <= ((NSTEP - 1) % S) * SLOT < OTB + 96 * OTP)
        vO = vT + 9
        a.e(f"s_lshr_b32 s29, s{sW}, 1")
        a.e(f"s_and_b32 s30, s{sW}, 1")
        a.e(f"s_mul_i32 s29, s29, {48*OTP}")
        a.e(f"s_mul_i32 s30, s30, {(NT//2)*128}")
        a.e("s_add_u32 s29, s29, s30")
        a.e(f"s_add_u32 s29, s29, {OTB}")
        a.e(f"v_mul_u32_u24 v{vO}, {OTP}, v{vT}")
        a.e(f"v_lshl_add_u32 v{vO}, v{vT+1}, 4, v{vO}")
        a.e(f"v_add_u32 v{vO}, s29, v{vO}")
        k = 0
        for ri in (1, 0):
            acc = acci if ri else accr
            for P in range(NT // 2):
                for r in range(3):
                    d = FR0 + (k % 6) * 4
                    k += 1
                    a0, a1 = acc(0, 2 * P, r), acc(0, 2 * P + 1, r)
                    if fused:
                        tr = FR0 + 24
                        for x in range(4):
                            a.e(f"v_accvgpr_read_b32 v{tr+x}, a{a0+x}")
                            a.e(f"v_accvgpr_read_b32 v{tr+4+x}, a{a1+x}")
                        a0, a1 = tr, tr + 4
                    a.e(f"v_cvt_pk_bf16_f32 v{d}, v{a0}, v{a0+1}")
                    a.e(f"v_cvt_pk_bf16_f32 v{d+1}, v{a0+2}, v{a0+3}")
                    a.e(f"v_cvt_pk_bf16_f32 v{d+2}, v{a1}, v{a1+1}")
                    a.e(f"v_cvt_pk_bf16_f32 v{d+3}, v{a1+2}, v{a1+3}")
                    a.e(f"ds_write_b128 v{vO}, v[{d}:{d+3}] offset:{r*16*OTP + P*128 + ri*64}")
        a.e("s_waitcnt lgkmcnt(0)")
        a.e("s_barrier")
        a.e(f"s_mov_b32 s37, s{sW}")
        a.e(f"s_branch L_{name}_drain")
    else:
        for op in epilogue(NP - 1, FR0, 3):
            a.e(op)
    if fused:
        a.e("s_waitcnt vmcnt(0)")
        a.e("s_barrier")
        a.e(f"s_cmp_lg_u32 s{sW}, 0")
        a.e(f"s_cbranch_scc1 L_{name}_noflag")
        a.add64(sA, 4, WS_TAB)
        a.e(f"s_mov_b32 s{sA+2}, {TAB_END}")
        a.e(f"s_mov_b32 s{sA+3}, 0x00020000")
        a.e("s_lshl_b32 s29, s26, 7")
        a.e(f"s_lshl_b32 s30, s{sBin}, 2")
        a.e("s_add_u32 s29, s29, s30")
        a.e("s_add_u32 s29, s29, s27")
        a.e("s_lshl_b32 s29, s29, 2")
        a.e(f"s_add_u32 s29, s29, {TAB_FLG}")
        a.e("v_mov_b32 v0, 1")
        a.e("v_mov_b32 v1, 0")
        a.e("s_mov_b64 exec, 1")
        a.e(f"buffer_store_dword v0, v1, s[{sA}:{sA+3}], s29 offen sc1")
        a.e("s_mov_b64 exec, -1")
        a.label(f"L_{name}_noflag")
    if st_.on:
        st_.stamp()
        a.e("s_waitcnt vmcnt(0)")
        st_.stamp()
        st_.dump(int(exp.split("wg=")[1].split(",")[0]) if "wg=" in exp else 0, sW, 0, f"L_{name}_nodump")
    a.end()

    a.label(f"L_{name}_loader")
    a.e(f"s_sub_u32 s{sW}, s{sW}, 4")
    vA_, vB_ = 2, 3
    a.e("v_and_b32 v1, 63, v0")
    a.e("v_lshrrev_b32 v4, 3, v1")
    a.e("v_and_b32 v5, 7, v1")
    a.e("v_xor_b32 v5, v5, v4")
    a.e("v_lshlrev_b32 v5, 4, v5")
    a.e(f"v_lshl_add_u32 v{vA_}, v4, 11, v5")
    a.e(f"v_lshlrev_b32 v{vB_}, 4, v1")
    for qi in range(3):
        a.e(f"s_add_u32 s24, s{sW}, {4*qi}")
        if G2 and qi == 2:
            a.e("s_min_u32 s24, s24, 10")
        a.e(f"s_lshl_b32 s{40+qi}, s24, 10")
        a.e(f"s_lshl_b32 s{43+qi}, s24, 14")
    a.e(f"s_mul_i32 s46, s{sW}, {BPW*1024}")
    a.e(f"s_add_u32 s47, s46, {ABYTES}")

    def issue(step):
        sl = step % S
        p, k = step // KST, step % KST
        for qi in range(3):
            a.e(f"s_add_u32 m0, s{40+qi}, {sl*SLOT}")
            a.e(f"s_add_u32 s24, s{43+qi}, {k*128}")
            a.e(f"buffer_load_dwordx4 v{vA_}, s[{sA}:{sA+3}], s24 offen lds")
            a.vm_issue(step)
        a.e(f"s_add_u32 m0, s47, {sl*SLOT}")
        a.e(f"s_add_u32 s24, s46, {k*32768 + p*CTP*2048}")
        for x in range(BPW):
            a.e(f"buffer_load_dwordx4 v{vB_}, s[{sB}:{sB+3}], s24 offen offset:{x*1024} lds")
            a.vm_issue(step)

    sWt, sG = 48, 52
    AF, BF, DD, PK = 36, 52, 84, 116

    def g2_setup():
        lane = 1
        a.e("s_lshr_b32 s58, s2, 4")
        a.e("s_bfe_u32 s59, s2, 0x20002")
        a.e("s_and_b32 s60, s2, 3")
        a.add64(sG, 4, WS_GH2)
        a.e(f"s_mov_b32 s{sG+2}, {32*GBIN}")
        a.e(f"s_mov_b32 s{sG+3}, 0x00020000")
        t = 8
        a.e(f"v_and_b32 v{t}, 15, v{lane}")
        a.e(f"v_or_b32 v{t+1}, 1, v{t}")
        a.e(f"s_lshl_b32 s66, s{sW}, 4")
        a.e(f"v_add_u32 v{t+1}, s66, v{t+1}")
        a.e(f"v_cvt_f32_u32 v{t+1}, v{t+1}")
        a.e(f"v_mul_f32 v{t+1}, 0x3c000000, v{t+1}")
        a.e(f"v_bfe_u32 v{t+2}, v{lane}, 4, 1")
        a.e(f"v_lshlrev_b32 v{t+2}, 3, v{t+2}")
        a.e(f"v_cvt_f32_u32 v{t+2}, v{t+2}")
        a.e(f"v_and_b32 v{t}, 1, v{t}")
        a.e(f"v_cvt_f32_u32 v{t}, v{t}")
        a.e(f"v_mul_f32 v{t}, 0x3f400000, v{t}")
        a.e(f"v_fma_f32 v{t+3}, v{t+1}, v{t+2}, v{t}")
        vals = t + 4
        cos_vals(a, vals, t + 3, t + 1, 8, None)
        for x in range(8):
            a.e(f"v_mul_f32 v{vals+x}, 0x3d000000, v{vals+x}")
        hi, lo = 20, 24
        for x in range(4):
            a.e(f"v_cvt_pk_bf16_f32 v{hi+x}, v{vals+2*x}, v{vals+2*x+1}")
        for x in range(4):
            a.e(f"v_lshlrev_b32 v28, 16, v{hi+x}")
            a.e(f"v_and_b32 v29, 0xffff0000, v{hi+x}")
            a.e(f"v_sub_f32 v28, v{vals+2*x}, v28")
            a.e(f"v_sub_f32 v29, v{vals+2*x+1}, v29")
            a.e(f"v_cvt_pk_bf16_f32 v{lo+x}, v28, v29")
        a.e(f"v_cmp_gt_u32 vcc, 32, v{lane}")
        a.e("s_nop 1")
        for x in range(4):
            a.e(f"v_cndmask_b32 v{hi+x}, v{lo+x}, v{hi+x}, vcc")
        TB = GX + 16 * 1152
        a.e(f"v_lshlrev_b32 v28, 4, v{lane}")
        a.e(f"v_add_u32 v28, {TB}, v28")
        a.e(f"s_lshl_b32 s66, s{sW}, 10")
        a.e(f"v_add_u32 v29, s66, v28")
        a.e(f"ds_write_b128 v29, v[{hi}:{hi+3}]")
        a.e(f"v_bfe_u32 v30, v{lane}, 2, 2")
        a.e(f"v_bfe_u32 v31, v{lane}, 4, 1")
        a.e("v_lshl_add_u32 v32, v31, 3, v30")
        a.e("v_mul_u32_u24 v32, 1152, v32")
        a.e("v_lshrrev_b32 v30, 1, v30")
        a.e("v_lshl_add_u32 v30, v31, 1, v30")
        a.e("v_lshlrev_b32 v30, 1, v30")
        a.e(f"v_bfe_u32 v31, v{lane}, 1, 1")
        a.e(f"s_lshl_b32 s66, s{sW}, 1")
        a.e("v_add_u32 v31, s66, v31")
        a.e("v_xor_b32 v30, v30, v31")
        a.e("v_lshl_add_u32 v32, v30, 4, v32")
        a.e(f"v_and_b32 v30, 1, v{lane}")
        a.e("v_lshl_add_u32 v32, v30, 3, v32")
        a.e(f"v_add_u32 v32, {GX}, v32")
        a.e(f"v_lshrrev_b32 v30, 4, v{lane}")
        a.e(f"s_mov_b32 s66, {2*GBIN}")
        a.e("v_mul_lo_u32 v30, v30, s66")
        a.e(f"v_and_b32 v31, 15, v{lane}")
        a.e("v_lshl_add_u32 v33, v31, 4, v30")
        a.e("s_lshl_b32 s67, s58, 15")
        a.e("s_lshl_b32 s66, s60, 2")
        a.e(f"s_add_u32 s66, s66, s{sW}")
        a.e("s_lshl_b32 s66, s66, 11")
        a.e("s_add_u32 s67, s67, s66")
        a.e("s_lshl_b32 s66, s59, 8")
        a.e("s_add_u32 s67, s67, s66")
        a.e("s_waitcnt lgkmcnt(0)")

    def g2_reads():
        for it in range(4):
            a.e(f"ds_read_b128 v[{AF+4*it}:{AF+4*it+3}], v28 offset:{it*1024}")
        for c in range(8):
            for xx in range(2):
                a.e(f"ds_read_b64_tr_b16 v[{BF+4*c+2*xx}:{BF+4*c+2*xx+1}], v32 offset:{c*128 + xx*4*1152}")
            if c == 4:
                a.e("s_waitcnt lgkmcnt(8)")

    def g2_mfma(it):
        if it == 0:
            a.e("s_waitcnt lgkmcnt(0)")
        for c in range(8):
            d = DD + 4 * c
            a.e(f"v_mfma_f32_16x16x32_bf16 v[{d}:{d+3}], v[{AF+4*it}:{AF+4*it+3}], v[{BF+4*c}:{BF+4*c+3}], 0")

    def g2_store(it):
        for e in range(4):
            pk = PK + 4 * (e & 1)
            for x in range(4):
                a.e(f"v_cvt_pk_bf16_f32 v{pk+x}, v{DD+8*x+e}, v{DD+8*x+4+e}")
            a.e(f"s_add_u32 s66, s67, {(8*it + (e >> 1))*GBIN + (e & 1)*1024}")
            a.e(f"buffer_store_dwordx4 v[{pk}:{pk+3}], v33, s[{sG}:{sG+3}], s66 offen")
            a.vm_issue(("GS", it))
            a.e("s_nop 1")

    g2_sched = {}
    if G2:
        g2_sched = {4: g2_reads}
        for it in range(4):
            g2_sched[5 + 2 * it] = (lambda i=it: g2_mfma(i))
            g2_sched[6 + 2 * it] = (lambda i=it: g2_store(i))

    a.vm = []
    NINIT = int(exp.split("ninit=")[1].split(",")[0]) if "ninit=" in exp else 2
    if "ninit2=" in exp and conv == 2: NINIT = int(exp.split("ninit2=")[1].split(",")[0])
    NINIT = min(NINIT, S - 1)
    for s in range(NINIT):
        issue(s)
    if G2: g2_setup()
    a.wait(vm_tags=(0,))
    a.e("s_barrier")
    nxt = NINIT
    issue(nxt); nxt += 1
    for s in range(NSTEP - 1):
        a.wait(vm_tags=(s + 1,))
        a.e("s_barrier")
        cnt = 0
        while nxt <= min(s + S, NSTEP - 1) and cnt < 2:
            issue(nxt); nxt += 1; cnt += 1
        if s in g2_sched: g2_sched[s]()
        if conv == 1 and not G2 and s == 11 and "w2pf" in exp.split(","):
            a.e("s_load_dwordx2 s[56:57], s[0:1], 16")
            a.e("s_lshr_b32 s58, s2, 4")
            a.e("s_bfe_u32 s59, s2, 0x20002")
            a.e("s_and_b32 s60, s2, 3")
            a.e("s_lshr_b32 s61, s58, 3")
            a.e("s_and_b32 s62, s58, 7")
            a.e("v_lshrrev_b32 v6, 3, v1")
            a.e("s_lshl_b32 s63, s59, 3")
            a.e("s_lshl_b32 s64, s62, 5")
            a.e("s_add_u32 s63, s63, s64")
            a.e("v_add_u32 v6, s63, v6")
            a.e("v_lshlrev_b32 v6, 9, v6")
            a.e("v_and_b32 v7, 7, v1")
            a.e("v_lshl_add_u32 v6, v7, 4, v6")
            a.e("s_lshl_b32 s64, s60, 7")
            a.e("v_add_u32 v6, s64, v6")
            a.e(f"s_lshl_b32 s64, s{sW}, 3")
            a.e("s_add_u32 s64, s64, s61")
            a.e("s_lshl_b32 s64, s64, 17")
            a.e("s_waitcnt lgkmcnt(0)")
            a.srd(48, "s56", "s57", 31 * 131072)
            for jj in range(4):
                a.e(f"s_add_u32 s66, s64, {jj*2*131072}")
                a.e(f"buffer_load_dwordx4 v[{8+4*jj}:{8+4*jj+3}], v6, s[48:51], s66 offen")
                a.vm_issue("W2PF")
        if fused and s == 9 and "nol2pf" not in exp:
            a.add64(48, 4, WS_TAB)
            a.e(f"s_mov_b32 s50, {TAB_END}")
            a.e("s_mov_b32 s51, 0x00020000")
            a.e("s_lshr_b32 s52, s2, 3")
            a.e("s_and_b32 s52, s52, 31")
            a.e("s_lshl_b32 s52, s52, 13")
            a.e(f"s_add_u32 s53, s52, {TAB_WF}")
            a.e("s_cmp_lt_u32 s52, 32768")
            a.e("s_cselect_b32 s52, s52, 0x7f000000")
            a.e(f"s_cmp_eq_u32 s{sW}, 0")
            a.e("s_cselect_b32 s52, s53, s52")
            a.e("v_lshlrev_b32 v6, 7, v1")
            a.e(f"s_cmp_ge_u32 s{sW}, 2")
            a.e(f"s_cbranch_scc1 L_{name}_nopf")
            a.e("buffer_load_dword v7, v6, s[48:51], s52 offen")
            a.label(f"L_{name}_nopf")
    assert nxt == NSTEP
    if ROLL:
        a.e("s_barrier")
        a.e("s_barrier")
    if LDSEP:
        a.e(f"s_mul_i32 s29, s{sM0}, {YROW}")
        a.e(f"s_add_u32 s29, s29, {WS_Y}")
        a.e(f"s_add_u32 s{sY}, s4, s29")
        a.e(f"s_addc_u32 s{sY+1}, s5, 0")
        a.e(f"s_mul_i32 s{sY+2}, s28, {YROW}")
        a.e(f"s_mov_b32 s{sY+3}, 0x00020000")
        a.e(f"s_add_u32 s37, s{sW}, 4")
        a.e("s_barrier")
        a.label(f"L_{name}_drain")
        LPR = RB // 16
        RPI = 64 // LPR
        NI = 96 // RPI // 8
        a.e("v_mbcnt_lo_u32_b32 v1, -1, 0")
        a.e("v_mbcnt_hi_u32_b32 v1, -1, v1")
        a.e(f"v_lshrrev_b32 v2, {LPR.bit_length()-1}, v1")
        a.e(f"v_and_b32 v3, {LPR-1}, v1")
        a.e(f"s_mul_i32 s29, s37, {NI*RPI}")
        a.e("v_add_u32 v2, s29, v2")
        a.e(f"v_mul_u32_u24 v4, {OTP}, v2")
        a.e("v_lshl_add_u32 v4, v3, 4, v4")
        a.e(f"v_add_u32 v4, {OTB}, v4")
        a.e(f"v_mul_u32_u24 v5, {YROW}, v2")
        a.e("v_lshl_add_u32 v5, v3, 4, v5")
        a.e(f"s_mul_i32 s29, s{sBin}, {Y_BIN}")
        a.e(f"s_mul_i32 s30, s27, {RB}")
        a.e("s_add_u32 s29, s29, s30")
        for i in range(NI):
            a.e(f"ds_read_b128 v[{8+4*i}:{8+4*i+3}], v4 offset:{i*RPI*OTP}")
        for i in range(NI):
            a.e(f"s_waitcnt lgkmcnt({NI-1-i})")
            a.e(f"s_add_u32 s30, s29, {i*RPI*YROW}")
            a.e(f"buffer_store_dwordx4 v[{8+4*i}:{8+4*i+3}], v5, s[{sY}:{sY+3}], s30 offen")
        if fused:
            raise NotImplementedError("fused + LDS epilogue: flag hand-off not wired")
        a.end()
    a.label(f"L_{name}_done")
    a.e("s_endpgm")
    if "consfirst" not in exp.split(","):
        i_load = a.L.index(f"L_{name}_loader:")
        cons, load = a.L[i_cons:i_load], a.L[i_load + 1:]
        head = a.L[:i_cons - 2] + [f"    s_cmp_lt_u32 s{sW}, 4", f"    s_cbranch_scc1 L_{name}_consumer"]
        a.L = head + load + [f"L_{name}_consumer:"] + cons
    return a.text(), LDS, NV
```

```python
from asmlib import Asm, Stamps, f2u
from layout import *
from prep import ghat_part

GK0 = -2.302208198144325
GK1 = GK0 * 0.044715


def gelu_group(a, xs, tmp, s0):
    n = len(xs)
    for i, x in enumerate(xs):
        a.e(f"v_mul_f32 v{tmp+i}, v{x}, v{x}")
    for i, x in enumerate(xs):
        a.e(f"v_fma_f32 v{tmp+i}, v{tmp+i}, s{s0}, v{x}") if False else None
    for i, x in enumerate(xs):
        a.e(f"v_mul_f32 v{tmp+i}, s{s0}, v{tmp+i}")
    for i, x in enumerate(xs):
        a.e(f"v_add_f32 v{tmp+i}, s{s0+1}, v{tmp+i}")
    for i, x in enumerate(xs):
        a.e(f"v_mul_f32 v{tmp+i}, v{tmp+i}, v{x}")
    for i, x in enumerate(xs):
        a.e(f"v_exp_f32 v{tmp+i}, v{tmp+i}")
    for i, x in enumerate(xs):
        a.e(f"v_add_f32 v{tmp+i}, 1.0, v{tmp+i}")
    for i, x in enumerate(xs):
        a.e(f"v_rcp_f32 v{tmp+i}, v{tmp+i}")
    for i, x in enumerate(xs):
        a.e(f"v_mul_f32 v{x}, v{x}, v{tmp+i}")


def gelu_group2(a, xs, tmp, vk1, s0):
    for i, x in enumerate(xs):
        a.e(f"v_mul_f32 v{tmp+i}, v{x}, v{x}")
    for i, x in enumerate(xs):
        a.e(f"v_fma_f32 v{tmp+i}, v{tmp+i}, s{s0}, v{vk1}")
    for i, x in enumerate(xs):
        a.e(f"v_mul_f32 v{tmp+i}, v{tmp+i}, v{x}")
    for i, x in enumerate(xs):
        a.e(f"v_exp_f32 v{tmp+i}, v{tmp+i}")
    for i, x in enumerate(xs):
        a.e(f"v_add_f32 v{tmp+i}, 1.0, v{tmp+i}")
    for i, x in enumerate(xs):
        a.e(f"v_rcp_f32 v{tmp+i}, v{tmp+i}")
    for i, x in enumerate(xs):
        a.e(f"v_mul_f32 v{x}, v{x}, v{tmp+i}")


def gelu_group_pk(a, xs, tmp, vk0, sk1):
    n = len(xs)
    x0 = xs[0]
    assert x0 % 2 == 0 and tmp % 2 == 0 and vk0 % 2 == 0 and sk1 % 2 == 0 and xs == list(range(x0, x0 + n))
    P = range(0, n, 2)
    for i in P:
        a.e(f"v_pk_mul_f32 v[{tmp+i}:{tmp+i+1}], v[{x0+i}:{x0+i+1}], v[{x0+i}:{x0+i+1}]")
    for i in P:
        a.e(f"v_pk_fma_f32 v[{tmp+i}:{tmp+i+1}], v[{tmp+i}:{tmp+i+1}], s[{sk1}:{sk1+1}], v[{vk0}:{vk0+1}]")
    for i in P:
        a.e(f"v_pk_mul_f32 v[{tmp+i}:{tmp+i+1}], v[{tmp+i}:{tmp+i+1}], v[{x0+i}:{x0+i+1}]")
    for i in range(n):
        a.e(f"v_exp_f32 v{tmp+i}, v{tmp+i}")
    for i in P:
        a.e(f"v_pk_add_f32 v[{tmp+i}:{tmp+i+1}], v[{tmp+i}:{tmp+i+1}], 1.0 op_sel_hi:[1,0]")
    for i in range(n):
        a.e(f"v_rcp_f32 v{tmp+i}, v{tmp+i}")
    for i in P:
        a.e(f"v_pk_mul_f32 v[{x0+i}:{x0+i+1}], v[{x0+i}:{x0+i+1}], v[{tmp+i}:{tmp+i+1}]")


def mid_kernel(name, exp=""):
    a = Asm()
    NMAIN = 2 * 28 * 8
    G2 = "g2inprep" not in exp and "g2ingemm" not in exp
    NWG = NMAIN + (256 if G2 else 0)
    sW = 20
    STG = 0
    HT = 32768
    PL = 160 * 64
    LDS = HT + 2 * PL
    SH0, SH1 = 17 * 64, 16 * 64
    sY, sT, sO = 8, 12, 16
    a.label(name)
    a.e(f"s_cmp_ge_u32 s2, {NWG}")
    a.e(f"s_cbranch_scc1 L_{name}_done")
    if "trace" in exp and a.trace_region is None: a.trace_begin(2)
    if "dbgtime" in exp: a.trace_begin(2, dbg=True)
    st_ = Stamps(a, "stamp" in exp)
    st_.begin()
    a.e(f"v_readfirstlane_b32 s{sW}, v0")
    a.e(f"s_lshr_b32 s{sW}, s{sW}, 6")
    GFIRST = G2 and "gfirst" in exp
    if G2 and not GFIRST:
        a.e(f"s_cmp_ge_u32 s2, {NMAIN}")
        a.e(f"s_cbranch_scc1 L_{name}_g")
    if GFIRST:
        a.e("s_cmp_lt_u32 s2, 256")
        a.e(f"s_cbranch_scc1 L_{name}_g")
        a.e("s_sub_u32 s3, s2, 256")
    else:
        a.e("s_mov_b32 s3, s2")
    a.e("s_load_dwordx2 s[6:7], s[0:1], 72")
    a.e(f"s_load_dwordx2 s[4:5], s[0:1], {X_PTR}")
    a.e("s_cmp_ge_u32 s3, 224")
    a.e("s_cselect_b32 s24, 1, 0")
    a.e("s_mul_i32 s25, s24, 224")
    a.e("s_sub_u32 s25, s3, s25")
    a.e("s_lshr_b32 s26, s25, 3")
    a.e("s_and_b32 s27, s25, 7")
    lane = 1
    a.e(f"v_and_b32 v{lane}, 63, v0")
    a.e(f"v_lshrrev_b32 v2, 3, v{lane}")
    a.e(f"v_mul_u32_u24 v2, {Y_BIN}, v2")
    a.e(f"v_bfe_u32 v3, v{lane}, 2, 1")
    a.e("v_lshl_add_u32 v2, v3, 6, v2")
    a.e(f"v_lshrrev_b32 v3, 5, v{lane}")
    a.e("v_lshlrev_b32 v3, 1, v3")
    a.e(f"v_and_b32 v4, 3, v{lane}")
    a.e("v_xor_b32 v3, v3, v4")
    a.e("v_lshl_add_u32 v2, v3, 4, v2")
    a.e("s_mul_i32 s28, s26, 6")
    a.e(f"s_lshl_b32 s29, s{sW}, 1")
    a.e("s_add_u32 s28, s28, s29")
    a.e("s_sub_u32 s28, s28, 1")
    a.e(f"s_mul_i32 s30, s27, {Y_CG}")
    for bb in range(2):
        a.e(f"s_add_u32 s31, s28, {bb}")
        a.e(f"s_mul_i32 s32, s31, {YROW}")
        a.e("s_add_u32 s32, s32, s30")
        a.e("s_cmp_lt_i32 s31, 0")
        a.e("s_cselect_b32 s32, 0x7f000000, s32")
        a.e(f"v_add_u32 v{3+bb}, s32, v2")
    a.e("s_waitcnt lgkmcnt(0)")
    a.e(f"s_mul_i32 s33, s24, {NB1*YROW}")
    a.e(f"s_add_u32 s33, s33, {WS_YH1}")
    a.e(f"s_add_u32 s{sY}, s6, s33")
    a.e(f"s_addc_u32 s{sY+1}, s7, 0")
    a.e(f"s_mov_b32 s{sY+2}, {NB1*YROW}")
    a.e(f"s_mov_b32 s{sY+3}, 0x00020000")
    a.add64(sT, 6, WS_TAB)
    a.e(f"s_mov_b32 s{sT+2}, 16384")
    a.e(f"s_mov_b32 s{sT+3}, 0x00020000")
    if "fuse" in exp.split(","):
        a.e(f"s_or_b32 s35, s2, s{sW}")
        a.e("s_cmp_lg_u32 s35, 0")
        a.e(f"s_cbranch_scc1 L_{name}_nozero")
        a.add64(44, 6, WS_TAB)
        a.e(f"s_mov_b32 s46, {TAB_END}")
        a.e("s_mov_b32 s47, 0x00020000")
        a.e(f"s_mov_b32 s35, {TAB_FLG}")
        for x in range(4):
            a.e(f"v_mov_b32 v{8+x}, 0")
        a.e(f"v_lshlrev_b32 v5, 4, v{lane}")
        a.e("buffer_store_dwordx4 v[8:11], v5, s[44:47], s35 offen")
        a.e("s_nop 1")
        a.label(f"L_{name}_nozero")
    a.e(f"s_lshl_b32 s34, s{sW}, 13")
    for bb in range(2):
        for q in range(4):
            a.e(f"s_add_u32 m0, s34, {STG + bb*4096 + q*1024}")
            a.e(f"s_mov_b32 s35, {q*8*Y_BIN}")
            a.e(f"buffer_load_dwordx4 v{3+bb}, s[{sY}:{sY+3}], s35 offen lds")
            a.vm_issue(("Y", bb))
    FI, FF = 8, 32
    a.e(f"v_lshlrev_b32 v5, 4, v{lane}")
    for jt in range(3):
        for kk in range(2):
            r_ = FI + (jt * 2 + kk) * 4
            a.e(f"s_mov_b32 s35, {TAB_FI + (jt*2+kk)*1024}")
            a.e(f"buffer_load_dwordx4 v[{r_}:{r_+3}], v5, s[{sT}:{sT+3}], s35 offen")
            a.vm_issue("FI")
    a.e(f"s_lshl_b32 s35, s{sW}, 11")
    for kk in range(2):
        a.e(f"buffer_load_dwordx4 v[{FF+4*kk}:{FF+4*kk+3}], v5, s[{sT}:{sT+3}], s35 offen offset:{TAB_F + kk*1024}")
        a.vm_issue("F")
    rr, gg, cc = 40, 41, 42
    a.e(f"v_bfe_u32 v{rr}, v{lane}, 2, 2")
    a.e(f"v_lshrrev_b32 v{gg}, 4, v{lane}")
    a.e(f"v_and_b32 v{cc}, 3, v{lane}")
    vI = [44, 45]
    a.e(f"v_lshl_add_u32 v43, v{gg}, 3, v{rr}")
    a.e(f"v_lshlrev_b32 v46, 6, v43")
    a.e(f"v_and_b32 v47, 1, v{gg}")
    a.e("v_lshlrev_b32 v47, 1, v47")
    a.e(f"v_lshrrev_b32 v48, 1, v{cc}")
    a.e("v_xor_b32 v47, v47, v48")
    a.e("v_lshl_add_u32 v46, v47, 4, v46")
    a.e(f"v_and_b32 v48, 1, v{cc}")
    a.e("v_lshl_add_u32 v46, v48, 3, v46")
    a.e(f"v_add_u32 v{vI[0]}, s34, v46")
    a.e(f"v_xor_b32 v{vI[1]}, 32, v{vI[0]}")
    vF0 = [49, 50]
    a.e(f"v_add_u32 v{vF0[0]}, {HT + PL + 16*64 - SH1}, v46")
    a.e(f"v_xor_b32 v{vF0[1]}, 32, v{vF0[0]}")
    vF1 = [[51, 52], [53, 54]]
    for xx in range(2):
        a.e(f"v_add_u32 v47, {1 + 4*xx}, v43")
        a.e("v_bfe_u32 v48, v47, 3, 1")
        a.e("v_lshlrev_b32 v48, 1, v48")
        a.e(f"v_lshrrev_b32 v55, 1, v{cc}")
        a.e("v_xor_b32 v48, v48, v55")
        a.e(f"v_lshlrev_b32 v47, 6, v47")
        a.e("v_lshl_add_u32 v47, v48, 4, v47")
        a.e(f"v_and_b32 v48, 1, v{cc}")
        a.e("v_lshl_add_u32 v47, v48, 3, v47")
        a.e(f"v_add_u32 v{vF1[xx][0]}, {HT + 16*64 - SH0}, v47")
        a.e(f"v_xor_b32 v{vF1[xx][1]}, 32, v{vF1[xx][0]}")
    vH = [56, 57]
    vRho = 62 + 60
    a.e(f"v_and_b32 v47, 1, v{lane}")
    a.e(f"v_mul_u32_u24 v55, {PL - SH1 + SH0}, v47")
    a.e(f"v_bfe_u32 v48, v{lane}, 1, 3")
    a.e("v_lshl_add_u32 v55, v48, 6, v55")
    a.e(f"v_lshl_add_u32 v55, v{gg}, 4, v55")
    a.e(f"s_mul_i32 s35, s{sW}, {48*64}")
    a.e(f"s_add_u32 s35, s35, {HT - SH0}")
    a.e(f"v_add_u32 v{vH[0]}, s35, v55")
    a.e(f"v_xor_b32 v{vH[1]}, 32, v{vH[0]}")
    a.e(f"s_mul_i32 s35, s{sW}, 48")
    a.e(f"s_sub_u32 s35, s35, 17")
    a.e(f"v_add_u32 v{vRho}, v48, v47")
    a.e(f"v_add_u32 v{vRho}, s35, v{vRho}")
    vS = 58
    a.e(f"s_mov_b32 s35, {XBIN2}")
    a.e(f"v_mul_lo_u32 v{vS}, v48, s35")
    a.e(f"v_and_b32 v47, 1, v{lane}")
    a.e(f"v_lshl_add_u32 v{vS}, v47, 6, v{vS}")
    a.e(f"v_lshl_add_u32 v{vS}, v{gg}, 4, v{vS}")
    vK0 = 59
    a.e(f"s_mov_b32 s36, 0x{f2u(GK1):08x}")
    a.e(f"v_mov_b32 v{vK0}, 0x{f2u(GK0):08x}")
    a.e(f"s_mov_b32 s42, 0x{f2u(GK1):08x}")
    a.e(f"s_mov_b32 s43, 0x{f2u(GK1):08x}")
    a.e(f"v_mov_b32 v120, 0x{f2u(GK0):08x}")
    a.e(f"v_mov_b32 v121, 0x{f2u(GK0):08x}")
    a.add64(sO, 4, WS_XH2)
    a.e(f"s_mov_b32 s{sO+2}, {32*XBIN2}")
    a.e(f"s_mov_b32 s{sO+3}, 0x00020000")
    a.e(f"s_mul_i32 s37, s{sW}, {8*XBIN2}")
    a.e(f"s_mul_i32 s38, s24, {NB2}")
    a.e("s_mul_i32 s39, s26, 3")
    a.e("s_add_u32 s38, s38, s39")
    a.e("s_lshl_b32 s38, s38, 11")
    a.e("s_add_u32 s37, s37, s38")
    a.e("s_lshl_b32 s38, s27, 7")
    a.e("s_add_u32 s37, s37, s38")
    AA, DD, TT, PK = 60, 76, 100, 108
    st_.stamp()
    ROLLB = "unrollb" not in exp.split(",")
    if ROLLB:
        a.wait(vm_tags=(("Y", 0), ("Y", 1), "FI"))
        st_.stamp()
        a.e("s_mov_b32 s44, 2")
        a.label(f"L_{name}_bb")
        for t in range(2):
            for kk in range(2):
                r_ = AA + (t * 2 + kk) * 4
                for xx in range(2):
                    a.e(f"ds_read_b64_tr_b16 v[{r_+2*xx}:{r_+2*xx+1}], v{vI[t]} offset:{kk*2048 + xx*256}")
        a.e(f"s_cmp_eq_u32 s28, {NB1-1}")
        a.e("s_cselect_b32 s39, 0, -1")
        a.e("s_waitcnt lgkmcnt(0)")
        for kk in range(2):
            for jt in range(3):
                for t in range(2):
                    d = DD + (jt * 2 + t) * 4
                    r_ = AA + (t * 2 + kk) * 4
                    f = FI + (jt * 2 + kk) * 4
                    c = "0" if kk == 0 else f"v[{d}:{d+3}]"
                    a.e(f"v_mfma_f32_16x16x32_bf16 v[{d}:{d+3}], v[{r_}:{r_+3}], v[{f}:{f+3}], {c}")
        for t in range(2):
            a.e(f"v_add_u32 v{vI[t]}, 4096, v{vI[t]}")
        a.e("s_add_u32 s28, s28, 1")
        a.e("s_nop 4")
        for jt in range(3):
            xs = [DD + jt * 8 + i for i in range(8)]
            if "pk" not in exp.split(","): gelu_group2(a, xs, TT, vK0, 36)
            else: gelu_group_pk(a, xs, TT, 120, 42)
            pk = PK + jt * 4
            for i in range(4):
                a.e(f"v_cvt_pk_bf16_f32 v{pk+i}, v{xs[2*i]}, v{xs[2*i+1]}")
            if jt == 2:
                for i in range(4):
                    a.e(f"v_and_b32 v{pk+i}, s39, v{pk+i}")
            a.e(f"v_add_u32 v{vRho+1}, {8*jt}, v{vRho}")
            a.e(f"v_cmp_gt_u32 vcc, 160, v{vRho+1}")
            a.e("s_nop 0")
            a.e("s_and_saveexec_b64 s[40:41], vcc")
            a.e(f"ds_write_b128 v{vH[jt & 1]}, v[{pk}:{pk+3}] offset:{8*jt*64}")
            a.e("s_mov_b64 exec, s[40:41]")
        for i in range(2):
            a.e(f"v_xor_b32 v{vH[i]}, 32, v{vH[i]}")
            a.e(f"v_add_u32 v{vH[i]}, {24*64}, v{vH[i]}")
        a.e(f"v_add_u32 v{vRho}, 24, v{vRho}")
        a.e("s_sub_u32 s44, s44, 1")
        a.e("s_cmp_lg_u32 s44, 0")
        a.e(f"s_cbranch_scc1 L_{name}_bb")
    else:
        for bb in range(2):
            a.wait(vm_tags=(("Y", bb),) if bb == 1 else (("Y", 0), "FI"))
            if bb == 0:
                st_.stamp()
            for t in range(2):
                for kk in range(2):
                    r_ = AA + (t * 2 + kk) * 4
                    for xx in range(2):
                        a.e(f"ds_read_b64_tr_b16 v[{r_+2*xx}:{r_+2*xx+1}], v{vI[t]} offset:{bb*4096 + kk*2048 + xx*256}")
            a.e("s_waitcnt lgkmcnt(0)")
            for kk in range(2):
                for jt in range(3):
                    for t in range(2):
                        d = DD + (jt * 2 + t) * 4
                        r_ = AA + (t * 2 + kk) * 4
                        f = FI + (jt * 2 + kk) * 4
                        c = "0" if kk == 0 else f"v[{d}:{d+3}]"
                        a.e(f"v_mfma_f32_16x16x32_bf16 v[{d}:{d+3}], v[{r_}:{r_+3}], v[{f}:{f+3}], {c}")
            a.e(f"s_add_u32 s31, s28, {bb}")
            a.e(f"s_cmp_eq_u32 s31, {NB1-1}")
            a.e("s_cselect_b32 s39, 0, -1")
            a.e("s_nop 4")
            for jt in range(3):
                xs = [DD + jt * 8 + i for i in range(8)]
                if "pk" not in exp.split(","): gelu_group2(a, xs, TT, vK0, 36)
                else: gelu_group_pk(a, xs, TT, 120, 42)
                pk = PK + jt * 4
                for i in range(4):
                    a.e(f"v_cvt_pk_bf16_f32 v{pk+i}, v{xs[2*i]}, v{xs[2*i+1]}")
                if jt == 2:
                    for i in range(4):
                        a.e(f"v_and_b32 v{pk+i}, s39, v{pk+i}")
                a.e(f"v_add_u32 v{vRho+1}, {24*bb + 8*jt}, v{vRho}")
                a.e(f"v_cmp_gt_u32 vcc, 160, v{vRho+1}")
                a.e("s_nop 0")
                a.e("s_and_saveexec_b64 s[40:41], vcc")
                a.e(f"ds_write_b128 v{vH[(bb + jt) & 1]}, v[{pk}:{pk+3}] offset:{(24*bb + 8*jt)*64}")
                a.e("s_mov_b64 exec, s[40:41]")
    st_.stamp()
    a.wait(vm_tags=("F",))
    a.e("s_waitcnt lgkmcnt(0)")
    a.e("s_barrier")
    st_.stamp()
    units = [(aa, p) for aa in range(3) for p in range(2)]
    A2 = [60, 76]
    D2 = [92, 100]
    PK2 = [108, 112]

    def fwd_reads(u):
        aa, p = units[u]
        base = A2[u & 1]
        for t in range(2):
            for kk in range(2):
                r_ = base + (t * 2 + kk) * 4
                for xx in range(2):
                    if p == 0:
                        va, off = vF0[t], (48 * aa + 32 * kk + 4 * xx) * 64
                    else:
                        va, off = vF1[xx][t], (48 * aa + 32 * kk) * 64
                    a.e(f"ds_read_b64_tr_b16 v[{r_+2*xx}:{r_+2*xx+1}], v{va} offset:{off}")
                    a.lg_issue(("A2", u))

    a.lg = []
    fwd_reads(0)
    for u, (aa, p) in enumerate(units):
        a.wait(lg_tags=(("A2", u),))
        if u + 1 < len(units):
            pass
        base = A2[u & 1]
        dd = D2[u & 1]
        for kk in range(2):
            for t in range(2):
                d = dd + t * 4
                r_ = base + (t * 2 + kk) * 4
                c = "0" if kk == 0 else f"v[{d}:{d+3}]"
                a.e(f"v_mfma_f32_16x16x32_bf16 v[{d}:{d+3}], v[{r_}:{r_+3}], v[{FF+4*kk}:{FF+4*kk+3}], {c}")
        if u + 1 < len(units):
            fwd_reads(u + 1)
        else:
            a.e("s_nop 7")
        pk = PK2[u & 1]
        a.e(f"v_cvt_pk_bf16_f32 v{pk}, v{dd}, v{dd+1}")
        a.e(f"v_cvt_pk_bf16_f32 v{pk+1}, v{dd+2}, v{dd+3}")
        a.e(f"v_cvt_pk_bf16_f32 v{pk+2}, v{dd+4}, v{dd+5}")
        a.e(f"v_cvt_pk_bf16_f32 v{pk+3}, v{dd+6}, v{dd+7}")
        a.e(f"s_add_u32 s38, s37, {aa*2048 + p*8*128}")
        a.e(f"buffer_store_dwordx4 v[{pk}:{pk+3}], v{vS}, s[{sO}:{sO+3}], s38 offen")
    if st_.on:
        st_.stamp()
        a.e("s_waitcnt vmcnt(0)")
        st_.stamp()
        st_.dump(int(exp.split("wg=")[1].split(",")[0]) if "wg=" in exp else 0, sW, 0, f"L_{name}_nodump")
    a.end()
    if G2:
        a.label(f"L_{name}_g")
        if GFIRST: a.e("s_mov_b32 s3, s2")
        else: a.e(f"s_sub_u32 s3, s2, {NMAIN}")
        ghat_part(a, name, 2, sW, "s3", roll="unrollb" not in exp.split(","))
    a.label(f"L_{name}_done")
    a.e("s_endpgm")
    return a.text(), LDS, 128, NWG
```

```python
from asmlib import Asm, Stamps, f2u
from layout import *

LOG2E2 = 2.8853900817779268


def cos_vals(a, dst, rev0, step, n, tmp):
    for x in range(n):
        if x == 0:
            a.e(f"v_fract_f32 v{dst}, v{rev0}")
        else:
            a.e(f"v_add_f32 v{rev0}, v{rev0}, v{step}")
            a.e(f"v_fract_f32 v{dst+x}, v{rev0}")
    for x in range(n):
        a.e(f"v_cos_f32 v{dst+x}, v{dst+x}")
    a.e("s_nop 0")


def fwd_table_frag(a, jt_sgpr_or_int, kk, out, t):
    j, g, fo, rev = t + 1, t + 2, t + 3, t + 4
    vals = t + 5
    a.e(f"v_and_b32 v{j}, 15, v{t}")
    a.e(f"v_lshrrev_b32 v{g}, 4, v{t}")
    a.e(f"v_or_b32 v{fo}, 1, v{j}")
    if isinstance(jt_sgpr_or_int, int):
        a.e(f"v_add_u32 v{fo}, {16*jt_sgpr_or_int}, v{fo}")
    else:
        a.e(f"v_add_u32 v{fo}, {jt_sgpr_or_int}, v{fo}")
    a.e(f"v_cvt_f32_u32 v{fo}, v{fo}")
    a.e(f"v_mul_f32 v{fo}, 0x3c000000, v{fo}")
    a.e(f"v_lshlrev_b32 v{g}, 3, v{g}")
    a.e(f"v_add_u32 v{g}, {32*kk}, v{g}")
    a.e(f"v_cvt_f32_u32 v{g}, v{g}")
    a.e(f"v_and_b32 v{j}, 1, v{j}")
    a.e(f"v_cvt_f32_u32 v{j}, v{j}")
    a.e(f"v_mul_f32 v{j}, 0x3e800000, v{j}")
    a.e(f"v_fma_f32 v{rev}, v{fo}, v{g}, v{j}")
    cos_vals(a, vals, rev, fo, 8, None)
    for x in range(4):
        a.e(f"v_cvt_pk_bf16_f32 v{out+x}, v{vals+2*x}, v{vals+2*x+1}")


def ghat_part(a, name, conv, sW, wg_sgpr, lds_base=0, st_=None, wgsel=0, roll=True):
    WS_G = WS_GH1 if conv == 1 else WS_GH2
    sWt, sG = 8, 12
    a.e(f"s_load_dwordx2 s[4:5], s[0:1], {8 if conv == 1 else 16}")
    a.e("s_load_dwordx2 s[6:7], s[0:1], 72")
    a.e(f"s_lshr_b32 s24, {wg_sgpr}, 4")
    a.e(f"s_bfe_u32 s25, {wg_sgpr}, 0x20002")
    a.e(f"s_and_b32 s26, {wg_sgpr}, 3")
    a.e("s_lshr_b32 s27, s24, 3")
    a.e("s_and_b32 s28, s24, 7")
    lane = 1
    a.e(f"v_and_b32 v{lane}, 63, v0")
    a.e(f"v_lshrrev_b32 v2, 3, v{lane}")
    if conv == 1:
        a.e("v_lshrrev_b32 v3, 2, v2")
        a.e("v_lshlrev_b32 v3, 4, v3")
        a.e("v_and_b32 v4, 3, v2")
        a.e("v_add_u32 v3, v3, v4")
        a.e("s_lshl_b32 s29, s25, 2")
    else:
        a.e("v_mov_b32 v3, v2")
        a.e("s_lshl_b32 s29, s25, 3")
    a.e("s_lshl_b32 s30, s28, 5")
    a.e("s_add_u32 s29, s29, s30")
    a.e("v_add_u32 v3, s29, v3")
    a.e("v_lshlrev_b32 v3, 9, v3")
    a.e(f"v_and_b32 v4, 7, v{lane}")
    a.e(f"s_lshr_b32 s30, s{sW}, 1")
    a.e("s_lshl_b32 s30, s30, 2")
    a.e("v_xor_b32 v4, s30, v4")
    a.e("v_lshl_add_u32 v3, v4, 4, v3")
    a.e("s_lshl_b32 s30, s26, 7")
    a.e("v_add_u32 v3, s30, v3")
    a.e("v_xor_b32 v4, 32, v3")
    a.e("s_waitcnt lgkmcnt(0)")
    a.srd(sWt, "s4", "s5", 31 * 131072)
    a.add64(sG, 6, WS_G)
    a.e(f"s_mov_b32 s{sG+2}, {32*GBIN}")
    a.e(f"s_mov_b32 s{sG+3}, 0x00020000")
    a.e(f"s_lshl_b32 s30, s{sW}, 3")
    a.e("s_add_u32 s30, s30, s27")
    a.e("s_lshl_b32 s30, s30, 17")
    a.e(f"s_mul_i32 s31, s{sW}, {4*1152}")
    for jj in range(4):
        a.e(f"s_add_u32 m0, s31, {lds_base + jj*1152}")
        a.e(f"s_add_u32 s32, s30, {jj*2*131072}")
        a.e(f"buffer_load_dwordx4 v{3 if jj < 2 else 4}, s[{sWt}:{sWt+3}], s32 offen lds")
    t = 8
    a.e(f"v_and_b32 v{t}, 15, v{lane}")
    a.e(f"v_or_b32 v{t+1}, 1, v{t}")
    a.e(f"s_lshl_b32 s33, s{sW}, 4")
    a.e(f"v_add_u32 v{t+1}, s33, v{t+1}")
    a.e(f"v_cvt_f32_u32 v{t+1}, v{t+1}")
    a.e(f"v_mul_f32 v{t+1}, 0x3c000000, v{t+1}")
    a.e(f"v_bfe_u32 v{t+2}, v{lane}, 4, 1")
    a.e(f"v_lshlrev_b32 v{t+2}, 3, v{t+2}")
    a.e(f"v_cvt_f32_u32 v{t+2}, v{t+2}")
    a.e(f"v_and_b32 v{t}, 1, v{t}")
    a.e(f"v_cvt_f32_u32 v{t}, v{t}")
    a.e(f"v_mul_f32 v{t}, 0x3f400000, v{t}")
    a.e(f"v_fma_f32 v{t+3}, v{t+1}, v{t+2}, v{t}")
    vals = t + 4
    cos_vals(a, vals, t + 3, t + 1, 8, None)
    for x in range(8):
        a.e(f"v_mul_f32 v{vals+x}, 0x3d000000, v{vals+x}")
    hi, lo = 20, 24
    for x in range(4):
        a.e(f"v_cvt_pk_bf16_f32 v{hi+x}, v{vals+2*x}, v{vals+2*x+1}")
    for x in range(4):
        a.e(f"v_lshlrev_b32 v28, 16, v{hi+x}")
        a.e(f"v_and_b32 v29, 0xffff0000, v{hi+x}")
        a.e(f"v_sub_f32 v28, v{vals+2*x}, v28")
        a.e(f"v_sub_f32 v29, v{vals+2*x+1}, v29")
        a.e(f"v_cvt_pk_bf16_f32 v{lo+x}, v28, v29")
    a.e(f"v_cmp_gt_u32 vcc, 32, v{lane}")
    a.e("s_nop 1")
    for x in range(4):
        a.e(f"v_cndmask_b32 v{hi+x}, v{lo+x}, v{hi+x}, vcc")
    TB = lds_base + 16 * 1152
    a.e(f"v_lshlrev_b32 v28, 4, v{lane}")
    a.e(f"s_lshl_b32 s33, s{sW}, 10")
    a.e(f"v_add_u32 v29, s33, v28")
    a.e(f"ds_write_b128 v29, v[{hi}:{hi+3}] offset:{TB}")
    a.e(f"v_bfe_u32 v30, v{lane}, 2, 2")
    a.e(f"v_bfe_u32 v31, v{lane}, 4, 1")
    a.e("v_lshl_add_u32 v32, v31, 3, v30")
    a.e("v_mul_u32_u24 v32, 1152, v32")
    a.e("v_lshrrev_b32 v30, 1, v30")
    a.e("v_lshl_add_u32 v30, v31, 1, v30")
    a.e("v_lshlrev_b32 v30, 1, v30")
    a.e(f"v_bfe_u32 v31, v{lane}, 1, 1")
    a.e(f"s_lshl_b32 s33, s{sW}, 1")
    a.e("v_add_u32 v31, s33, v31")
    a.e("v_xor_b32 v30, v30, v31")
    a.e("v_lshl_add_u32 v32, v30, 4, v32")
    a.e(f"v_and_b32 v30, 1, v{lane}")
    a.e("v_lshl_add_u32 v32, v30, 3, v32")
    a.e(f"v_lshrrev_b32 v30, 4, v{lane}")
    a.e(f"s_mov_b32 s33, {2*GBIN}")
    a.e("v_mul_lo_u32 v30, v30, s33")
    a.e(f"v_and_b32 v31, 15, v{lane}")
    a.e("v_lshl_add_u32 v33, v31, 4, v30")
    a.e("s_lshl_b32 s34, s24, 15")
    a.e("s_lshl_b32 s35, s26, 2")
    a.e(f"s_add_u32 s35, s35, s{sW}")
    a.e("s_lshl_b32 s35, s35, 11")
    a.e("s_add_u32 s34, s34, s35")
    a.e("s_lshl_b32 s35, s25, 8")
    a.e("s_add_u32 s34, s34, s35")
    if st_: st_.stamp()
    a.e("s_waitcnt vmcnt(0) lgkmcnt(0)")
    if st_: st_.stamp()
    a.e("s_barrier")
    if st_: st_.stamp()
    AF, BF, DD, PK = 36, 52, 84, 116
    if roll:
        a.e(f"ds_read_b128 v[{AF}:{AF+3}], v28 offset:{TB}")
        for c in range(8):
            for xx in range(2):
                a.e(f"ds_read_b64_tr_b16 v[{BF+4*c+2*xx}:{BF+4*c+2*xx+1}], v32 offset:{lds_base + c*128 + xx*4*1152}")
            if c == 5:
                a.e("s_waitcnt lgkmcnt(8)")
        a.e("s_mov_b32 s36, 4")
        a.label(f"L_{name}_git{conv}")
        a.e("s_waitcnt lgkmcnt(0)")
        for c in range(8):
            d = DD + 4 * c
            a.e(f"v_mfma_f32_16x16x32_bf16 v[{d}:{d+3}], v[{AF}:{AF+3}], v[{BF+4*c}:{BF+4*c+3}], 0")
        a.e("v_add_u32 v28, 1024, v28")
        a.e(f"ds_read_b128 v[{AF}:{AF+3}], v28 offset:{TB}")
        a.e("s_nop 7")
        for e in range(4):
            pk = PK + 4 * (e & 1)
            for x in range(4):
                a.e(f"v_cvt_pk_bf16_f32 v{pk+x}, v{DD+8*x+e}, v{DD+8*x+4+e}")
            a.e(f"s_add_u32 s35, s34, {(e >> 1)*GBIN + (e & 1)*1024}")
            a.e(f"buffer_store_dwordx4 v[{pk}:{pk+3}], v33, s[{sG}:{sG+3}], s35 offen")
            a.e("s_nop 1")
        a.e(f"s_add_u32 s34, s34, {8*GBIN}")
        a.e("s_sub_u32 s36, s36, 1")
        a.e("s_cmp_lg_u32 s36, 0")
        a.e(f"s_cbranch_scc1 L_{name}_git{conv}")
    else:
        for it in range(4):
            a.e(f"ds_read_b128 v[{AF+4*it}:{AF+4*it+3}], v28 offset:{TB + it*1024}")
        for c in range(8):
            for xx in range(2):
                a.e(f"ds_read_b64_tr_b16 v[{BF+4*c+2*xx}:{BF+4*c+2*xx+1}], v32 offset:{lds_base + c*128 + xx*4*1152}")
            if c == 4:
                a.e("s_waitcnt lgkmcnt(8)")
        a.e("s_waitcnt lgkmcnt(0)")
        for it in range(4):
            for c in range(8):
                d = DD + 4 * c
                a.e(f"v_mfma_f32_16x16x32_bf16 v[{d}:{d+3}], v[{AF+4*it}:{AF+4*it+3}], v[{BF+4*c}:{BF+4*c+3}], 0")
            a.e("s_nop 7")
            for e in range(4):
                pk = PK + 4 * (e & 1)
                for x in range(4):
                    a.e(f"v_cvt_pk_bf16_f32 v{pk+x}, v{DD+8*x+e}, v{DD+8*x+4+e}")
                a.e(f"s_add_u32 s35, s34, {(8*it + (e >> 1))*GBIN + (e & 1)*1024}")
                a.e(f"buffer_store_dwordx4 v[{pk}:{pk+3}], v33, s[{sG}:{sG+3}], s35 offen")
                a.e("s_nop 1")
            if st_ and it == 0: st_.stamp()
    if st_ and st_.on:
        st_.stamp()
        a.e("s_waitcnt vmcnt(0)")
        st_.stamp()
        st_.dump(wgsel, sW, 0, f"L_{name}_nodump_g{conv}")
    a.end()
    return lds_base + 16 * 1152 + 4096


def prep_kernel(name, exp=""):
    a = Asm()
    NX = 2 * M1
    NXW = NX if "noxcdmap" in exp else 8 * 84
    NG = 256
    G2 = "g2inprep" in exp
    NG2 = 256 if G2 else 0
    NS = 13
    O_S, O_G = 0, NS
    O_G2 = O_G + NG
    O_X = O_G2 + NG2
    NWG = O_X + NXW
    if "xfirst" in exp:
        O_X = NS
        O_G = O_X + NXW
        O_G2 = O_G + NG
        NWG = O_G2 + NG2
    sW = 20
    a.label(name)
    a.e(f"s_cmp_ge_u32 s2, {NWG}")
    a.e(f"s_cbranch_scc1 L_{name}_done")
    if "trace" in exp and a.trace_region is None: a.trace_begin(0)
    if "dbgtime" in exp: a.trace_begin(0, dbg=True)
    st_ = Stamps(a, "stamp" in exp)
    wgsel = int(exp.split("wg=")[1].split(",")[0]) if "wg=" in exp else 0
    st_.begin()
    nst0 = st_.n
    a.e(f"v_readfirstlane_b32 s{sW}, v0")
    a.e(f"s_lshr_b32 s{sW}, s{sW}, 6")
    a.e(f"s_cmp_lt_u32 s2, {NS}")
    a.e(f"s_cbranch_scc1 L_{name}_slab")
    if "xfirst" in exp:
        a.e(f"s_cmp_ge_u32 s2, {O_G}")
        a.e(f"s_cbranch_scc1 L_{name}_g")
    else:
        a.e(f"s_cmp_lt_u32 s2, {O_X}")
        a.e(f"s_cbranch_scc1 L_{name}_g")

    sX, sO = 8, 12
    a.e("s_load_dwordx2 s[4:5], s[0:1], 0")
    a.e(f"s_load_dwordx2 s[6:7], s[0:1], {X_PTR}")
    a.e(f"s_sub_u32 s24, s2, {O_X}")
    if "noxcdmap" not in exp:
        a.e("s_and_b32 s25, s24, 7")
        a.e("s_mul_i32 s25, s25, 84")
        a.e("s_lshr_b32 s24, s24, 3")
        a.e("s_add_u32 s24, s24, s25")
        a.e(f"s_cmp_ge_u32 s24, {NX}")
        a.e(f"s_cbranch_scc1 L_{name}_done")
        a.e(f"s_mul_hi_u32 s25, s24, {(2**32 + NB1 - 1)//NB1}")
        a.e(f"s_mul_i32 s26, s25, {NB1}")
        a.e("s_sub_u32 s26, s24, s26")
        a.e("s_and_b32 s27, s25, 1")
        a.e("s_lshr_b32 s25, s25, 1")
    else:
        a.e(f"s_cmp_ge_u32 s24, {M1}")
        a.e("s_cselect_b32 s25, 1, 0")
        a.e(f"s_mul_i32 s26, s25, {M1}")
        a.e("s_sub_u32 s24, s24, s26")
        a.e("s_lshr_b32 s26, s24, 1")
        a.e("s_and_b32 s27, s24, 1")
    lane = 1
    a.e(f"v_and_b32 v{lane}, 63, v0")
    a.e(f"v_lshrrev_b32 v2, 3, v{lane}")
    a.e("s_mul_i32 s28, s26, 96")
    a.e("s_add_u32 s28, s28, s27")
    a.e("s_sub_u32 s28, s28, 15")
    a.e("v_lshlrev_b32 v3, 1, v2")
    a.e("v_add_u32 v3, s28, v3")
    a.e("v_lshlrev_b32 v3, 9, v3")
    a.e(f"s_lshl_b32 s29, s{sW}, 7")
    a.e("v_add_u32 v3, s29, v3")
    a.e("v_bfe_u32 v4, v2, 1, 1")
    a.e("v_lshlrev_b32 v4, 1, v4")
    a.e(f"v_and_b32 v5, 7, v{lane}")
    a.e("v_xor_b32 v4, v4, v5")
    a.e("v_lshl_add_u32 v3, v4, 4, v3")
    a.e("v_xor_b32 v4, 64, v3")
    a.e("s_waitcnt lgkmcnt(0)")
    a.e(f"s_mul_i32 s30, s25, {16000*512}")
    a.e(f"s_add_u32 s{sX}, s4, s30")
    a.e(f"s_addc_u32 s{sX+1}, s5, 0")
    a.e(f"s_mov_b32 s{sX+2}, {16000*512}")
    a.e(f"s_mov_b32 s{sX+3}, 0x00020000")
    a.e(f"s_lshl_b32 s31, s{sW}, 13")
    for q in range(8):
        a.e(f"s_add_u32 m0, s31, {q*1024}")
        a.e(f"v_add_u32 v5, {q*8192}, v{4 if q & 1 else 3}")
        a.e(f"buffer_load_dwordx4 v5, s[{sX}:{sX+3}], 0 offen lds")
    st_.stamp()
    a.add64(sO, 6, WS_XH1)
    a.e(f"s_mov_b32 s{sO+2}, {32*XBIN1}")
    a.e(f"s_mov_b32 s{sO+3}, 0x00020000")
    TB = 32768
    a.e(f"v_mov_b32 v8, v{lane}")
    a.e(f"s_lshl_b32 s32, s{sW}, 4")
    a.e(f"v_lshlrev_b32 v6, 4, v{lane}")
    a.e(f"s_lshl_b32 s33, s{sW}, 11")
    a.e("v_add_u32 v7, s33, v6")
    for kk in range(2):
        fwd_table_frag(a, "s32", kk, 24 + 4 * kk, 8)
        a.e(f"ds_write_b128 v7, v[{24+4*kk}:{24+4*kk+3}] offset:{TB + kk*1024}")
    a.e(f"v_bfe_u32 v8, v{lane}, 2, 2")
    a.e(f"v_lshrrev_b32 v9, 4, v{lane}")
    a.e("v_lshl_add_u32 v10, v9, 3, v8")
    a.e("v_lshlrev_b32 v10, 7, v10")
    a.e("v_lshrrev_b32 v8, 1, v8")
    a.e("v_and_b32 v11, 1, v9")
    a.e("v_lshl_add_u32 v8, v11, 1, v8")
    a.e("v_lshlrev_b32 v8, 1, v8")
    a.e(f"v_bfe_u32 v11, v{lane}, 1, 1")
    a.e("v_xor_b32 v8, v8, v11")
    a.e("v_lshl_add_u32 v10, v8, 4, v10")
    a.e(f"v_and_b32 v11, 1, v{lane}")
    a.e("v_lshl_add_u32 v10, v11, 3, v10")
    a.e("v_add_u32 v10, s31, v10")
    vTR = [12, 13, 14, 15]
    for h in range(2):
        for t in range(2):
            a.e(f"v_xor_b32 v{vTR[h*2+t]}, {h*64 + t*32}, v10")
    a.e(f"v_bfe_u32 v8, v{lane}, 1, 3")
    a.e(f"s_mov_b32 s33, {XBIN1}")
    a.e("v_mul_lo_u32 v8, v8, s33")
    a.e(f"v_and_b32 v11, 1, v{lane}")
    a.e("v_lshl_add_u32 v8, v11, 6, v8")
    a.e("v_lshl_add_u32 v16, v9, 4, v8")
    a.e(f"s_mul_i32 s34, s25, {NB1}")
    a.e("s_add_u32 s34, s34, s26")
    a.e("s_lshl_b32 s34, s34, 11")
    a.e("s_lshl_b32 s35, s27, 3")
    a.e(f"s_lshl_b32 s36, s{sW}, 1")
    a.e("s_add_u32 s35, s35, s36")
    a.e("s_lshl_b32 s35, s35, 7")
    a.e("s_add_u32 s34, s34, s35")
    st_.stamp()
    a.e("s_waitcnt lgkmcnt(0)")
    a.e("s_barrier")
    st_.stamp()
    FF, AA, DD, PK = 24, 56, 72, 104
    for jt in range(4):
        for kk in range(2):
            f = FF + (jt * 2 + kk) * 4
            a.e(f"ds_read_b128 v[{f}:{f+3}], v6 offset:{TB + (jt*2+kk)*1024}")
    a.e("s_waitcnt vmcnt(0)")
    st_.stamp()
    if "unrollb" not in exp.split(","):
        a.e("s_mov_b32 s36, 2")
        a.label(f"L_{name}_xh")
        for t in range(2):
            for kk in range(2):
                r_ = AA + (t * 2 + kk) * 4
                for xx in range(2):
                    a.e(f"ds_read_b64_tr_b16 v[{r_+2*xx}:{r_+2*xx+1}], v{vTR[t]} offset:{kk*4096 + xx*512}")
        a.e("s_waitcnt lgkmcnt(0)")
        for kk in range(2):
            for t in range(2):
                for jt in range(4):
                    d = DD + (t * 4 + jt) * 4
                    r_ = AA + (t * 2 + kk) * 4
                    f = FF + (jt * 2 + kk) * 4
                    c = "0" if kk == 0 else f"v[{d}:{d+3}]"
                    a.e(f"v_mfma_f32_16x16x32_bf16 v[{d}:{d+3}], v[{r_}:{r_+3}], v[{f}:{f+3}], {c}")
        for t in range(2):
            a.e(f"v_xor_b32 v{vTR[t]}, 64, v{vTR[t]}")
        a.e("s_nop 5")
        for jt in range(4):
            pk = PK + 4 * (jt & 1)
            d0, d1 = DD + jt * 4, DD + (4 + jt) * 4
            a.e(f"v_cvt_pk_bf16_f32 v{pk}, v{d0}, v{d0+1}")
            a.e(f"v_cvt_pk_bf16_f32 v{pk+1}, v{d0+2}, v{d0+3}")
            a.e(f"v_cvt_pk_bf16_f32 v{pk+2}, v{d1}, v{d1+1}")
            a.e(f"v_cvt_pk_bf16_f32 v{pk+3}, v{d1+2}, v{d1+3}")
            a.e(f"s_add_u32 s35, s34, {jt*8*XBIN1}")
            a.e(f"buffer_store_dwordx4 v[{pk}:{pk+3}], v16, s[{sO}:{sO+3}], s35 offen")
            a.e("s_nop 1")
        a.e("s_add_u32 s34, s34, 128")
        a.e("s_sub_u32 s36, s36, 1")
        a.e("s_cmp_lg_u32 s36, 0")
        a.e(f"s_cbranch_scc1 L_{name}_xh")
    else:
        for h in range(2):
            for t in range(2):
                for kk in range(2):
                    r_ = AA + (t * 2 + kk) * 4
                    for xx in range(2):
                        a.e(f"ds_read_b64_tr_b16 v[{r_+2*xx}:{r_+2*xx+1}], v{vTR[h*2+t]} offset:{kk*4096 + xx*512}")
            a.e("s_waitcnt lgkmcnt(0)")
            for kk in range(2):
                for t in range(2):
                    for jt in range(4):
                        d = DD + (t * 4 + jt) * 4
                        r_ = AA + (t * 2 + kk) * 4
                        f = FF + (jt * 2 + kk) * 4
                        c = "0" if kk == 0 else f"v[{d}:{d+3}]"
                        a.e(f"v_mfma_f32_16x16x32_bf16 v[{d}:{d+3}], v[{r_}:{r_+3}], v[{f}:{f+3}], {c}")
            a.e("s_nop 7")
            for jt in range(4):
                pk = PK + 4 * (jt & 1)
                d0, d1 = DD + jt * 4, DD + (4 + jt) * 4
                a.e(f"v_cvt_pk_bf16_f32 v{pk}, v{d0}, v{d0+1}")
                a.e(f"v_cvt_pk_bf16_f32 v{pk+1}, v{d0+2}, v{d0+3}")
                a.e(f"v_cvt_pk_bf16_f32 v{pk+2}, v{d1}, v{d1+1}")
                a.e(f"v_cvt_pk_bf16_f32 v{pk+3}, v{d1+2}, v{d1+3}")
                a.e(f"s_add_u32 s35, s34, {jt*8*XBIN1 + h*128}")
                a.e(f"buffer_store_dwordx4 v[{pk}:{pk+3}], v16, s[{sO}:{sO+3}], s35 offen")
                a.e("s_nop 1")
            st_.stamp()
    if st_.on:
        a.e("s_waitcnt vmcnt(0)")
        st_.stamp()
        st_.dump(wgsel, sW, 0, f"L_{name}_nodump_x")
    a.end()

    a.label(f"L_{name}_g")
    if G2:
        a.e(f"s_cmp_ge_u32 s2, {O_G2}")
        a.e(f"s_cbranch_scc1 L_{name}_g2")
    a.e(f"s_sub_u32 s3, s2, {O_G}")
    st_.n = nst0
    ghat_part(a, name, 1, sW, "s3", st_=st_, wgsel=wgsel, roll="unrollb" not in exp.split(","))
    if G2:
        a.label(f"L_{name}_g2")
        a.e(f"s_sub_u32 s3, s2, {O_G2}")
        ghat_part(a, name, 2, sW, "s3")

    a.label(f"L_{name}_slab")
    sM, sT = 8, 12
    a.e("s_load_dwordx2 s[6:7], s[0:1], 72")
    a.e("s_cmp_eq_u32 s2, 12")
    a.e(f"s_cbranch_scc1 L_{name}_tab")
    a.e("s_lshr_b32 s24, s2, 2")
    a.e("s_and_b32 s26, s2, 3")
    a.e("s_mov_b32 s25, 40")
    a.e("s_cmp_eq_u32 s24, 1")
    a.e("s_cselect_b32 s25, 32, s25")
    a.e("s_cmp_eq_u32 s24, 2")
    a.e("s_cselect_b32 s25, 48, s25")
    a.e("s_load_dwordx2 s[4:5], s[0:1], s25")
    a.e("s_load_dwordx2 s[28:29], s[0:1], 24")
    lane = 1
    a.e(f"v_and_b32 v{lane}, 63, v0")
    a.e(f"v_lshrrev_b32 v2, 3, v{lane}")
    a.e(f"s_lshl_b32 s27, s{sW}, 6")
    a.e("v_add_u32 v2, s27, v2")
    a.e("v_lshlrev_b32 v2, 9, v2")
    a.e(f"v_and_b32 v3, 7, v{lane}")
    a.e("v_lshl_add_u32 v2, v3, 4, v2")
    a.e("s_lshl_b32 s27, s26, 7")
    a.e("v_add_u32 v2, s27, v2")
    a.e("s_waitcnt lgkmcnt(0)")
    a.srd(sM, "s4", "s5", 131072)
    a.add64(sT, 6, WS_TAB)
    a.e(f"s_mov_b32 s{sT+2}, {TAB_WO + 131072}")
    a.e(f"s_mov_b32 s{sT+3}, 0x00020000")
    a.e(f"s_lshl_b32 s31, s{sW}, 13")
    for q in range(8):
        a.e(f"s_add_u32 m0, s31, {q*1024}")
        a.e(f"s_mov_b32 s32, {q*4096}")
        a.e(f"buffer_load_dwordx4 v2, s[{sM}:{sM+3}], s32 offen lds")
    a.e("s_cmp_eq_u32 s24, 0")
    a.e(f"s_cbranch_scc1 L_{name}_ge")
    a.e(f"v_bfe_u32 v4, v{lane}, 2, 2")
    a.e(f"v_lshrrev_b32 v5, 5, v{lane}")
    a.e(f"v_bfe_u32 v6, v{lane}, 4, 1")
    a.e(f"v_and_b32 v7, 3, v{lane}")
    a.e("s_cmp_eq_u32 s24, 1")
    a.e(f"s_cbranch_scc0 L_{name}_wo")
    a.e("v_lshl_add_u32 v8, v5, 4, v4")
    a.e("v_lshlrev_b32 v8, 7, v8")
    a.e("v_lshl_add_u32 v8, v6, 5, v8")
    a.e("v_lshl_add_u32 v8, v7, 3, v8")
    a.e(f"s_lshl_b32 s33, s{sW}, 13")
    a.e("v_add_u32 v8, s33, v8")
    a.e(f"s_mov_b32 s34, {TAB_WF}")
    offs = lambda kq, xx, it: (32 * (kq >> 1) + 8 * xx + 4 * (kq & 1)) * 128 + it * 64

    def emit_frags(offs_fn, is_wo=False):
        a.e("s_lshl_b32 s35, s26, 15")
        a.e("s_add_u32 s34, s34, s35")
        a.e(f"s_lshl_b32 s35, s{sW}, 12")
        a.e("s_add_u32 s34, s34, s35")
        a.e(f"v_lshlrev_b32 v9, 4, v{lane}")
        a.e("s_waitcnt vmcnt(0)")
        a.e("s_barrier")
        for it in range(2):
            for kq in range(4):
                r_ = 16 + (it * 4 + kq) * 4
                for xx in range(2):
                    a.e(f"ds_read_b64_tr_b16 v[{r_+2*xx}:{r_+2*xx+1}], v8 offset:{offs_fn(kq, xx, it)}")
            a.e("s_waitcnt lgkmcnt(0)")
            if is_wo:
                if it == 0:
                    for x in range(4):
                        a.e(f"v_mov_b32 v{48+x}, 0x3f803f80")
                    a.e("s_nop 1")
                d = 64 + 16 * it
                for kq in range(4):
                    r_ = 16 + (it * 4 + kq) * 4
                    c = "0" if kq == 0 else f"v[{d}:{d+15}]"
                    a.e(f"v_mfma_f32_32x32x16_bf16 v[{d}:{d+15}], v[{r_}:{r_+3}], v[48:51], {c}")
                for kq in range(4):
                    r_ = 16 + (it * 4 + kq) * 4
                    for x in range(4):
                        a.e(f"v_lshlrev_b32 v52, 16, v{r_+x}")
                        a.e(f"v_and_b32 v53, 0xffff0000, v{r_+x}")
                        a.e("v_mul_f32 v52, -2.0, v52")
                        a.e("v_mul_f32 v53, -2.0, v53")
                        a.e(f"v_cvt_pk_bf16_f32 v{r_+x}, v52, v53")
            for kq in range(4):
                r_ = 16 + (it * 4 + kq) * 4
                a.e(f"s_add_u32 s35, s34, {it*16384 + kq*1024}")
                a.e(f"buffer_store_dwordx4 v[{r_}:{r_+3}], v9, s[{sT}:{sT+3}], s35 offen")
        if is_wo:
            a.e("s_nop 7")
            a.e("s_barrier")
            a.e(f"v_lshlrev_b32 v10, 6, v{lane}")
            a.e(f"s_lshl_b32 s35, s{sW}, 13")
            a.e("v_add_u32 v11, s35, v10")
            for it in range(2):
                for x in range(4):
                    a.e(f"ds_write_b128 v11, v[{64+16*it+4*x}:{64+16*it+4*x+3}] offset:{it*4096 + x*16}")
            a.e("s_waitcnt lgkmcnt(0)")
            a.e("s_barrier")
            a.e(f"s_cmp_ge_u32 s{sW}, 2")
            a.e(f"s_cbranch_scc1 L_{name}_done")
            a.e(f"s_lshl_b32 s35, s{sW}, 12")
            a.e("v_add_u32 v11, s35, v10")
            for ww in range(4):
                for x in range(4):
                    a.e(f"ds_read_b128 v[{16+16*ww+4*x}:{16+16*ww+4*x+3}], v11 offset:{ww*8192 + x*16}")
                if ww % 2 == 1:
                    a.e("s_waitcnt lgkmcnt(0)")
            for x in range(16):
                a.e(f"v_add_f32 v{16+x}, v{16+x}, v{32+x}")
                a.e(f"v_add_f32 v{48+x}, v{48+x}, v{64+x}")
            for x in range(16):
                a.e(f"v_add_f32 v{16+x}, v{16+x}, v{48+x}")
            a.e(f"v_and_b32 v10, 31, v{lane}")
            a.e("v_cmp_eq_u32 vcc, 0, v10")
            a.e(f"v_lshrrev_b32 v10, 5, v{lane}")
            a.e("v_lshlrev_b32 v10, 6, v10")
            a.e("s_lshl_b32 s35, s26, 8")
            a.e(f"s_lshl_b32 s36, s{sW}, 7")
            a.e("s_add_u32 s35, s35, s36")
            a.e(f"s_add_u32 s35, s35, {TAB_CS}")
            a.e("s_and_saveexec_b64 s[38:39], vcc")
            for x in range(4):
                a.e(f"buffer_store_dwordx4 v[{16+4*x}:{16+4*x+3}], v10, s[{sT}:{sT+3}], s35 offen offset:{x*16}")
        a.end()

    emit_frags(offs)
    a.label(f"L_{name}_wo")
    a.e("v_lshl_add_u32 v8, v5, 2, v4")
    a.e("v_lshlrev_b32 v8, 7, v8")
    a.e("v_lshl_add_u32 v8, v6, 5, v8")
    a.e("v_and_b32 v10, 1, v7")
    a.e("v_lshl_add_u32 v8, v10, 4, v8")
    a.e("v_lshrrev_b32 v10, 1, v7")
    a.e("v_lshl_add_u32 v8, v10, 3, v8")
    a.e(f"s_lshl_b32 s33, s{sW}, 13")
    a.e("v_add_u32 v8, s33, v8")
    a.e(f"s_mov_b32 s34, {TAB_WO}")
    emit_frags(lambda kq, xx, it: (16 * kq + 8 * xx) * 128 + it * 64, True)

    a.label(f"L_{name}_ge")
    sGg = 36
    a.srd(sGg, "s28", "s29", 8192)
    a.e(f"v_and_b32 v4, 15, v{lane}")
    a.e(f"v_lshrrev_b32 v5, 4, v{lane}")
    a.e("v_lshlrev_b32 v6, 9, v4")
    a.e("v_lshl_add_u32 v6, v5, 4, v6")
    BB = 16
    for ks in range(8):
        a.e(f"buffer_load_dwordx4 v[{BB+4*ks}:{BB+4*ks+3}], v6, s[{sGg}:{sGg+3}], 0 offen offset:{ks*64}")
    a.e(f"v_bfe_u32 v7, v{lane}, 2, 2")
    a.e("v_lshl_add_u32 v7, v5, 3, v7")
    a.e("v_lshlrev_b32 v7, 7, v7")
    a.e(f"v_and_b32 v8, 3, v{lane}")
    a.e("v_lshl_add_u32 v7, v8, 3, v7")
    a.e(f"s_lshl_b32 s33, s{sW}, 5")
    a.e("v_add_u32 v7, s33, v7")
    a.e("s_waitcnt vmcnt(0)")
    a.e("s_barrier")
    AA = 48
    for ks in range(8):
        for xx in range(2):
            a.e(f"ds_read_b64_tr_b16 v[{AA+4*ks+2*xx}:{AA+4*ks+2*xx+1}], v7 offset:{(32*ks + 4*xx)*128}")
        if ks == 3:
            a.e("s_waitcnt lgkmcnt(0)")
    a.e("s_waitcnt lgkmcnt(0)")
    for ks in range(8):
        c = "0" if ks == 0 else "v[80:83]"
        a.e(f"v_mfma_f32_16x16x32_bf16 v[80:83], v[{AA+4*ks}:{AA+4*ks+3}], v[{BB+4*ks}:{BB+4*ks+3}], {c}")
    a.e("s_nop 7")
    a.e("v_cvt_pk_bf16_f32 v84, v80, v81")
    a.e("v_cvt_pk_bf16_f32 v85, v82, v83")
    a.e(f"s_mov_b32 s33, 0x{f2u(LOG2E2):08x}")
    a.e("v_lshlrev_b32 v80, 16, v84")
    a.e("v_and_b32 v81, 0xffff0000, v84")
    a.e("v_lshlrev_b32 v82, 16, v85")
    a.e("v_and_b32 v83, 0xffff0000, v85")
    for x in range(4):
        a.e(f"v_mul_f32 v{80+x}, s33, v{80+x}")
    a.e("v_lshlrev_b32 v6, 10, v4")
    a.e("v_lshl_add_u32 v6, v5, 4, v6")
    a.e("s_lshl_b32 s33, s26, 8")
    a.e(f"s_lshl_b32 s34, s{sW}, 6")
    a.e("s_add_u32 s33, s33, s34")
    a.e(f"s_add_u32 s33, s33, {TAB_BP}")
    a.e(f"buffer_store_dwordx4 v[80:83], v6, s[{sT}:{sT+3}], s33 offen")
    a.end()

    a.label(f"L_{name}_tab")
    a.e(f"v_and_b32 v8, 63, v0")
    a.e("v_lshlrev_b32 v6, 4, v8")
    a.e("s_waitcnt lgkmcnt(0)")
    a.add64(sT, 6, WS_TAB)
    a.e(f"s_mov_b32 s{sT+2}, {TAB_WO + 131072}")
    a.e(f"s_mov_b32 s{sT+3}, 0x00020000")
    a.e(f"s_lshl_b32 s32, s{sW}, 4")
    a.e(f"s_lshl_b32 s33, s{sW}, 11")
    for kk in range(2):
        fwd_table_frag(a, "s32", kk, 24 + 4 * kk, 8)
        a.e(f"s_add_u32 s34, s33, {TAB_F + kk*1024}")
        a.e(f"buffer_store_dwordx4 v[{24+4*kk}:{24+4*kk+3}], v6, s[{sT}:{sT+3}], s34 offen")
    a.e(f"s_cmp_ge_u32 s{sW}, 3")
    a.e(f"s_cbranch_scc1 L_{name}_done")
    a.e("v_and_b32 v9, 15, v8")
    a.e("v_add_u32 v9, s32, v9")
    a.e("v_cvt_f32_u32 v9, v9")
    a.e("v_mul_f32 v9, 0x3c000000, v9")
    a.e("v_lshrrev_b32 v10, 4, v8")
    a.e("v_lshlrev_b32 v10, 3, v10")
    for kk in range(2):
        for x in range(8):
            a.e(f"v_add_u32 v11, {32*kk + 2*(x >> 1) + 1}, v10")
            a.e("v_cvt_f32_u32 v11, v11")
            if x & 1:
                a.e("v_fma_f32 v11, v11, v9, 0.25") if False else None
                a.e("v_mul_f32 v11, v11, v9")
                a.e("v_add_f32 v11, 0x3e800000, v11")
            else:
                a.e("v_mul_f32 v11, v11, v9")
            a.e(f"v_fract_f32 v{12+x}, v11")
        for x in range(8):
            a.e(f"v_cos_f32 v{12+x}, v{12+x}")
        a.e("s_nop 0")
        for x in range(4):
            a.e(f"v_cvt_pk_bf16_f32 v{24+x}, v{12+2*x}, v{12+2*x+1}")
        a.e(f"s_add_u32 s34, s33, {TAB_FI + kk*1024}")
        a.e(f"buffer_store_dwordx4 v[24:27], v6, s[{sT}:{sT+3}], s34 offen")
        a.e("s_nop 1")
    a.label(f"L_{name}_done")
    a.e("s_endpgm")
    return a.text(), 40960, 128, NWG
```
